```python
import torch

def _softmax(x, axis=-1):
    return torch.softmax(x, dim=axis)

def _gelu(x):
    return torch.nn.functional.gelu(x, approximate='tanh')

def _silu(x):
    return torch.nn.functional.silu(x)

def _sigmoid(x):
    return torch.sigmoid(x)

def _layernorm(x, axis=-1, eps=1e-05):
    m = x.mean(dim=axis, keepdim=True)
    v = x.var(dim=axis, keepdim=True, unbiased=False)
    return (x - m) / torch.sqrt(v + eps)

def _scatter_add(tgt, idx, src, axis=0):
    return tgt.clone().index_add_(axis, idx, src)

def _segment_sum(src, seg, n):
    out = torch.zeros((n,) + src.shape[1:], dtype=src.dtype)
    return out.index_add_(0, seg, src)

def _pad(x, pw):
    flat = tuple((v for pair in reversed(pw) for v in pair))
    return torch.nn.functional.pad(x, flat)
kernel_name = 'concat_heads__grouped_kv_mqa__memory_aug_recurrent_mem_tr__prompt'

def setup_inputs():

    _w = lambda a: (lambda t: t.to(torch.bfloat16) if t.is_floating_point() else t)(torch.as_tensor(a))

    def _A_setup():
        B, S, D, H = (1, 2048, 576, 32)
        Dh = D // H
        return {'x': _w((lambda *s: torch.randn(*s, dtype=torch.bfloat16) * 0.05)(B, S, D)), 'wq': _w((lambda *s: torch.randn(*s, dtype=torch.bfloat16) * 1.6)(D, H * Dh)), 'wk': _w((lambda *s: torch.randn(*s, dtype=torch.bfloat16) * 1.6)(D, Dh)), 'wv': _w((lambda *s: torch.randn(*s, dtype=torch.bfloat16) * 0.05)(D, Dh)), 'wo': _w((lambda *s: torch.randn(*s, dtype=torch.bfloat16) * 0.05)(H * Dh, D))}
    _A_in = _A_setup()

    def _B_setup():
        B, S, Dm = (1, 2048, 576)
        H, Dh = (32, 128)
        M, seg = (8, 32)
        seg = min(seg, S)
        S = S // seg * seg
        return {'x': _w((lambda *s: torch.randn(*s, dtype=torch.bfloat16) * 0.05)(B, S, Dm)), 'mem0': _w((lambda *s: torch.randn(*s, dtype=torch.bfloat16) * 0.8)(B, M, Dm)), 'Wq': _w((lambda *s: torch.randn(*s, dtype=torch.bfloat16) * 1.6)(Dm, H, Dh) * Dm ** (-0.5)), 'Wk': _w((lambda *s: torch.randn(*s, dtype=torch.bfloat16) * 1.6)(Dm, H, Dh) * Dm ** (-0.5)), 'Wv': _w((lambda *s: torch.randn(*s, dtype=torch.bfloat16) * 0.8)(Dm, H, Dh) * Dm ** (-0.5)), 'Wo': _w((lambda *s: torch.randn(*s, dtype=torch.bfloat16) * 0.8)(H, Dh, Dm) * (H * Dh) ** (-0.5)), 'seg_len': seg}
    _B_in = _B_setup()
    return {'A_x': _A_in['x'], 'A_wq': _A_in['wq'], 'A_wk': _A_in['wk'], 'A_wv': _A_in['wv'], 'A_wo': _A_in['wo'], 'B_x': _B_in['x'], 'B_mem0': _B_in['mem0'], 'B_Wq': _B_in['Wq'], 'B_Wk': _B_in['Wk'], 'B_Wv': _B_in['Wv'], 'B_Wo': _B_in['Wo'], 'B_seg_len': _B_in['seg_len']}

def reference(A_x, A_wq, A_wk, A_wv, A_wo, B_x, B_mem0, B_Wq, B_Wk, B_Wv, B_Wo, B_seg_len):

    def _A_ref(x, wq, wk, wv, wo):
        B, S, D = x.shape
        H = 32
        Dh = D // H
        q = (lambda x, *d: x.permute(*d))((x @ wq).reshape(B, S, H, Dh), 0, 2, 1, 3)
        k = x @ wk
        v = x @ wv
        scores = torch.einsum('bhqd,bkd->bhqk', q, k) * Dh ** (-0.5)
        p = _softmax(scores, axis=-1)
        o = torch.einsum('bhqk,bkd->bhqd', p, v)
        return (lambda x, *d: x.permute(*d))(o, 0, 2, 1, 3).reshape(B, S, H * Dh) @ wo

    def _B_ref(x, mem0, Wq, Wk, Wv, Wo, seg_len):
        B, S, Dm = x.shape
        H, Dh = (Wq.shape[1], Wq.shape[2])
        M = mem0.shape[1]
        scale = Dh ** (-0.5)
        n_seg = S // seg_len
        L = M + seg_len
        idx = torch.arange(L)
        mask = (idx[:, None] < M) | (idx[:, None] >= idx[None, :])
        mem = mem0
        outs = []
        for s in range(n_seg):
            xs = x[:, s * seg_len:(s + 1) * seg_len, :].clone()
            h = torch.concatenate([mem, xs], axis=1)
            q = torch.einsum('btd,dhe->bhte', h, Wq)
            k = torch.einsum('btd,dhe->bhte', h, Wk)
            v = torch.einsum('btd,dhe->bhte', h, Wv)
            scores = torch.einsum('bhqe,bhke->bhqk', q, k) * scale
            scores = torch.where(mask[None, None], scores, -1000000000.0)
            p = _softmax(scores, axis=-1)
            o = torch.einsum('bhqk,bhke->bhqe', p, v)
            o = torch.einsum('bhte,hed->btd', o, Wo)
            mem = o[:, :M, :].clone()
            outs.append(o[:, M:, :])
        return torch.concatenate(outs, axis=1)
    a = _A_ref(A_x, A_wq, A_wk, A_wv, A_wo)
    b = _B_ref(B_x, B_mem0, B_Wq, B_Wk, B_Wv, B_Wo, B_seg_len)
    return torch.concatenate([a, b], axis=-1)
```

```python
import re

def regs_of(tok):
    tok = tok.strip()
    neg = tok.lstrip('-')
    if neg.startswith('abs(') : neg = neg[4:-1]
    if neg.startswith('|'): neg = neg.strip('|')
    tok = neg
    m = re.fullmatch(r'([vas])(\d+)', tok)
    if m: return [(m.group(1), int(m.group(2)))]
    m = re.fullmatch(r'([vas])\[(\d+):(\d+)\]', tok)
    if m: return [(m.group(1), i) for i in range(int(m.group(2)), int(m.group(3))+1)]
    if tok == 'vcc': return [('s','vcc_lo'),('s','vcc_hi')]
    if tok in ('vcc_lo','vcc_hi'): return [('s',tok)]
    if tok == 'exec': return [('s','exec_lo'),('s','exec_hi')]
    if tok in ('exec_lo','exec_hi'): return [('s',tok)]
    if tok == 'm0': return [('s','m0')]
    return []

TRANS = ('v_exp_f32','v_log_f32','v_rcp_f32','v_rsq_f32','v_sqrt_f32','v_sin_f32','v_cos_f32','v_rcp_iflag_f32')

class Ins:
    __slots__=('text','op','ops','mods','kind','w','r','passes','srcC','srcAB','pre','isdpp','vm','lgkm','wide','lds_dma','tgt','uid', 'nowait')
    def __init__(self, text):
        self.text = text
        t = text.split(';')[0].strip()
        parts = t.split(None,1)
        self.op = op = parts[0]
        rest = parts[1] if len(parts)>1 else ''
        toks = [x.strip() for x in re.split(r',(?![^\[\(]*[\]\)])', rest)] if rest else []
        mods = ''
        if toks:
            lt = toks[-1].split(None,1)
            if not toks[-1].startswith('hwreg') and len(lt)>1 and not op.startswith('s_waitcnt'):
                toks[-1] = lt[0]; mods = lt[1]
        self.ops = toks; self.mods = mods
        self.w=[]; self.r=[]; self.passes=0; self.srcC=[]; self.srcAB=[]; self.pre=[]; self.isdpp = ('_dpp' in op) or ('row_' in mods) or ('quad_perm' in mods)
        self.vm=False; self.lgkm=None; self.wide=False; self.lds_dma=False; self.tgt=None; self.nowait=(';nw' in text)
        R = lambda i: regs_of(toks[i]) if i < len(toks) else []
        base = re.sub(r'_(e32|e64|dpp|sdwa)$','',op)
        if op.startswith('v_mfma'):
            self.kind='mfma'; self.w=R(0); self.srcAB=R(1)+R(2); self.srcC=R(3); self.r=self.srcAB+self.srcC
            self.passes = 8 if '32x32' in op else 4
        elif op.startswith('v_smfmac'):
            self.kind='mfma'; self.w=R(0); self.srcAB=R(1)+R(2)+R(3); self.srcC=R(0); self.r=self.srcAB+self.srcC
            self.passes = 8 if '32x32' in op else 4
        elif op.startswith('v_'):
            self.kind='valu'
            if base.startswith('v_cmpx'):
                raise Exception('v_cmpx not supported: '+text)
            if base.startswith('v_permlane') and 'swap' in base:
                self.w=R(0)+R(1); self.r=R(0)+R(1)
            elif base in ('v_add_co_u32','v_sub_co_u32','v_subrev_co_u32'):
                self.w=R(0)+R(1); self.r=R(2)+R(3)
            elif base in ('v_addc_co_u32','v_subb_co_u32'):
                self.w=R(0)+R(1); self.r=R(2)+R(3)+R(4)
            elif base=='v_nop':
                pass
            else:
                self.w=R(0)
                for i in range(1,len(toks)): self.r+=R(i)
                if base in ('v_fmac_f32','v_dot2c_f32_bf16','v_writelane_b32','v_pk_fmac_f16') or self.isdpp:
                    self.r+=R(0)
                if base=='v_cndmask_b32' and len(toks)==3: self.r+=regs_of('vcc')
        elif op.startswith('ds_'):
            self.kind='ds'; self.lgkm='ds'
            if op.startswith('ds_read') or op.startswith('ds_bpermute') or op.startswith('ds_permute') or op.startswith('ds_swizzle') or '_rtn' in op:
                self.w=R(0)
                for i in range(1,len(toks)): self.r+=R(i)
            else:
                for i in range(len(toks)): self.r+=R(i)
        elif op.startswith('buffer_') or op.startswith('global_'):
            self.kind='vmem'; self.vm=True
            ms = mods.split()
            if op.startswith('buffer_wbl2') or op.startswith('buffer_inv'):
                pass
            elif 'lds' in ms or op.startswith('global_load_lds'):
                self.lds_dma=True
                for i in range(len(toks)): self.r+=R(i)
                self.r+=[('s','m0')]
            elif '_load' in op:
                self.w=R(0)
                for i in range(1,len(toks)): self.r+=R(i)
                if 'd16' in op: self.r+=R(0)
            elif '_atomic' in op:
                for i in range(len(toks)): self.r+=R(i)
                if 'sc0' in ms:
                    if op.startswith('buffer_'): self.w=R(0)[:1] if 'cmpswap' in op else R(0)
                    else:
                        self.w=R(0); self.r=[]
                        for i in range(1,len(toks)): self.r+=R(i)
            else:
                for i in range(len(toks)): self.r+=R(i)
                if 'x4' in op or 'x3' in op:
                    self.wide = R(0) if op.startswith('buffer_') else R(1)
        elif op.startswith('s_'):
            self.kind='salu'
            if op.startswith('s_load') or op.startswith('s_buffer_load') or op in ('s_memtime','s_memrealtime') or op.startswith('s_atomic'):
                self.kind='smem'; self.lgkm='smem'; self.w=R(0)
                for i in range(1,len(toks)): self.r+=R(i)
            elif op.startswith('s_cbranch') or op=='s_branch':
                self.kind='branch'; self.tgt=toks[0]
                if 'vcc' in op: self.r=regs_of('vcc')
            elif op in ('s_waitcnt','s_nop','s_barrier','s_endpgm','s_sleep','s_setprio','s_sethalt'):
                self.kind=op
            elif op.startswith('s_cmp') or op.startswith('s_bitcmp'):
                for i in range(len(toks)): self.r+=R(i)
            elif 'saveexec' in op:
                self.w=R(0)+regs_of('exec'); self.r=R(1)+regs_of('exec')
            else:
                self.w=R(0)
                for i in range(1,len(toks)): self.r+=R(i)
                if op in ('s_addk_i32','s_mulk_i32','s_cmov_b32','s_cmov_b64','s_bitset1_b32','s_bitset0_b32'): self.r+=R(0)
        else:
            raise Exception('unknown op: '+text)
    def states(self):
        if self.op=='s_nop': return int(self.ops[0],0)+1
        return 1

class Label:
    def __init__(self,name): self.name=name
class Raw:
    def __init__(self,text): self.text=text

CAP=24
class State:
    def __init__(self):
        self.h={}
        self.vm={}
        self.lg={}
        self.smem=False
    def copy(self):
        s=State(); s.h=dict(self.h); s.vm=dict(self.vm); s.lg=dict(self.lg); s.smem=self.smem; return s
    def merge(self,o):
        ch=False
        for a,b in ((self.h,o.h),(self.vm,o.vm),(self.lg,o.lg)):
            for k,v in b.items():
                if k not in a or v<a[k]: a[k]=v; ch=True
        if o.smem and not self.smem: self.smem=True; ch=True
        return ch

def isv(r): return r[0] in 'va'

def need_nops(ins, st):
    need=0
    h=st.h
    def req(cls, regs, n):
        nonlocal need
        for r in regs:
            d=h.get((cls,r))
            if d is not None and n-d>need: need=n-d
    k=ins.kind
    vr=[r for r in ins.r if isv(r)]; vw=[r for r in ins.w if isv(r)]
    sr=[r for r in ins.r if r[0]=='s']
    if k=='mfma':
        req('valu_w', vr, 2)
        for p,n in ((4,8),(8,12)):
            req(('xdl',p), ins.srcAB, n)
        C=tuple(ins.srcC)
        for p,n in ((4,6),(8,10)):
            for r in ins.srcC:
                d=h.get((('xdl',p),r))
                if d is not None:
                    same = h.get((('xdlD',p,C),r))
                    if same is not None and same<=d and p==ins.passes: continue
                    if n-d>need: need=n-d
            for r in ins.w:
                if r in ins.srcC: continue
                d=h.get((('xdl',p),r))
                if d is not None and n-d>need: need=n-d
    elif k=='valu':
        for p,n in ((4,8),(8,12)): req(('xdl',p), vr+vw, n)
        for p,n in ((4,3),(8,7)): req(('xdlC',p), vw, n)
        base=re.sub(r'_(e32|e64|dpp|sdwa)$','',ins.op)
        if base.startswith('v_permlane') or ins.isdpp: req('valu_w', vr, 2)
        if base in ('v_readlane_b32','v_readfirstlane_b32'): req('valu_w', vr, 1)
        if base in ('v_readlane_b32','v_writelane_b32'): req('valu_s', sr, 4)
        if base not in TRANS: req('trans', vr, 1)
        req('valu_s', sr, 2)
        req('wide', vw, 2)
    elif k in ('vmem','ds'):
        for p,n in ((4,8),(8,12)): req(('xdl',p), vr+vw, n)
        if k=='vmem': req('valu_s', sr, 5)
        if ins.lds_dma: req('salu_m0', [('s','m0')], 1)
        req('wide', vw, 1)
        req('trans', vr, 1)
    elif k in ('salu','branch','smem'):
        req('valu_s', sr, 1 if k!='branch' else 0)
    return need

def need_waits(ins, st):
    touched = ins.r+ins.w
    vm=None; lg=None
    for r in touched:
        if r in st.vm:
            if ins.kind=='vmem' and r in ins.w and r not in ins.r: continue
            vm = st.vm[r] if vm is None else min(vm, st.vm[r])
        if r in st.lg:
            if ins.kind=='ds' and r in ins.w and r not in ins.r and not st.smem: continue
            n = 0 if st.smem else st.lg[r]
            lg = n if lg is None else min(lg,n)
    if ins.nowait: vm=None
    if vm is not None: vm=min(vm,63)
    if lg is not None: lg=min(lg,15)
    return vm,lg

def apply_wait(st, vm, lg):
    if vm is not None:
        st.vm={r:n for r,n in st.vm.items() if n<vm}
    if lg is not None:
        if lg==0: st.lg={}; st.smem=False
        elif not st.smem: st.lg={r:n for r,n in st.lg.items() if n<lg}

def advance(st, n):
    st.h={k:v+n for k,v in st.h.items() if v+n<CAP}

def step(ins, st):
    if ins.op=='s_waitcnt':
        t=ins.text.split(';')[0]
        m=re.search(r'vmcnt\((\d+)\)',t); vm=int(m.group(1)) if m else None
        m=re.search(r'lgkmcnt\((\d+)\)',t); lg=int(m.group(1)) if m else None
        apply_wait(st,vm,lg)
    advance(st, ins.states())
    h=st.h
    if ins.kind=='valu':
        base=re.sub(r'_(e32|e64|dpp|sdwa)$','',ins.op)
        for r in ins.w:
            if isv(r):
                h[('valu_w',r)]=0
                if base in TRANS: h[('trans',r)]=0
            else: h[('valu_s',r)]=0
    elif ins.kind=='mfma':
        D=tuple(ins.w)
        for r in ins.w:
            h[(('xdl',ins.passes),r)]=0; h[(('xdlD',ins.passes,D),r)]=0
        for r in ins.srcC: h[(('xdlC',ins.passes),r)]=0
    elif ins.kind=='salu':
        if ('s','m0') in ins.w: h[('salu_m0',('s','m0'))]=0
    if ins.wide:
        for r in ins.wide: h[('wide',r)]=0
    if ins.vm:
        for r in st.vm: st.vm[r]+=1
        for r in ins.w: st.vm[r]=0
    if ins.lgkm:
        for r in st.lg: st.lg[r]+=1
        for r in ins.w: st.lg[r]=0
        if ins.lgkm=='smem': st.smem=True

class Asm:
    def __init__(self):
        self.items=[]; self.nl=0
    def __call__(self, text):
        for line in text.split('\n'):
            s=line.strip()
            if not s or s.startswith(';'): continue
            if s.endswith(':'): self.items.append(Label(s[:-1]))
            elif s.startswith('.'): self.items.append(Raw(s))
            else: self.items.append(Ins(s))
    def label(self, base='L'):
        self.nl+=1; return f'{base}_{self.nl}'
    def finalize(self):
        items=self.items
        starts=[0]
        for i,it in enumerate(items):
            if isinstance(it,Label): starts.append(i)
            elif isinstance(it,Ins) and (it.kind=='branch' or it.op=='s_endpgm'): starts.append(i+1)
        starts=sorted(set(s for s in starts if s<len(items)))
        blocks=[(s, starts[j+1] if j+1<len(starts) else len(items)) for j,s in enumerate(starts)]
        lab={}
        for j,(s,e) in enumerate(blocks):
            k=s
            while k<e and not isinstance(items[k],Ins):
                if isinstance(items[k],Label): lab[items[k].name]=j
                k+=1
        succ=[]
        for j,(s,e) in enumerate(blocks):
            last=None
            for k in range(e-1,s-1,-1):
                if isinstance(items[k],Ins): last=items[k]; break
            sc=[]
            if last is not None and last.kind=='branch':
                if last.tgt not in lab: raise Exception('unknown label '+last.tgt)
                sc.append(lab[last.tgt])
                if last.op!='s_branch' and j+1<len(blocks): sc.append(j+1)
            elif last is not None and last.op=='s_endpgm': pass
            elif j+1<len(blocks): sc.append(j+1)
            succ.append(sc)
        pre={}
        for outer in range(50):
            changed_pre=False
            inn=[None]*len(blocks); inn[0]=State()
            work=[0]
            while work:
                j=work.pop()
                st=inn[j].copy()
                s,e=blocks[j]
                for k in range(s,e):
                    it=items[k]
                    if not isinstance(it,Ins): continue
                    p=pre.setdefault(k,[0,None,None])
                    vm,lg=need_waits(it,st)
                    if vm is not None and (p[1] is None or vm<p[1]): p[1]=vm; changed_pre=True
                    if lg is not None and (p[2] is None or lg<p[2]): p[2]=lg; changed_pre=True
                    if p[1] is not None or p[2] is not None:
                        apply_wait(st,p[1],p[2]); advance(st,1)
                    n=need_nops(it,st)
                    if n>p[0]: p[0]=n; changed_pre=True
                    if p[0]: advance(st,p[0])
                    step(it,st)
                for t in succ[j]:
                    if inn[t] is None: inn[t]=st.copy(); work.append(t)
                    elif inn[t].merge(st): work.append(t)
            if not changed_pre: break
        out=[]; self.stats={'nops':0,'waits':0,'ins':0}
        for k,it in enumerate(items):
            if isinstance(it,Label): out.append(it.name+':')
            elif isinstance(it,Raw): out.append(it.text)
            else:
                p=pre.get(k,[0,None,None])
                if p[1] is not None or p[2] is not None:
                    w='s_waitcnt'
                    if p[1] is not None: w+=f' vmcnt({p[1]})'
                    if p[2] is not None: w+=f' lgkmcnt({p[2]})'
                    out.append('  '+w); self.stats['waits']+=1
                n=p[0]
                while n>0:
                    c=min(n,16); out.append(f'  s_nop {c-1}'); n-=c; self.stats['nops']+=1
                out.append('  '+it.text); self.stats['ins']+=1
        return '\n'.join(out)

def vr(b,n=1,f='v'):
    return f'{f}{b}' if n==1 else f'{f}[{b}:{b+n-1}]'
```

```python
from asmgen import *
from common import *
import math, struct

L_M  = 0
L_O  = 8192
L_QK = 10240
L_MX = L_QK+4096
L_C  = L_MX+1024
L_W  = L_C+64
WREG = 36864
assert L_W+4*WREG<=163840

vL16,vIdx,vS16,vS16b,vWl,vYw,vOw,vOr,vMw,vH1st,vH1s1,vH2st,vKx,vMl_,vSel,vCon = range(16)
KX = 16
VX = 24
T = lambda i: 32+i
sH,sW,sStep,sU = 12,13,14,15
sTag,sH1ld,sKVc = 16,17,18
sH2c,sH2n,sH2p = 19,20,21
sKn,sKMo,sVMo = 24,25,26
sScale = 27
sMask = 28
sT0,sT1,sT2,sT3 = 36,37,38,39
sPoll = 40
sH2ld = 41
sFlagM = 42
sFlagKV = 43
sKVok = 44
sH2pz = 45
sHi = 46
sW3k = 48
s32k = 49
sMode = 50
sW256 = 52
sStep1 = 53
sPrb = 54
sFlg = 55
sLate = 22
sFlagMw = 51
sTr = 56
sSt = 80
POLLMAX=200000

TORD=[0,2,4,6,8,1,3,5,7]
QKPOS=[0,2,4,8,12,16,20,24,28,32]
QKBUF=[0,1,2,0,1,0,1,0,1,0]
def operand_map():
    qk_order=[]
    for t in TORD:
        qk_order += [('q',t,0),('q',t,1),('k',t,0),('k',t,1)]
    lds_qk = [qk_order[n] for n in QKPOS]
    lds_o = [('o',0,2),('o',0,3),('o',2,0),('o',3,0),('o',3,1),('o',1,2),('o',1,3),('o',3,3)]
    m={}
    li=0
    for op in lds_o+lds_qk:
        m[op]=('l',li); li+=1
    rest=[op for op in qk_order if op not in m]
    rest+=[('v',t,c) for t in range(9) for c in range(2)]
    rest+=[('o',k,P) for k in range(4) for P in range(4) if ('o',k,P) not in m]
    rest+=[('s',0),('s',1)]
    regs=[('v',80+8*i) for i in range(22)]+[('a',8*i) for i in range(32)]
    assert len(rest)==len(regs)==54
    for op,r in zip(rest,regs): m[op]=r
    return m, qk_order, lds_qk, lds_o

def R(loc,off=0,n=8):
    return vr(loc[1]+off,n,loc[0])
def q4(b): return f'v[{b}:{b+3}]'

def emit_chain_init(A, m):
    l,n,g,n7,n8,g1,g2,r4,cc=['v%d'%i for i in range(32,41)]
    t0,t1,t2='v41','v42','v43'
    A(f"""
s_load_dwordx2 s[4:5], s[0:1], {KA['ws']}
s_load_dwordx2 s[56:57], s[0:1], {KA['B_Wq']}
s_load_dwordx2 s[58:59], s[0:1], {KA['B_Wk']}
s_load_dwordx2 s[60:61], s[0:1], {KA['B_Wv']}
s_load_dwordx2 s[62:63], s[0:1], {KA['B_Wo']}
s_load_dwordx2 s[64:65], s[0:1], {KA['B_mem0']}
s_load_dwordx2 s[66:67], s[0:1], {KA['dbg']}
v_and_b32 {l}, 63, v0
v_and_b32 {n}, 15, {l}
v_lshrrev_b32 {g}, 4, {l}
v_lshlrev_b32 v{vL16}, 4, {l}
v_and_b32 {n7}, 7, {n}
v_lshrrev_b32 {n8}, 3, {n}
v_and_b32 {g1}, 1, {g}
v_lshrrev_b32 {g2}, 1, {g}
v_lshrrev_b32 {r4}, 2, {n}
v_and_b32 {cc}, 3, {n}
v_mov_b32 {t0}, 0x4444
v_mov_b32 {t1}, 0xeeee
v_cmp_eq_u32 s[{sHi}:{sHi+1}], 1, {n8}
v_cndmask_b32 v{vIdx}, {t0}, {t1}, s[{sHi}:{sHi+1}]
s_mul_i32 s{sT0}, s{sW}, {WREG}
s_add_u32 s{sT0}, s{sT0}, {L_W}
v_add_u32 v{vWl}, s{sT0}, v{vL16}
s_lshl_b32 s{sT1}, s{sW}, 10
v_add_u32 v{vYw}, s{sT1}, v{vL16}
v_lshlrev_b32 {t0}, 7, {g}
v_lshl_add_u32 {t0}, {n7}, 4, {t0}
v_and_b32 v{vOr}, 255, {t0}
s_lshl_b32 s{sT1}, s{sW}, 9
v_add_u32 v{vOw}, s{sT1}, {t0}
s_lshl_b32 s{sW256}, s{sW}, 8
s_lshl_b32 s{sW3k}, s{sW}, 10
s_cmp_eq_u32 s{sW}, 2
s_cselect_b32 s{sW3k}, 6144, s{sW3k}
s_cmp_eq_u32 s{sW}, 3
s_cselect_b32 s{sW3k}, 5120, s{sW3k}
v_add_u32 v{vMw}, s{sW3k}, v{vL16}
; vH1st = (16w + l/8)*4096 + h*128 + (l%8)*16
v_lshrrev_b32 {t0}, 3, {l}
v_lshlrev_b32 {t0}, 12, {t0}
v_lshl_add_u32 {t0}, {n7}, 4, {t0}
s_lshl_b32 s{sT1}, s{sW}, 16
s_lshl_b32 s{sT2}, s{sH}, 7
s_add_u32 s{sT1}, s{sT1}, s{sT2}
v_add_u32 v{vH1st}, s{sT1}, {t0}
; vH1s1 = (64 + 2w + n8)*4096 + h*128 + n7*16 + g1*8
v_lshlrev_b32 {t0}, 12, {n8}
v_lshl_add_u32 {t0}, {n7}, 4, {t0}
v_lshl_add_u32 {t0}, {g1}, 3, {t0}
s_lshl_b32 s{sT1}, s{sW}, 13
s_add_u32 s{sT1}, s{sT1}, s{sT2}
s_add_u32 s{sT1}, s{sT1}, {64*4096}
v_add_u32 v{vH1s1}, s{sT1}, {t0}
s_lshr_b32 s{sU}, s{sH}, 3
s_lshl_b32 s{sU}, s{sU}, 4
s_and_b32 s{sT1}, s{sH}, 7
s_add_u32 s{sU}, s{sU}, s{sT1}
s_lshl_b32 s{sT1}, s{sW}, 3
s_add_u32 s{sU}, s{sU}, s{sT1}
s_add_u32 s{sT1}, s{sH}, 64
s_cmp_eq_u32 s{sW}, 2
s_cselect_b32 s{sU}, s{sT1}, s{sU}
s_cmp_eq_u32 s{sW}, 3
s_cselect_b32 s{sU}, 72, s{sU}
v_lshlrev_b32 {t0}, 4, {n7}
v_lshl_add_u32 {t0}, {g1}, 3, {t0}
v_lshl_add_u32 {t0}, {g2}, 2, {t0}
s_lshl_b32 s{sT1}, s{sU}, 7
v_add_u32 v{vH2st}, s{sT1}, {t0}
s_lshl_b32 s{sT1}, s{sW}, 11
v_lshlrev_b32 {t0}, 9, {g}
v_add_u32 {t0}, s{sT1}, {t0}
v_lshl_add_u32 {t1}, {n}, 4, {t0}
v_mov_b32 v{vKx}, {t1}
v_add_u32 v{vMl_}, s{sT1}, v{vL16}
v_mov_b32 {t0}, 0x3f80
v_mov_b32 {t1}, 0x3f800000
v_and_b32 {t2}, 1, {n}
v_cmp_eq_u32 vcc, 0, {t2}
v_cndmask_b32 v{vSel}, {t1}, {t0}, vcc
v_lshrrev_b32 {t2}, 1, {n7}
v_cmp_eq_u32 s[{sMask}:{sMask+1}], 0, {t2}
v_cmp_eq_u32 s[{sMask+2}:{sMask+3}], 1, {t2}
v_cmp_eq_u32 s[{sMask+4}:{sMask+5}], 2, {t2}
v_cmp_eq_u32 s[{sMask+6}:{sMask+7}], 3, {t2}
v_mov_b32 v{vCon}, {L_C}
v_lshlrev_b32 {t0}, 1, {g1}
v_cmp_eq_u32 vcc, {t0}, {t2}
v_cndmask_b32 v{vS16}, 0, v{vSel}, vcc
v_add_u32 {t0}, 1, {t0}
v_cmp_eq_u32 vcc, {t0}, {t2}
v_cndmask_b32 v{vS16b}, 0, v{vSel}, vcc
; init-only address regs: v16 dma voffset qkv ; v17..v19 tr bases ; v20,v21 mem0 ; v71..v79 Wo dma voffsets
v_lshrrev_b32 {t0}, 2, {l}
v_lshlrev_b32 {t0}, 13, {t0}
v_and_b32 {t1}, 3, {l}
v_lshl_add_u32 {t0}, {t1}, 4, {t0}
s_lshl_b32 s{sT1}, s{sH}, 8
s_lshl_b32 s{sT2}, s{sW}, 6
s_add_u32 s{sT1}, s{sT1}, s{sT2}
v_add_u32 v16, s{sT1}, {t0}
v_lshrrev_b32 {t1}, 1, {r4}
v_and_b32 {t2}, 1, {r4}
v_lshlrev_b32 {t0}, 4, {g2}
v_lshl_add_u32 {t0}, {g1}, 2, {t0}
v_lshl_add_u32 {t0}, {t1}, 3, {t0}
v_add_u32 {t0}, {t0}, {t2}
v_lshlrev_b32 {t0}, 6, {t0}
v_lshl_add_u32 {t0}, {cc}, 3, {t0}
v_add_u32 v17, s{sT0}, {t0}
v_lshlrev_b32 {t0}, 4, {g1}
v_lshl_add_u32 {t0}, {g2}, 2, {t0}
v_add_u32 {t0}, {t0}, {t2}
v_mul_u32_u24 {t0}, 288, {t0}
v_lshl_add_u32 {t0}, {t1}, 6, {t0}
v_lshl_add_u32 {t0}, {cc}, 3, {t0}
v_add_u32 v18, s{sT0}, {t0}
v_lshl_add_u32 {t0}, {g}, 2, {r4}
v_mul_u32_u24 {t0}, 288, {t0}
v_lshl_add_u32 {t0}, {cc}, 3, {t0}
v_add_u32 {t0}, 256, {t0}
v_add_u32 v19, s{sT0}, {t0}
""")
    for ii in range(9):
        A(f"""
v_add_u32 {t0}, {64*ii}, {l}
v_mul_u32_u24 {t1}, 3641, {t0}
v_lshrrev_b32 {t1}, 16, {t1}
v_mul_u32_u24 {t2}, 18, {t1}
v_sub_u32 {t2}, {t0}, {t2}
v_mul_u32_u24 {t1}, 1152, {t1}
v_lshl_add_u32 v{71+ii}, {t2}, 4, {t1}""")
    A(f"""
v_mul_u32_u24 {t0}, 1152, {n7}
v_lshl_add_u32 {t0}, {n8}, 4, {t0}
v_lshl_add_u32 v20, {g}, 5, {t0}
v_mul_u32_u24 {t1}, 288, {g}
v_add_u32 v21, {t0}, {t1}
s_waitcnt lgkmcnt(0)
s_mov_b32 s6, {WS_BYTES}
s_mov_b32 s7, 0x20000
s_mov_b32 s10, {576*8192}
s_mov_b32 s11, 0x20000
s_mov_b32 s68, s{sT0}
s_lshl_b32 s{sH1ld}, s{sU}, 12
s_cmp_lt_u32 s{sU}, 72
s_cselect_b32 s{sH1ld}, s{sH1ld}, {WS_BYTES}
s_cselect_b32 s{sH2pz}, 0, {WS_BYTES}
v_mov_b32 v44, 0
v_mov_b32 v45, 0
v_mov_b32 v46, 0
v_mov_b32 v47, 0
v_mov_b32 v48, 0x3f803f80
v_mov_b32 v49, 0x3f803f80
v_mov_b32 v50, 0x3f803f80
v_mov_b32 v51, 0x3f803f80
v_mov_b32 v52, 0x3f003f00
v_mov_b32 v53, 0x3f003f00
v_mov_b32 v54, -1
""")
    for j in range(4):
        A(f'buffer_store_dwordx4 v[44:47], v{vL16}, s[4:7], s{sH1ld} offen offset:{1024*j} sc1')
    for j in range(3):
        A(f's_add_u32 s{sT1}, s{sH2pz}, {WS_H2+j*H2SZ}')
        A(f'buffer_store_dword v54, v{vH2st}, s[4:7], s{sT1} offen sc1')
    A(f'v_and_b32 v55, 3, {l}\nv_lshlrev_b32 v55, 8, v55\ns_lshl_b32 s{sT1}, s{sH}, 2\ns_add_u32 s{sT1}, s{sT1}, {WS_F1}')
    A(f'buffer_store_dword v44, v55, s[4:7], s{sT1} offen sc1')
    A(f'buffer_store_dword v44, v55, s[4:7], s{sT1} offen offset:256 sc1')
    lab=A.label('CI')
    A(f"""
ds_write_b128 v{vCon}, v[44:47]
ds_write_b128 v{vCon}, v[48:51] offset:16
ds_write_b64 v{vCon}, v[52:53] offset:32
s_waitcnt vmcnt(0)
s_barrier
s_cmp_lg_u32 s{sW}, 0
s_cbranch_scc1 {lab}
s_mov_b64 exec, 1
v_mov_b32 v45, 1
global_atomic_add v44, v45, s[66:67] offset:{D_CBAR}
s_mov_b64 exec, -1
{lab}:
""")
    chunks=[]
    def qkv_chunk(mat,t):
        return dict(kind='w',mat=mat,t=t,size=4096,n=4)
    for t in range(9): chunks.append(qkv_chunk('v',t))
    for k in range(4): chunks.append(dict(kind='o',k=k,size=9216,n=9))
    for t in range(9):
        chunks.append(qkv_chunk('q',t)); chunks.append(qkv_chunk('k',t))
    ptr={'q':56,'k':58,'v':60,'o':62}
    cur_srd=[None]
    def set_srd(mat):
        if cur_srd[0]!=mat:
            A(f's_mov_b32 s8, s{ptr[mat]}\ns_mov_b32 s9, s{ptr[mat]+1}')
            cur_srd[0]=mat
    def issue(c):
        if c['kind']=='w':
            set_srd(c['mat']); t=c['t']
            for ii in range(4):
                d = (144*(t//2)+64*(t%2)+16*ii) if t<8 else (144*ii+128)
                A(f's_add_u32 m0, s68, {c["addr"]+1024*ii}')
                A(f's_mov_b32 s{sT1}, {d*8192}')
                A(f'buffer_load_dwordx4 v16, s[8:11], s{sT1} offen lds')
        else:
            set_srd('o'); k=c['k']
            A(f's_xor_b32 s{sT1}, s{sW}, {k}\ns_lshl_b32 s{sT1}, s{sT1}, 5\ns_lshl_b32 s{sT2}, s{sH}, 7\ns_add_u32 s{sT1}, s{sT1}, s{sT2}\ns_mul_i32 s{sT1}, s{sT1}, 1152\ns_mul_i32 s{sT2}, s{sW}, 288\ns_add_u32 s{sT1}, s{sT1}, s{sT2}')
            for ii in range(9):
                A(f's_add_u32 m0, s68, {c["addr"]+1024*ii}')
                A(f'buffer_load_dwordx4 v{71+ii}, s[8:11], s{sT1} offen lds')
    def ops_of(c):
        if c['kind']=='w': return [(c['mat'],c['t'],0),(c['mat'],c['t'],1)]
        return [('o',c['k'],P) for P in range(4)]+[('sx',c['k'])]
    def tr_reads(c,op,loc):
        f,b=loc
        if c['kind']=='w':
            for jh in range(2):
                for jl in (0,2):
                    off=c['addr']+(32*jh+jl)*64+op[2]*32
                    A(f'ds_read_b64_tr_b16 {vr(b+4*jh+jl,2,f)}, v17 offset:{off}')
        elif op[0]=='o':
            P=op[2]; PP,q=P//2,P%2
            for jh in range(2):
                for jl in (0,2):
                    off=c['addr']+(8*jh+jl)*288+(64*PP+16*q)*2
                    A(f'ds_read_b64_tr_b16 {vr(b+4*jh+jl,2,f)}, v18 offset:{off}')
        else:
            for a in range(2):
                A(f'ds_read_b64_tr_b16 {vr(b+2*a,2,f)}, v19 offset:{c["addr"]+16*a*288}')
    NPARK=4
    final_top=0
    live=[]
    nissued=0; total_dma=0
    park=[]
    freepark=[32+8*i for i in range(4)]
    def alloc(size):
        floor=floor_bytes()
        cand=WREG-size
        while cand>=floor:
            ov=[c for c in live if not (c['addr']+c['size']<=cand or c['addr']>=cand+size)]
            if not ov: return cand
            cand=min(c['addr'] for c in ov)-size
        return None
    nl_total=sum(1 for v in m.values() if v[0]=='l')
    state={'reserved':0}
    def floor_bytes(): return state['reserved']
    lds_seq=[]
    for c in chunks:
        for op in ops_of(c):
            if op in m and m[op][0]=='l': lds_seq.append(op)
    assert len(lds_seq)==nl_total
    for i,op in enumerate(lds_seq): m[op]=('l',i)
    nimm=nl_total-6
    def reserve_for(ci):
        cnt=0
        for c in chunks[:ci+1]:
            for op in ops_of(c):
                if op in m and m[op][0]=='l' and m[op][1]<nimm: cnt=m[op][1]+1
        return cnt*2048
    pending_reads=False
    for ci,c in enumerate(chunks):
        while nissued<len(chunks):
            nc=chunks[nissued]
            state['reserved']=reserve_for(nissued)
            outstanding=sum(x['n'] for x in live)
            if outstanding+nc['n']>60: break
            a=alloc(nc['size'])
            if a is None: break
            nc['addr']=a
            if pending_reads:
                A('s_waitcnt lgkmcnt(0)'); pending_reads=False
            issue(nc); live.append(nc); nissued+=1
        assert c in live
        younger=sum(x['n'] for x in live if x is not c)
        A(f's_waitcnt vmcnt({younger})')
        if c['kind']=='w' and c['mat']=='q' and c['t']==0:
            freepark += [64,72]
        for op in ops_of(c):
            if op[0]=='sx':
                k=op[1]; loc=m[('s',k//2)]; tr_reads(c,op,(loc[0],loc[1]+4*(k%2)))
            elif m[op][0]!='l':
                tr_reads(c,op,m[op])
            else:
                pb=freepark.pop(0)
                tr_reads(c,op,('v',pb))
                if m[op][1]<nimm:
                    A(f'ds_write_b128 v{vWl}, v[{pb}:{pb+3}] offset:{m[op][1]*2048}')
                    A(f'ds_write_b128 v{vWl}, v[{pb+4}:{pb+7}] offset:{m[op][1]*2048+1024}')
                    freepark.append(pb)
                else: park.append((op,pb))
        pending_reads=True
        live.remove(c)
    A('s_waitcnt lgkmcnt(0)')
    for op,pb in park:
        A(f'ds_write_b128 v{vWl}, v[{pb}:{pb+3}] offset:{m[op][1]*2048}')
        A(f'ds_write_b128 v{vWl}, v[{pb+4}:{pb+7}] offset:{m[op][1]*2048+1024}')
    A(f's_mov_b32 s8, s64\ns_mov_b32 s9, s65\ns_mov_b32 s10, 9216')
    for j in range(3):
        A(f"""
s_mul_i32 s{sT1}, s{sW}, 3
s_add_u32 s{sT1}, s{sT1}, {j}
s_lshr_b32 s{sT2}, s{sT1}, 1
s_mul_i32 s{sT2}, s{sT2}, 288
s_and_b32 s{sT3}, s{sT1}, 1
s_lshl_b32 s{sT3}, s{sT3}, 7
s_add_u32 s{sT2}, s{sT2}, s{sT3}
""")
        if j==2:
            A(f"""
s_cmp_eq_u32 s{sT1}, 8
s_cselect_b32 s{sT2}, 256, s{sT2}
s_cselect_b64 vcc, -1, 0
v_cndmask_b32 v20, v20, v21, vcc
""")
        A(f'buffer_load_dwordx4 v[{T(16)+4*j}:{T(19)+4*j}], v20, s[8:11], s{sT2} offen')
    c = math.log2(math.e)/math.sqrt(128.0)
    cb = struct.unpack('<I',struct.pack('<f',c))[0]
    A(f"""
s_mov_b32 s{sScale}, {cb:#x}
s_mov_b32 s{sStep}, 0
s_mov_b32 s{sTag}, 1
s_mov_b32 s{s32k}, 32768
s_lshl_b32 s{sLate}, s{sW}, 11
s_add_u32 s{sLate}, s{sLate}, 1024
s_mov_b32 s{sH2c}, {WS_H2}
s_mov_b32 s{sH2n}, {WS_H2+H2SZ}
s_mov_b32 s{sH2p}, {WS_H2+2*H2SZ}
s_lshl_b32 s{sT1}, s{sH}, 14
s_add_u32 s{sKVc}, s{sT1}, {WS_KV}
s_add_u32 s{sKn}, s{sKVc}, {32*16384}
s_lshl_b32 s{sT1}, s{sH}, 11
s_add_u32 s{sKMo}, s{sT1}, {WS_KM}
s_lshl_b32 s{sT1}, s{sH}, 12
s_add_u32 s{sVMo}, s{sT1}, {WS_VM}
s_lshl_b32 s{sT1}, s{sW}, 10
s_add_u32 s{sVMo}, s{sVMo}, s{sT1}
s_lshl_b32 s{sT1}, s{sH}, 7
s_add_u32 s{sFlagM}, s{sT1}, {F_M}
s_lshl_b32 s{sT1}, s{sH}, 9
s_add_u32 s{sFlagKV}, s{sT1}, {F_KV}
s_mov_b32 s{sKVok}, 0
s_sub_u32 s{sFlagMw}, s{sFlagM}, {L_C}
s_mov_b32 s{sT1}, {WS_BYTES}
s_cmp_eq_u32 s{sW}, 3
s_cselect_b32 s{sFlagMw}, s{sFlagMw}, s{sT1}
s_add_u32 s{sPrb}, s{sH}, s{sW}
s_and_b32 s{sPrb}, s{sPrb}, 3
s_lshl_b32 s{sPrb}, s{sPrb}, 8
s_add_u32 s{sPrb}, s{sPrb}, {WS_F1}
s_lshl_b32 s{sFlg}, s{sH}, 2
s_add_u32 s{sFlg}, s{sFlg}, {WS_F1}
s_cmp_eq_u32 s{sW}, 3
s_cselect_b32 s{sPrb}, s{sPrb}, s{sT1}
s_cmp_eq_u32 s{sW}, 1
s_cselect_b32 s{sFlg}, s{sFlg}, s{sT1}
""")

def emit_wait_kv(A, need_sreg, fail, tmp):
    lp=A.label('KVW'); ok=A.label('KVOK')
    A(f"""
s_cmp_ge_u32 s{sKVok}, s{need_sreg}
s_cbranch_scc1 {ok}
s_mov_b32 s{sPoll}, 0
{lp}:
v_mov_b32 v{tmp}, 0
buffer_load_dword v{tmp+1}, v{tmp}, s[4:7], s{sFlagKV} offen offset:256 sc1
buffer_load_dword v{tmp}, v{tmp}, s[4:7], s{sFlagKV} offen sc1
s_add_u32 s{sPoll}, s{sPoll}, 1
s_cmp_gt_u32 s{sPoll}, {POLLMAX}
s_cbranch_scc1 {fail}
v_min_u32 v{tmp}, v{tmp}, v{tmp+1}
v_readfirstlane_b32 s{sKVok}, v{tmp}
s_cmp_lt_u32 s{sKVok}, s{need_sreg}
s_cbranch_scc1 {lp}
{ok}:
""")

def emit_chain_loop(A, m, qk_order, lds_qk, lds_o, st, tag, fail, done, D1=0, D2=2, stamps=(), X=()):
    def stamp(i):
        if ('tr',i) in X:
            k=[x for x in X if isinstance(x,tuple)].index(('tr',i))
            sk=A.label('TR')
            A(f's_cmp_gt_u32 s{sStep}, {31 if i in (8,7,13) or (i==0 and k>0) else 30}\ns_cbranch_scc1 {sk}\ns_memtime s[{sTr+2*k}:{sTr+2*k+1}]\n{sk}:')
        if i in stamps:
            k=stamps.index(i)
            A(f's_memtime s[{sSt+2}:{sSt+3}]\ns_waitcnt lgkmcnt(0)')
            if k==0: A(f's_mov_b32 s{sSt}, s{sSt+2}')
            else: A(f's_sub_u32 s{sSt+3}, s{sSt+2}, s{sSt}\ns_add_u32 s{sSt+4+k}, s{sSt+4+k}, s{sSt+3}')
    def delay(n):
        while n>0:
            c=min(n,16); A(f's_nop {c-1}'); n-=c
    Dl=dict(a1=0,a2=60,al=40,b1=36,b2=60,n2=145,d1=181,nl=8,a2w=6,fl=2,vl=17,pr=(6,9,12,14),sp=6); Dl.update(D1 if isinstance(D1,dict) else {})
    SM='v_smfmac_f32_16x16x64_bf16'
    M32='v_mfma_f32_16x16x32_bf16'; M16='v_mfma_f32_16x16x16_bf16'
    accq=[T(0),T(4)]; acck=[T(8),T(12)]; ring=[T(16),T(20),T(24)]; stg=[T(28),T(36),VX]
    def ldsop(op,buf):
        A(f'ds_read_b128 {q4(buf)}, v{vWl} offset:{m[op][1]*2048}')
        A(f'ds_read_b128 {q4(buf+4)}, v{vWl} offset:{m[op][1]*2048+1024}')
    def zero(b): A(f'ds_read_b128 {q4(b)}, v{vCon}')
    Q=[]
    def qop(op,buf):
        Q.append(f'ds_read_b128 {q4(buf)}, v{vWl} offset:{m[op][1]*2048}')
        Q.append(f'ds_read_b128 {q4(buf+4)}, v{vWl} offset:{m[op][1]*2048+1024}')
    def pop(k=1):
        for _ in range(k):
            if Q: A(Q.pop(0))
    top=f'CSTEP_{tag}'; p2=f'CP2_{tag}'; barA=f'CBA_{tag}'
    late=T(44); vMl=vMl_; lateL=A.label('LATE')
    A(f'{top}_prep:')
    for i in range(16): A(f'v_mov_b32 v{T(i)}, 0')
    for j in range(3): ldsop(lds_qk[j],stg[j])
    pw=A.label('PW')
    A(f's_cmp_eq_u32 s{sW}, 3\ns_cbranch_scc1 {pw}')
    A(f's_mul_i32 s{sT1}, s{sW}, 3072\nv_add_u32 v{T(45)}, s{sT1}, v{vL16}')
    for j in range(3): A(f'ds_write_b128 v{T(45)}, {q4(T(16)+4*j)} offset:{L_M+1024*j}')
    A(f'{pw}:')
    A('s_waitcnt lgkmcnt(0)\ns_barrier')
    A(f'ds_read_b128 {q4(late)}, v{vMl} offset:{L_M+1024}')
    A('.p2align 6')
    A(f'{barA}:')
    A('s_waitcnt lgkmcnt(0)\ns_barrier')
    stamp(0)
    def mtxt(pos): return f'ds_read_b128 {q4(ring[pos%3])}, v{vL16} offset:{L_M+1024*(TORD[pos%9])}'
    def mread(pos): A(mtxt(pos))
    mread(0); mread(1); Q.append(mtxt(2))
    accv=[T(44),T(40)]
    li=0
    cold=[]
    NL=Dl['nl']
    for n,op in enumerate(qk_order):
        pos=n//4; acc=(accq if op[0]=='q' else acck)[op[2]]
        if m[op][0]=='l':
            b=stg[QKBUF[li]]; B=f'v[{b}:{b+7}]'
        else: B=R(m[op])
        A(f'{SM} {q4(acc)}, {q4(ring[pos%3])}, {B}, v{vIdx}')
        if m[op][0]=='l':
            nx=[j for j in range(li+1,len(lds_qk)) if QKBUF[j]==QKBUF[li]]
            if nx: qop(lds_qk[nx[0]],b)
            li+=1
        if n==NL:
            ck=late; ok=A.label('LOK')
            A(f'ds_write_b128 v{vMl}, {q4(late)} offset:{L_M+1024}'); wpos=len(A.items)
        if n==NL+1: A(f'v_max3_u32 v{ck}, v{late}, v{late+1}, v{late+2}')
        if n==NL+2: A(f'v_max_u32 v{ck}, v{ck}, v{late+3}')
        if n==NL+3:
            A(f'v_cmp_eq_u32 vcc, -1, v{ck}\ns_cbranch_vccnz {lateL}\n{ok}:')
            def c(ok=ok):
                A(f'{lateL}:')
                A(f'buffer_load_dwordx4 {q4(late)}, v{vL16}, s[4:7], s{sT3} offen sc1')
                A(f's_add_u32 s{sPoll}, s{sPoll}, 1\ns_add_u32 s{sSt+12}, s{sSt+12}, 1\ns_cmp_gt_u32 s{sPoll}, {POLLMAX}\ns_cbranch_scc1 {fail}')
                A(f'ds_write_b128 v{vMl}, {q4(late)} offset:{L_M+1024}')
                A(f's_nop 1\nv_max3_u32 v{ck}, v{late}, v{late+1}, v{late+2}\nv_max_u32 v{ck}, v{ck}, v{late+3}')
                A(f'v_cmp_eq_u32 vcc, -1, v{ck}\ns_cbranch_vccnz {lateL}\ns_waitcnt lgkmcnt(0)\ns_branch {ok}')
            cold.append(c)
        if n%4==3:
            if pos<2: Q.insert(0,mtxt(pos+3))
            elif pos==3:
                A('LGKM_A2\ns_barrier'.replace('LGKM_A2',f's_waitcnt lgkmcnt({sum(1 for it in A.items[wpos:] if isinstance(it,Ins) and it.kind=="ds")})'))
                Q.insert(0,mtxt(5)); Q.insert(1,mtxt(6))
            elif pos>3: Q.insert(0,mtxt(pos+3))
        if n!=NL: pop()
        if n==Dl['vl'] and 'nov' not in X: A(f'buffer_load_dwordx4 {q4(VX)}, v{vKx}, s[4:7], s{sKVc} offen sc1')
        if n==Dl['vl']+2 and 'nov' not in X: A(f'buffer_load_dwordx4 {q4(VX+4)}, v{vKx}, s[4:7], s{sKVc} offen offset:256 sc1')
        if n==18: A(f'v_mov_b32 v{T(44)}, -1')
        if n==19: A(f's_add_u32 s{sT1}, s{sH2p}, s{sH2pz}\nbuffer_store_dword v{T(44)}, v{vH2st}, s[4:7], s{sT1} offen {st}')
        if n==22: A(f'v_mov_b32 v{T(45)}, s{sStep}')
        if n==23 and 'nofm' not in X: A(f'buffer_store_dword v{T(45)}, v{vCon}, s[4:7], s{sFlagMw} offen sc1')
        if 25<=n<29: A(f'v_mov_b32 v{accv[0]+n-25}, 0')
        if 30<=n<34: A(f'v_mov_b32 v{accv[1]+n-30}, 0')
    stamp(1)
    def vstep(p):
        for c in range(2):
            A(f'{SM} {q4(accv[c])}, {q4(ring[p%3])}, {R(m[("v",TORD[p],c)])}, v{vIdx}')
            if c==1 and p+3<9: Q.insert(0,mtxt(p+3))
            pop()
    def cv(d,a): A(f'v_cvt_pk_bf16_f32 v{d}, v{a}, v{a+1}')
    vstep(0)
    for a in accq: cv(a,a); cv(a+1,a+2)
    tq=[T(32),T(36)]; tk=[T(0),T(4)]
    A(f'{M16} {q4(tq[0])}, v[{accq[0]}:{accq[0]+1}], v[{vS16}:{vS16+1}], 0')
    cv(acck[0],acck[0]); cv(acck[0]+1,acck[0]+2)
    A(f'{M16} {q4(tq[1])}, v[{accq[1]}:{accq[1]+1}], v[{vS16}:{vS16+1}], 0')
    cv(acck[1],acck[1]); cv(acck[1]+1,acck[1]+2)
    A(f'{M16} {q4(tk[0])}, v[{acck[0]}:{acck[0]+1}], v[{vS16}:{vS16+1}], 0')
    A(f'{M16} {q4(tk[1])}, v[{acck[1]}:{acck[1]+1}], v[{vS16}:{vS16+1}], 0')
    qf,kf=T(32),T(8)
    A(f'v_add_u32 v{T(28)}, s{sW256}, v{vOr}')
    cv(qf,tq[0]); cv(qf+1,tq[0]+2); cv(qf+2,tq[1]); cv(qf+3,tq[1]+2)
    X0,X1,Mm=T(4),T(12),T(0)
    cv(kf,tk[0]); cv(kf+1,tk[0]+2)
    A(f'{M32} {q4(X1)}, {q4(KX+4)}, {q4(qf)}, 0')
    cv(kf+2,tk[1]); cv(kf+3,tk[1]+2)
    A(f'{M32} {q4(X0)}, {q4(KX)}, {q4(qf)}, 0')
    A(f'{M32} {q4(Mm)}, {q4(kf)}, {q4(qf)}, 0')
    vstep(1)
    if 'nok' not in X: A(f'buffer_load_dwordx4 {q4(KX)}, v{vKx}, s[4:7], s{sKn} offen sc1')
    for r in range(4): A(f'v_cndmask_b32 v{X0+r}, v{X0+r}, v{X1+r}, s[{sHi}:{sHi+1}]')
    A(f'ds_write_b128 v{vYw}, {q4(X0)} offset:{L_QK}')
    if 'nok' not in X: A(f'buffer_load_dwordx4 {q4(KX+4)}, v{vKx}, s[4:7], s{sKn} offen offset:256 sc1')
    A(f'ds_write_b128 v{T(28)}, {q4(Mm)} offset:{L_MX}')
    vstep(2); vstep(3)
    if 'nokm' not in X: A(f'buffer_store_dwordx4 {q4(kf)}, v{vOw}, s[4:7], s{sKMo} offen sc1')
    A('s_waitcnt lgkmcnt(2)\ns_barrier')
    stamp(2)
    Y=[T(0),T(4),T(8),T(12)]; Mp=[T(32),T(36),T(28),T(16)]
    A(f'ds_read_b128 {q4(Y[0])}, v{vL16} offset:{L_QK}')
    for j in range(1,4): Q.append(f'ds_read_b128 {q4(Y[j])}, v{vL16} offset:{L_QK+1024*j}')
    for j in range(3): Q.append(f'ds_read_b128 {q4(Mp[j])}, v{vOr} offset:{L_MX+256*j}')
    vstep(4); vstep(5); vstep(6)
    Q.append(f'ds_read_b128 {q4(Mp[3])}, v{vOr} offset:{L_MX+256*3}')
    vstep(7); vstep(8)
    assert not Q
    def padd(a,b):
        A(f'v_pk_add_f32 v[{a}:{a+1}], v[{a}:{a+1}], v[{b}:{b+1}]\nv_pk_add_f32 v[{a+2}:{a+3}], v[{a+2}:{a+3}], v[{b+2}:{b+3}]')
    padd(Y[0],Y[1]); padd(Y[2],Y[3]); padd(Y[0],Y[2])
    ones,half=T(4),T(8)
    A(f'ds_read_b128 {q4(ones)}, v{vCon} offset:16\nds_read_b64 v[{half}:{half+1}], v{vCon} offset:32')
    padd(Mp[0],Mp[1]); padd(Mp[2],Mp[3]); padd(Mp[0],Mp[2])
    Ys,Ms=Y[0],Mp[0]
    vm=T(36)
    m1,m2=T(10),T(11)
    A(f"""
v_max3_f32 v{m1}, v{Ys}, v{Ys+1}, v{Ys+2}
v_max3_f32 v{m2}, v{Ms}, v{Ms+1}, v{Ys+3}
v_max3_f32 v{m1}, v{m1}, v{Ms+2}, v{Ms+3}
v_max_f32 v{m1}, v{m1}, v{m2}
v_cvt_pk_bf16_f32 v{vm}, v{accv[0]}, v{accv[0]+1}
v_cvt_pk_bf16_f32 v{vm+1}, v{accv[0]+2}, v{accv[0]+3}
v_max_f32_dpp v{m1}, v{m1}, v{m1} row_ror:8 row_mask:0xf bank_mask:0xf
v_mov_b32 v{m2}, v{m1}
v_cvt_pk_bf16_f32 v{vm+2}, v{accv[1]}, v{accv[1]+1}
v_cvt_pk_bf16_f32 v{vm+3}, v{accv[1]+2}, v{accv[1]+3}
v_permlane32_swap_b32 v{m1}, v{m2}
v_max_f32 v{m1}, v{m1}, v{m2}
v_mov_b32 v{m2}, v{m1}
""")
    if 'nokm' not in X: A(f'buffer_store_dwordx4 {q4(vm)}, v{vL16}, s[4:7], s{sVMo} offen sc1')
    A(f's_cmp_eq_u32 s{sStep}, 63\ns_cbranch_scc1 {done}')
    stamp(3)
    A(f"""
v_permlane16_swap_b32 v{m1}, v{m2}
v_max_f32 v{m1}, v{m1}, v{m2}
v_mul_f32 v{m1}, s{sScale}, v{m1}
""")
    accO=[T(16),T(20),T(24),T(28)]; accS=T(44)
    P=T(12)
    for r in range(4): A(f'v_fma_f32 v{Ys+r}, v{Ys+r}, s{sScale}, -v{m1}')
    for r in range(4): A(f'v_exp_f32 v{Ys+r}, v{Ys+r}')
    for r in range(4): A(f'v_fma_f32 v{Ms+r}, v{Ms+r}, s{sScale}, -v{m1}')
    A(f'v_cvt_pk_bf16_f32 v{P}, v{Ys}, v{Ys+1}\nv_cvt_pk_bf16_f32 v{P+2}, v{Ys}, v{Ys+1}')
    A(f'v_cvt_pk_bf16_f32 v{P+1}, v{Ys+2}, v{Ys+3}\nv_cvt_pk_bf16_f32 v{P+3}, v{Ys+2}, v{Ys+3}')
    A(f'v_exp_f32 v{Ms}, v{Ms}')
    A(f'v_mov_b32_dpp v{P}, v{P+2} row_ror:8 row_mask:0xf bank_mask:0xc')
    A(f'v_mov_b32_dpp v{P+1}, v{P+3} row_ror:8 row_mask:0xf bank_mask:0xc')
    A(f'v_mov_b32_dpp v{P+2}, v{P+2} row_ror:8 row_mask:0xf bank_mask:0x3')
    A(f'v_mov_b32_dpp v{P+3}, v{P+3} row_ror:8 row_mask:0xf bank_mask:0x3')
    A(f'v_exp_f32 v{Ms+1}, v{Ms+1}\nv_exp_f32 v{Ms+2}, v{Ms+2}')
    O0,O1,Lr=T(0),T(40),T(44)
    A(f'{M32} {q4(Lr)}, {q4(ones)}, {q4(P)}, 0')
    A(f'v_exp_f32 v{Ms+3}, v{Ms+3}')
    A(f'{M32} {q4(O0)}, {q4(VX)}, {q4(P)}, 0')
    A(f'v_cvt_pk_bf16_f32 v{Ms}, v{Ms}, v{Ms+1}\nv_cvt_pk_bf16_f32 v{Ms+1}, v{Ms+2}, v{Ms+3}')
    A(f'{M32} {q4(O1)}, {q4(VX+4)}, {q4(P)}, 0')
    ostg=[VX,T(36)]
    ldsop(lds_o[0],ostg[0])
    A(f'{M16} {q4(Lr)}, v[{half}:{half+1}], v[{Ms}:{Ms+1}], {q4(Lr)}')
    zero(accO[2]); zero(accO[3])
    A(f'{M16} {q4(O0)}, v[{vm}:{vm+1}], v[{Ms}:{Ms+1}], {q4(O0)}')
    zero(accO[0]); zero(accO[1])
    A(f'{M16} {q4(O1)}, v[{vm+2}:{vm+3}], v[{Ms}:{Ms+1}], {q4(O1)}')
    ra=[T(33),T(34),T(35)]
    rl=T(32)
    A(f'v_xor_b32 v{ra[1]}, 1024, v{vOw}\nv_xor_b32 v{ra[2]}, 1536, v{vOw}')
    A(f'v_rcp_f32 v{rl}, v{Lr}')
    A(f'v_xor_b32 v{ra[0]}, 512, v{vOw}')
    own=T(12)
    for i,b in enumerate((O0,O0+2,O1,O1+2)):
        A(f'v_pk_mul_f32 v[{b}:{b+1}], v[{b}:{b+1}], v[{rl}:{rl+1}] op_sel_hi:[1,0]')
    for i,b in enumerate((O0,O0+2,O1,O1+2)):
        A(f'v_cvt_pk_bf16_f32 v{own+i}, v{b}, v{b+1}')
    A(f'ds_write_b128 v{vOw}, {q4(own)} offset:{L_O}')
    ldsop(lds_o[1],ostg[1])
    vP,vPa,vFa,vFd=T(32),T(33),T(34),T(35)
    def flag(): A(f'buffer_store_dword v{vFd}, v{vFa}, s[4:7], s{sFlg} offen {st}')
    def probe(): A(f'buffer_load_dword v{vP}, v{vPa}, s[4:7], s{sPrb} offen sc1 ;nw')
    stamp(4)
    fr=[own,T(0),T(4),T(8)]
    def osm(k,P):
        op=('o',k,P)
        if m[op][0]=='l':
            i=lds_o.index(op); b=ostg[i%2]; B=f'v[{b}:{b+7}]'
        else: B=R(m[op])
        A(f'{SM} {q4(accO[P])}, {q4(fr[k])}, {B}, v{vIdx}')
        if m[op][0]=='l' and i+2<len(lds_o): qop(lds_o[i+2],ostg[i%2])
        pop()
    def osg(k):
        loc=m[('s',k//2)]
        A(f'{M32} {q4(accS)}, {q4(fr[k])}, {R(loc,4*(k%2),4)}, {"0" if k==0 else q4(accS)}')
        pop()
    osg(0); osm(0,0); osm(0,1)
    A('s_waitcnt lgkmcnt(2)\ns_barrier')
    for k in range(1,4): A(f'ds_read_b128 {q4(fr[k])}, v{ra[k-1]} offset:{L_O}')
    osm(0,2); osm(0,3)
    stamp(5)
    def tagit(r): A(f'v_and_or_b32 v{r}, v{r}, -2, s{sTag}')
    def pack(x,y,so):
        A(f'v_cvt_pk_bf16_f32 v{x}, v{x}, v{x+1}\nv_cvt_pk_bf16_f32 v{x+1}, v{x+2}, v{x+3}')
        tagit(x)
        A(f'v_cvt_pk_bf16_f32 v{x+2}, v{y}, v{y+1}\nv_cvt_pk_bf16_f32 v{x+3}, v{y+2}, v{y+3}')
        tagit(x+2)
        A(f'v_permlane16_swap_b32 v{x+1}, v{x+3}\nv_permlane16_swap_b32 v{x}, v{x+2}')
        A(f'buffer_store_dwordx4 {q4(x)}, v{vH1st}, s[4:7], {so} offen {st}')
    A(f's_add_u32 s{sStep1}, s{sStep}, 1\nv_bfe_u32 v{vFa}, v{vL16}, 0, 6\nv_mov_b32 v{vFd}, s{sStep1}\nv_lshlrev_b32 v{vFa}, 4, v{vFa}')
    if Dl['fl']<0: flag()
    A(f'v_bfe_u32 v{vPa}, v{vL16}, 2, 7\nv_mov_b32 v{vP}, 0')
    cnt=[0]
    def tick():
        if cnt[0]==Dl['fl']: flag()
        if cnt[0] in Dl['pr']: probe()
        cnt[0]+=1
    for k in range(1,4): osg(k); tick()
    for k in range(1,4): osm(k,0); tick()
    for k in range(1,4): osm(k,1); tick()
    A(f'v_cvt_pk_bf16_f32 v{accS}, v{accS}, v{accS+1}\nv_cvt_pk_bf16_f32 v{accS+1}, v{accS+2}, v{accS+3}')
    tagit(accS)
    A(f's_mov_b64 exec, 0xffffffff\nbuffer_store_dwordx2 v[{accS}:{accS+1}], v{vH1s1}, s[4:7], 0 offen {st}\ns_mov_b64 exec, -1')
    pack(accO[0],accO[1],'0')
    for k in range(1,4): osm(k,2); tick()
    for k in range(1,4): osm(k,3); tick()
    sel=T(44); D=T(16)
    for j in range(4): A(f'v_cndmask_b32 v{sel+j}, 0, v{vSel}, s[{sMask+2*j}:{sMask+2*j+1}]')
    pack(accO[2],accO[3],f's{s32k}')
    stamp(6)
    f1=sum((((a^c)|(b^c))<<(a*4+b*2+c)) for a in (0,1) for b in (0,1) for c in (0,1))
    f2=sum(((a|(b^c))<<(a*4+b*2+c)) for a in (0,1) for b in (0,1) for c in (0,1))
    def zacc(lo=0,hi=16):
        for i in range(lo,hi): A(f'v_mov_b32 v{T(i)}, 0 ;nw')
    def h1loads(hd):
        for j in range(4): A(f'buffer_load_dwordx4 {q4(hd+4*j)}, v{vL16}, s[4:7], s{sH1ld} offen offset:{1024*j} sc1')
    def rbody(hd):
        ck=T(20)
        for j in range(4):
            A(f'{M32} {q4(D)}, {q4(hd+4*j)}, {q4(sel)}, {q4(D) if j else "0"}')
            if j==0: A(f'v_bitop3_b32 v{ck}, v{hd}, v{hd+2}, s{sTag} bitop3:{f1:#x}')
            else:
                A(f'v_bitop3_b32 v{ck}, v{ck}, v{hd+4*j}, s{sTag} bitop3:{f2:#x}')
                A(f'v_bitop3_b32 v{ck}, v{ck}, v{hd+4*j+2}, s{sTag} bitop3:{f2:#x}')
        A(f'v_and_b32 v{ck}, 1, v{ck}\nv_cmp_ne_u32 vcc, 0, v{ck}')
    def reduce(between=None):
        p1=A.label('P1'); ok=A.label('P1K')
        hd=T(28)
        stamp(10)
        h1loads(hd)
        if between: between()
        rbody(hd); A(f's_cbranch_vccnz {p1}')
        A(f'{ok}:')
        A(f'v_permlane32_swap_b32 v{D}, v{D+2}\nv_permlane32_swap_b32 v{D+1}, v{D+3}')
        A(f'v_pk_add_f32 v[{D}:{D+1}], v[{D}:{D+1}], v[{D+2}:{D+3}]\nv_cvt_pk_bf16_f32 v{D}, v{D}, v{D+1}')
        A(f'buffer_store_dword v{D}, v{vH2st}, s[4:7], s{sH2c} offen {st}')
        stamp(11)
        def c():
            A(f'{p1}:')
            h1loads(hd)
            A(f's_add_u32 s{sPoll}, s{sPoll}, 1\ns_add_u32 s{sSt+13}, s{sSt+13}, 1\ns_cmp_gt_u32 s{sPoll}, {POLLMAX}\ns_cbranch_scc1 {fail}')
            rbody(hd); A(f's_cbranch_vccz {ok}\ns_branch {p1}')
        cold.append(c)
    def book():
        for j in range(3): ldsop(lds_qk[j],stg[j])
        A(f"""
s_add_u32 s{sH2ld}, s{sH2c}, s{sW3k}
s_add_u32 s{sT2}, s{sH2ld}, 4096
s_add_u32 s{sT3}, s{sH2c}, s{sLate}
s_xor_b32 s{sTag}, s{sTag}, 1
s_mov_b32 s{sT1}, s{sH2p}
s_mov_b32 s{sH2p}, s{sH2n}
s_mov_b32 s{sH2n}, s{sH2c}
s_mov_b32 s{sH2c}, s{sT1}
s_add_u32 s{sKVc}, s{sKn}, 8192
s_add_u32 s{sKn}, s{sKn}, {0 if 'samekv' in X else 32*16384}
s_add_u32 s{sKMo}, s{sKMo}, {32*2048}
s_add_u32 s{sVMo}, s{sVMo}, {32*4096}
s_add_u32 s{sStep}, s{sStep}, 1
s_mov_b32 s{sPoll}, 0
""")
    def l_load(): A(f'buffer_load_dwordx4 {q4(late)}, v{vL16}, s[4:7], s{sT3} offen sc1')
    def gather(ne,dl):
        p2=A.label('P2')
        regs=[T(20),T(24),T(16)][:ne]; ck=T(16) if ne==2 else T(20)
        offs=[(f's{sH2ld}',0),(f's{sH2ld}',2048),(f's{sT2}',0)]
        def e_loads():
            for j in range(ne): A(f'buffer_load_dwordx4 {q4(regs[j])}, v{vL16}, s[4:7], {offs[j][0]} offen offset:{offs[j][1]} sc1')
        def body():
            for j,r in enumerate(regs):
                spec = not (ne==2 and j==1)
                if spec: A(f'ds_write_b128 v{vMw}, {q4(r)} offset:{L_M+2048*j}')
                if j==0: A(f's_nop 1\nv_max3_u32 v{ck}, v{r}, v{r+1}, v{r+2}\nv_max_u32 v{ck}, v{ck}, v{r+3}')
                else: A(f'v_max3_u32 v{ck}, v{ck}, v{r}, v{r+1}\nv_max3_u32 v{ck}, v{ck}, v{r+2}, v{r+3}')
            A(f'v_cmp_eq_u32 vcc, -1, v{ck}\ns_cbranch_vccnz {p2}')
            if ne==2: A(f'ds_write_b128 v{vMw}, {q4(regs[1])} offset:{L_M+2048}')
            stamp(8)
            A(f's_branch {barA}')
        e_loads(); delay(dl); l_load(); body()
        def c():
            A(f'{p2}:')
            e_loads(); l_load()
            A(f's_add_u32 s{sPoll}, s{sPoll}, 1\ns_add_u32 s{sSt+14}, s{sSt+14}, 1\ns_cmp_gt_u32 s{sPoll}, {POLLMAX}\ns_cbranch_scc1 {fail}')
            body()
        cold.append(c)
    W1,W2,W3,W2n=[A.label(x) for x in ('W1','W2','W3','W2X')]
    def setml(): A(f's_mov_b32 s{sPoll}, 0')
    A(f's_cmp_lg_u32 s{sW}, 0\ns_cbranch_scc1 {W3}')
    A('s_barrier'); delay(Dl['a1']); reduce(lambda: (zacc(),setml())); book(); delay(Dl['a2']); gather(3,Dl['al'])
    A(f'{W3}:\ns_cmp_lg_u32 s{sW}, 3\ns_cbranch_scc1 {W2}')
    sp=A.label('SPIN'); go=A.label('GO')
    A(f'v_cmp_gt_u32 vcc, s{sStep1}, v{vP} ;nw\ns_cbranch_vccnz {sp}')
    A(f'{go}:\ns_barrier'); stamp(9)
    def c():
        A(f'{sp}:\ns_mov_b32 s{sPoll}, 0\n{sp}_l:')
        for i in range(4):
            probe(); A(f's_add_u32 s{sSt+11}, s{sSt+11}, 1'); delay(Dl['sp'])
            A(f'v_cmp_gt_u32 vcc, s{sStep1}, v{vP} ;nw\ns_cbranch_vccz {go}')
        A(f's_add_u32 s{sPoll}, s{sPoll}, 1\ns_cmp_lt_u32 s{sPoll}, 32\ns_cbranch_scc1 {sp}_l\ns_branch {go}')
    cold.append(c)
    zacc(); setml()
    A(f's_add_u32 s{sT1}, s{sStep}, 2\ns_lshr_b32 s{sT1}, s{sT1}, 2\ns_add_u32 s{sT1}, s{sT1}, 1\ns_min_u32 s{sT1}, s{sT1}, 16')
    emit_wait_kv(A,sT1,fail,T(26))
    delay(Dl['d1']); book(); l_load(); stamp(8); A(f's_branch {barA}')
    A(f'{W2}:\ns_cmp_lg_u32 s{sW}, 2\ns_cbranch_scc1 {W1}')
    A(f's_cmp_ge_u32 s{sU}, 72\ns_barrier\ns_cbranch_scc1 {W2n}')
    reduce(lambda: (zacc(),setml())); book(); delay(Dl['a2']); gather(2,Dl['al'])
    A(f'{W2n}:')
    zacc(); setml(); delay(Dl['n2']); book(); gather(2,Dl['al'])
    A(f'{W1}:')
    zacc(); setml(); A('s_barrier'); delay(Dl['b1']); reduce(); book(); delay(Dl['b2']); l_load(); stamp(8); A(f's_branch {barA}')
    for c in cold: c()

def emit_chain(A, fail, end, D1=0, D2=2, stamps=(), modes=('',), X=()):
    m, qk_order, lds_qk, lds_o = operand_map()
    emit_chain_init(A, m)
    lp=A.label('CB')
    A(f"""
s_mov_b32 s{sPoll}, 0
{lp}:
v_mov_b32 v{VX}, 0
global_load_dword v{VX+1}, v{VX}, s[66:67] offset:{D_CBAR} sc1
global_load_dword v{VX+2}, v{VX}, s[66:67] offset:{D_INIT} sc1
global_load_dword v{VX+3}, v{VX}, s[66:67] offset:{D_TICK} sc1
s_add_u32 s{sPoll}, s{sPoll}, 1
s_cmp_gt_u32 s{sPoll}, {POLLMAX}
s_cbranch_scc1 {fail}
v_readfirstlane_b32 s{sT1}, v{VX+1}
v_readfirstlane_b32 s{sT2}, v{VX+2}
s_cmp_lt_u32 s{sT1}, 32
s_cbranch_scc1 {lp}
s_cmp_eq_u32 s{sT2}, 0
s_cbranch_scc1 {lp}
v_readfirstlane_b32 s{sT2}, v{VX+3}
s_cmp_lt_u32 s{sT2}, 32
s_cselect_b32 s{sMode}, 1, 0
s_mov_b32 s{sT1}, 1
""")
    emit_wait_kv(A,sT1,fail,VX)
    A(f'buffer_load_dwordx4 {q4(KX)}, v{vKx}, s[4:7], s{sKVc} offen sc1')
    A(f'buffer_load_dwordx4 {q4(KX+4)}, v{vKx}, s[4:7], s{sKVc} offen offset:256 sc1')
    A(f's_add_u32 s{sKVc}, s{sKVc}, 8192')
    for i in range(16): A(f's_mov_b32 s{sSt+i}, 0')
    A('s_memrealtime s[90:91]\ns_waitcnt lgkmcnt(0)\ns_mov_b32 s99, s90\ns_mov_b32 s90, 0\ns_mov_b32 s91, 0')
    if 'initstamp' in X: A(f's_memtime s[{sSt+10}:{sSt+11}]\ns_waitcnt lgkmcnt(0)\ns_sub_u32 s{sSt+10}, s{sSt+10}, s72\ns_mov_b32 s{sSt+11}, 0')
    done=A.label('CDONE')
    trcopy='\n'.join(f's_mov_b32 s{sSt+4+i}, s{sTr+2*i}' for i in range(6))+'\n' if any(isinstance(x,tuple) for x in X) else ''
    if len(modes)==2:
        A(f's_cmp_lg_u32 s{sMode}, 0\ns_cbranch_scc1 CSTEP_1_prep')
    for i,st in enumerate(modes):
        emit_chain_loop(A, m, qk_order, lds_qk, lds_o, st, i, fail, done, D1, D2, list(stamps), X)
    A(f"""
{done}:
s_waitcnt lgkmcnt(0)
{trcopy}s_waitcnt vmcnt(0)
s_barrier
s_cmp_lg_u32 s{sW}, 3
s_cbranch_scc1 {end}
v_mov_b32 v{T(0)}, 0
v_mov_b32 v{T(1)}, 64
buffer_store_dword v{T(1)}, v{T(0)}, s[4:7], s{sFlagM} offen sc1
s_branch {end}
""")
```

```python
WS_H1   = 0
H1SZ    = 72*32*128
WS_H2   = H1SZ
H2SZ    = 9216
WS_F1   = 0x50000
WS_FLAGS= 0xE0000
F_KV    = WS_FLAGS
F_M     = WS_FLAGS + 16384
F_O     = WS_FLAGS + 20480
WS_KM   = 0x100000
WS_VM   = 0x500000
WS_KV   = 0x1000000
WS_O    = 0x3000000
WS_AK   = 0x4000000
WS_BYTES= 0x10000000
KA = dict(A_x=0,A_wq=8,A_wk=16,A_wv=24,A_wo=32,B_x=40,B_mem0=48,B_Wq=56,B_Wk=64,B_Wv=72,B_Wo=80,B_seg=88,out=96,dbg=104,ws=112)
D_TICK  = 0
D_OVF   = 32
D_CBAR  = 64
D_INIT  = 128
D_AKV   = 192
FLAG_BYTES = 28672
```

```python
import sys, os
sys.path.insert(0, os.path.dirname(__file__))
from asmgen import *
from common import *
import chain, workb
NAME='concat_heads__grouped_kv_mqa__memory_aug_recurrent_mem_tr__prompt'

def build(chain_kw=None, with_a=True, prof=False, XK=(), XV=()):
    A=Asm()
    sH,sW=12,13
    A(f'''
s_cmp_ge_u32 s2, 256
s_cbranch_scc1 L_exit
s_load_dwordx2 s[66:67], s[0:1], {KA['dbg']}
s_getreg_b32 s20, hwreg(HW_REG_XCC_ID)
s_and_b32 s20, s20, 7
v_lshrrev_b32 v1, 6, v0
v_readfirstlane_b32 s{sW}, v1
s_mov_b32 s{chain.sMode}, 0
''')
    if prof: A('s_memrealtime s[96:97]\ns_memtime s[100:101]')
    A(f'''
s_waitcnt lgkmcnt(0)
s_cmp_lg_u32 s{sW}, 0
s_cbranch_scc1 L_gotrole
s_mov_b64 exec, 1
s_lshl_b32 s21, s20, 2
v_mov_b32 v2, s21
v_mov_b32 v3, 1
global_atomic_add v4, v2, v3, s[66:67] sc0
v_readfirstlane_b32 s22, v4
s_cmp_lt_u32 s22, 32
s_cbranch_scc1 L_tk
v_mov_b32 v2, 0
global_atomic_add v4, v2, v3, s[66:67] offset:{D_OVF} sc0
v_readfirstlane_b32 s23, v4
s_mov_b32 s40, 0
L_ovf:
global_load_dwordx4 v[4:7], v2, s[66:67] sc1
global_load_dwordx4 v[8:11], v2, s[66:67] offset:16 sc1
s_add_u32 s40, s40, 1
s_cmp_gt_u32 s40, 400000
s_cbranch_scc1 L_exit
''')
    for i in range(8): A(f'v_readfirstlane_b32 s{24+i}, v{4+i}')
    A('s_mov_b32 s32, 0')
    for i in range(8): A(f's_add_u32 s32, s32, s{24+i}')
    A('s_cmp_lt_u32 s32, 256\ns_cbranch_scc1 L_ovf')
    for i in range(8):
        nx=f'L_ovf{i}'
        A(f'''
s_min_u32 s33, s{24+i}, 32
s_sub_u32 s34, 32, s33
s_cmp_ge_u32 s23, s34
s_cbranch_scc1 {nx}
s_mov_b32 s20, {i}
s_add_u32 s22, s33, s23
s_branch L_tk
{nx}:
s_sub_u32 s23, s23, s34
''')
    A(f'''
s_branch L_exit
L_tk:
s_lshl_b32 s20, s20, 5
s_add_u32 s20, s20, s22
v_mov_b32 v2, 0
v_mov_b32 v3, s20
ds_write_b32 v2, v3
s_mov_b64 exec, -1
s_waitcnt lgkmcnt(0)
L_gotrole:
s_barrier
v_mov_b32 v2, 0
ds_read_b32 v3, v2
v_readfirstlane_b32 s20, v3
s_barrier
s_mov_b32 s98, s20
s_and_b32 s{sH}, s20, 31
s_cmp_lt_u32 s20, 32
s_cbranch_scc1 L_chain
s_cmp_lt_u32 s20, 64
s_cbranch_scc1 L_k
s_cmp_lt_u32 s20, 96
s_cbranch_scc1 L_v
s_cmp_lt_u32 s20, 128
s_cbranch_scc1 L_q
s_sub_u32 s{sH}, s20, 128
s_cmp_lt_u32 s20, 164
s_cbranch_scc1 L_op
s_sub_u32 s{sH}, s20, 164
s_cmp_lt_u32 s20, 228
s_cbranch_scc1 L_a
s_cmp_eq_u32 s20, 228
s_cbranch_scc1 L_fi
s_branch L_end
''')
    A('L_fi:'); workb.emit_flaginit(A,'L_end')
    A('L_k:'); workb.emit_proj(A,'K','L_fail','L_end',XK)
    A('L_v:'); workb.emit_proj(A,'V','L_fail','L_end',XV)
    A('L_q:'); workb.emit_proj(A,'Q','L_fail','L_end')
    A('L_op:'); workb.emit_outproj(A,'L_fail','L_end')
    A('L_a:')
    if with_a:
        import worka
        worka.emit_a(A,'L_fail','L_end')
    else: A('s_branch L_end')
    A('L_chain:')
    kw=dict(modes=('','sc1')); kw.update(chain_kw or {})
    chain.emit_chain(A,'L_fail','L_end',**kw)
    A('L_fail:\nL_end:')
    if prof:
        A(f'''
s_memrealtime s[94:95]
s_memtime s[92:93]
s_load_dwordx2 s[4:5], s[0:1], {KA['ws']}
s_mov_b64 exec, 1
s_waitcnt lgkmcnt(0)
s_lshl_b32 s98, s98, 2
s_add_u32 s98, s98, s{sW}
s_lshl_b32 s98, s98, 4
s_sub_u32 s92, s92, s100
s_add_u32 s98, s98, 0x8000000
v_mov_b32 v0, s98
v_mov_b32 v2, s96
v_mov_b32 v3, s94
v_mov_b32 v4, s92
v_mov_b32 v5, s99
global_store_dwordx4 v0, v[2:5], s[4:5]
''')
    A('L_exit:\ns_endpgm')
    body=A.finalize()
    hdr=open(os.path.join(os.path.dirname(__file__),'..','cdna_kernels',NAME+'.s.ref')).read().split('; Override launch')[0]
    txt=hdr+f'''; One persistent launch: 256 workgroups, one per CU, roles chosen at run time (see gen/ comments in the body).
; @launch grid=(256,1,1) block=(256,1,1) lds=163840
.amdgcn_target "amdgcn-amd-amdhsa--gfx950"
.text
.globl {NAME}_kernel
.p2align 8
.type {NAME}_kernel,@function
{NAME}_kernel:
{body}
.section .rodata,"a"
.p2align 6
.amdhsa_kernel {NAME}_kernel
  .amdhsa_next_free_vgpr 512
  .amdhsa_next_free_sgpr 102
  .amdhsa_accum_offset 256
  .amdhsa_group_segment_fixed_size 0
  .amdhsa_kernarg_size 120
  .amdhsa_user_sgpr_count 2
  .amdhsa_user_sgpr_kernarg_segment_ptr 1
  .amdhsa_system_sgpr_workgroup_id_x 1
.end_amdhsa_kernel
'''
    return txt, A.stats

if __name__=='__main__':
    txt,st=build(with_a=os.path.exists(os.path.join(os.path.dirname(__file__),'worka.py')))
    out=sys.argv[1] if len(sys.argv)>1 else os.path.join(os.path.dirname(__file__),'..','cdna_kernels',NAME+'.s')
    open(out,'w').write(txt); print(st, len(txt))
```

```python
from asmgen import *
from common import *
from workb import lane_setup, q4, q16, fbits, M32, sH, sW, sT0, sT1, sT2, sT3, sPoll, POLLMAX
import math

AK0=0
AK1=65536
AV =73728
AIMG=73728+64*1280

def stream_gemm(A, srd, XF, ACC, sBase, vD, vT, tag):
    NS=8; SL=5120; WB=200
    sSrc=30
    A(f's_mov_b32 s{sSrc}, 0')
    def dma(ks):
        A(f's_add_u32 m0, s{sBase}, {(ks%NS)*SL}')
        for i in range(5):
            A(f'buffer_load_dwordx4 v{vD+i}, {srd}, s{sSrc} offen offset:{0} lds')
            if i<4: A(f's_add_u32 m0, m0, 1024')
        A(f's_add_u32 s{sSrc}, s{sSrc}, {16*1152}')
    def rd(ks):
        for t in range(5):
            r=WB+20*(ks%2)+4*t
            for x in range(2): A(f'ds_read_b64_tr_b16 v[{r+2*x}:{r+2*x+1}], v{vT} offset:{(ks%NS)*SL+4*x*320+64*t}')
    for ks in range(NS): dma(ks)
    A(f's_waitcnt vmcnt({5*(NS-1)})'); rd(0)
    for ks in range(36):
        if ks+1<36:
            out=min(36,ks+NS)-(ks+2)
            A(f's_waitcnt vmcnt({5*out})'); rd(ks+1)
        for t in range(5):
            A(f'{M32} {q16(ACC+16*t,"a")}, {q4(WB+20*(ks%2)+4*t)}, {q4(XF+4*ks)}, {"0" if ks==0 else q16(ACC+16*t,"a")}')
        if ks+NS<36: dma(ks+NS)

def emit_a(A, fail, end):
    A(f'''
s_load_dwordx2 s[4:5], s[0:1], {KA['ws']}
s_load_dwordx2 s[8:9], s[0:1], {KA['A_wq']}
s_load_dwordx2 s[16:17], s[0:1], {KA['A_x']}
s_load_dwordx2 s[20:21], s[0:1], {KA['A_wk']}
s_load_dwordx2 s[24:25], s[0:1], {KA['A_wv']}
s_load_dwordx2 s[44:45], s[0:1], {KA['A_wo']}
s_load_dwordx2 s[48:49], s[0:1], {KA['out']}
s_load_dwordx2 s[66:67], s[0:1], {KA['dbg']}
''')
    lane_setup(A)
    XF=16
    vD=160; vT=165; sBase=31; sC0=32
    A(f'''
v_mul_u32_u24 v8, 1152, v3
v_lshl_add_u32 v8, v4, 4, v8
s_mul_i32 s{sBase}, s{sW}, 40960
s_mul_i32 s{sC0}, s{sW}, 288
s_cmp_eq_u32 s{sW}, 3
s_cselect_b32 s{sC0}, 832, s{sC0}
v_lshl_add_u32 v9, v4, 3, v6
v_mul_u32_u24 v9, 320, v9
v_lshl_add_u32 v9, v5, 5, v9
v_lshl_add_u32 v9, v7, 3, v9
v_add_u32 v{vT}, s{sBase}, v9
''')
    for i in range(5):
        A(f'''
v_add_u32 v9, {64*i}, v1
v_mul_u32_u24 v10, 3277, v9
v_lshrrev_b32 v10, 16, v10
v_mul_u32_u24 v11, 20, v10
v_sub_u32 v11, v9, v11
v_mul_u32_u24 v10, 1152, v10
v_lshl_add_u32 v10, v11, 4, v10
v_add_u32 v{vD+i}, s{sC0}, v10''')
    A(f'''
s_waitcnt lgkmcnt(0)
s_mov_b32 s6, {WS_BYTES}
s_mov_b32 s7, 0x20000
s_mov_b32 s10, {576*1152}
s_mov_b32 s11, 0x20000
s_mov_b32 s18, {2048*1152}
s_mov_b32 s19, 0x20000
s_mov_b32 s22, {576*36}
s_mov_b32 s23, 0x20000
s_mov_b32 s26, {576*36}
s_mov_b32 s27, 0x20000
s_mov_b32 s46, {576*1152}
s_mov_b32 s47, 0x20000
s_mov_b32 s50, {2048*2304}
s_mov_b32 s51, 0x20000
s_mul_i32 s{sT0}, s{sH}, {32*1152}
''')
    for ks in range(36): A(f'buffer_load_dwordx4 {q4(XF+4*ks)}, v8, s[16:19], s{sT0} offen offset:{32*ks}')
    A('v_mov_b32 v168, 0\nv_mov_b32 v169, 0\nv_mov_b32 v170, 0\nv_mov_b32 v171, 0\nv_lshlrev_b32 v9, 4, v0')
    for i in range(18): A(f'ds_write_b128 v9, v[168:171] offset:{4096*i}' if 4096*i<65536 else f'ds_write_b128 v10, v[168:171] offset:{4096*(i-16)}') if i!=15 else A(f'ds_write_b128 v9, v[168:171] offset:{4096*i}\nv_add_u32 v10, 65536, v9')
    for i in range(21):
        A(f'v_add_u32 v9, {256*i}, v0\nv_lshlrev_b32 v10, 2, v9')
        A(f'buffer_load_dword v{172+2*i}, v10, s[20:23], 0 offen\nbuffer_load_dword v{173+2*i}, v10, s[24:27], 0 offen')
    A('s_waitcnt lgkmcnt(0)\ns_barrier')
    A('s_mov_b32 s28, 58255')
    for i in range(21):
        if i==20: A('s_mov_b64 exec, 0\ns_cmp_eq_u32 s13, 0\ns_cselect_b64 exec, -1, 0')
        A(f'''
v_add_u32 v9, {256*i}, v0
v_mul_u32_u24 v10, s28, v9
v_lshrrev_b32 v10, 19, v10
v_mul_u32_u24 v11, 9, v10
v_sub_u32 v11, v9, v11
v_lshlrev_b32 v10, 6, v10
v_lshl_add_u32 v10, v11, 2, v10
ds_write_b32 v10, v{172+2*i}
ds_write_b32 v10, v{173+2*i} offset:36864''')
    A('s_mov_b64 exec, -1\ns_waitcnt lgkmcnt(0)\ns_barrier')
    kvd=A.label('AKVD'); vl=A.label('AV')
    A(f'''
v_lshl_add_u32 v9, v4, 3, v6
v_lshlrev_b32 v9, 6, v9
v_lshl_add_u32 v9, v5, 5, v9
v_lshl_add_u32 v9, v7, 3, v9
s_cmp_ge_u32 s{sW}, 2
s_cbranch_scc1 {kvd}
s_cmp_eq_u32 s{sW}, 1
s_cbranch_scc1 {vl}
''')
    def mini(off, swap):
        D=168
        for ks in range(36):
            r=200+4*(ks%8)
            for x in range(2): A(f'ds_read_b64_tr_b16 v[{r+2*x}:{r+2*x+1}], v9 offset:{off+(16*ks+4*x)*64}')
            if ks>=4:
                k=ks-4; w=q4(200+4*(k%8)); x_=q4(XF+4*k); a,b=(x_,w) if swap else (w,x_)
                A(f'{M32} {q16(D)}, {a}, {b}, {"0" if k==0 else q16(D)}')
        for k in range(32,36):
            w=q4(200+4*(k%8)); x_=q4(XF+4*k); a,b=(x_,w) if swap else (w,x_)
            A(f'{M32} {q16(D)}, {a}, {b}, {q16(D)}')
        return D
    D=mini(0,False)
    A(f'''
v_cvt_pk_bf16_f32 v184, v{D}, v{D+1}
v_cvt_pk_bf16_f32 v185, v{D+2}, v{D+3}
v_cvt_pk_bf16_f32 v186, v{D+4}, v{D+5}
v_cvt_pk_bf16_f32 v187, v{D+6}, v{D+7}
v_cvt_pk_bf16_f32 v188, v{D+8}, v{D+9}
s_lshl_b32 s{sT0}, s{sH}, 10
s_add_u32 s{sT0}, s{sT0}, {WS_AK+AK0}
buffer_store_dwordx4 v[184:187], v2, s[4:7], s{sT0} offen sc1
s_lshl_b32 s{sT0}, s{sH}, 7
s_add_u32 s{sT0}, s{sT0}, {WS_AK+AK1}
v_lshlrev_b32 v10, 2, v3
s_mov_b64 exec, 0xffffffff
buffer_store_dword v188, v10, s[4:7], s{sT0} offen sc1
s_mov_b64 exec, -1
s_branch {kvd}
{vl}:
v_add_u32 v9, 36864, v9
''')
    D=mini(0,True)
    A(f'v_cmp_eq_u32 vcc, 18, v3\nv_mov_b32 v11, 0x3f803f80')
    for j in range(2):
        for t,a in enumerate((j,j+2)):
            for p in range(2):
                r=184+4*j+2*t+p
                A(f'v_cvt_pk_bf16_f32 v{r}, v{D+4*a+2*p}, v{D+4*a+2*p+1}\nv_cndmask_b32 v{r}, v{r}, v11, vcc')
    A(f'''
v_mul_u32_u24 v10, 320, v4
v_lshl_add_u32 v10, v3, 4, v10
s_mul_i32 s{sT0}, s{sH}, 1280
s_add_u32 s{sT0}, s{sT0}, {WS_AK+AV}
s_mov_b32 exec_lo, 0xfffff
s_mov_b32 exec_hi, 0xfffff
buffer_store_dwordx4 v[184:187], v10, s[4:7], s{sT0} offen sc1
buffer_store_dwordx4 v[188:191], v10, s[4:7], s{sT0} offen offset:640 sc1
s_mov_b64 exec, -1
{kvd}:
s_waitcnt vmcnt(0)
s_barrier
''')
    na=A.label('ANA')
    A(f'''
s_cmp_lg_u32 s{sW}, 0
s_cbranch_scc1 {na}
s_mov_b64 exec, 1
v_mov_b32 v9, 0
v_mov_b32 v10, 1
global_atomic_add v9, v10, s[66:67] offset:{D_AKV}
s_mov_b64 exec, -1
{na}:
''')
    stream_gemm(A,'s[8:11]',XF,0,sBase,vD,vT,'q')
    c=math.log2(math.e)/math.sqrt(18.0)
    QS=336
    A(f'''
s_mov_b32 s{sT0}, {fbits(c):#x}
v_mul_u32_u24 v9, {QS}, v3
v_lshl_add_u32 v9, v4, 3, v9
v_add_u32 v9, s{sBase}, v9
s_waitcnt lgkmcnt(0)
''')
    for t in range(5):
        for r in range(16): A(f'v_accvgpr_read_b32 v{168+r}, a{16*t+r}')
        for r in range(16): A(f'v_mul_f32 v{168+r}, s{sT0}, v{168+r}')
        for a in range(4):
            A(f'v_cvt_pk_bf16_f32 v{184+2*a}, v{168+4*a}, v{169+4*a}\nv_cvt_pk_bf16_f32 v{185+2*a}, v{170+4*a}, v{171+4*a}')
            A(f'ds_write_b64 v9, v[{184+2*a}:{185+2*a}] offset:{64*t+16*a}')
    Q=16
    A(f's_mul_i32 s{sT1}, s{sW}, 288\ns_sub_u32 s{sT1}, s{sT1}, s{sC0}\nv_add_u32 v9, s{sT1}, v9\nv_cmp_eq_u32 s[34:35], 0, v4')
    for i in range(8):
        A(f'ds_read2_b32 v[{Q+8*i}:{Q+8*i+1}], v9 offset0:{9*i} offset1:{9*i+1}')
        A(f'ds_read2_b32 v[{Q+8*i+2}:{Q+8*i+3}], v9 offset0:{9*i+4} offset1:{9*i+5}')
        A(f'ds_read_b32 v{Q+8*i+4}, v9 offset:{36*i+32}')
    for i in range(8):
        A(f'v_cndmask_b32 v{Q+8*i+4}, 0, v{Q+8*i+4}, s[34:35]')
        for r in range(5,8): A(f'v_mov_b32 v{Q+8*i+r}, 0')
    lp=A.label('AW'); ok=A.label('AWK')
    A(f'''
s_mov_b32 s{sPoll}, 0
v_mov_b32 v9, 0
{lp}:
global_load_dword v10, v9, s[66:67] offset:{D_AKV} sc1
s_add_u32 s{sPoll}, s{sPoll}, 1
s_cmp_gt_u32 s{sPoll}, {POLLMAX}
s_cbranch_scc1 {fail}
v_readfirstlane_b32 s{sT1}, v10
s_cmp_ge_u32 s{sT1}, 64
s_cbranch_scc1 {ok}
s_sleep 4
s_branch {lp}
{ok}:
s_barrier
s_mul_i32 s{sT0}, s{sW}, {38*1024}
s_add_u32 s{sT1}, s{sT0}, {WS_AK}
s_mov_b32 s{sT2}, 0
''')
    lp=A.label('AD')
    A(f'''
{lp}:
s_mov_b32 m0, s{sT0}
s_add_u32 s{sT0}, s{sT0}, 1024
buffer_load_dwordx4 v2, s[4:7], s{sT1} offen sc1 lds
s_add_u32 s{sT1}, s{sT1}, 1024
s_add_u32 s{sT2}, s{sT2}, 1
s_cmp_lt_u32 s{sT2}, 38
s_cbranch_scc1 {lp}
''')
    vK0,vK1,vV=8,9,10
    KA0=[80,84]; KA1=[88,92]; VA=[96,104]; S=[112,128]; P=[144,152]; MX=208; OS=168
    A(f'''
v_min_u32 v11, 19, v3
v_mul_u32_u24 v{vV}, 320, v4
v_lshl_add_u32 v{vV}, v11, 4, v{vV}
''')
    for b in KA1: A(f'v_mov_b32 v{b+1}, 0x3f80\nv_mov_b32 v{b+2}, 0\nv_mov_b32 v{b+3}, 0')
    A('s_waitcnt vmcnt(0)\ns_barrier')
    sIt=28
    def reset_addr():
        A(f'v_mov_b32 v{vK0}, v2\nv_lshlrev_b32 v{vK1}, 2, v3\nv_add_u32 v{vK1}, {AK1}, v{vK1}')
    def kread(buf,tile):
        A(f'ds_read_b128 {q4(KA0[buf])}, v{vK0} offset:{1024*tile}\nds_read_b32 v{KA1[buf]}, v{vK1} offset:{128*tile}')
    def vread(buf,tile):
        A(f'ds_read_b128 {q4(VA[buf])}, v11 offset:{1280*tile}\nds_read_b128 {q4(VA[buf]+4)}, v11 offset:{1280*tile+640}')
    def qk(sb,kb,hd,part):
        if part==0: A(f'{M32} {q16(S[sb])}, {q4(KA0[kb])}, {q4(Q+8*hd)}, 0')
        else: A(f'{M32} {q16(S[sb])}, {q4(KA1[kb])}, {q4(Q+8*hd+4)}, {q16(S[sb])}')
    for grp in range(2):
        H=[4*grp+i for i in range(4)]
        reset_addr()
        for i in range(4): A(f'v_mov_b32 v{MX+i}, 0xff800000')
        kread(0,0)
        qk(0,0,H[0],0); qk(0,0,H[0],1)
        lp=A.label('P1L')
        A(f's_mov_b32 s{sIt}, 0\n.p2align 6\n{lp}:')
        for tb in range(2):
            kread(1-tb,tb+1)
            for i in range(4):
                n=4*tb+i; cur=n%2
                nk,nh=(tb,i+1) if i<3 else (1-tb,0)
                qk(1-cur,nk,H[nh],0)
                for r in range(0,8,2): A(f'v_max3_f32 v{MX+i}, v{MX+i}, v{S[cur]+r}, v{S[cur]+r+1}')
                qk(1-cur,nk,H[nh],1)
                for r in range(8,16,2): A(f'v_max3_f32 v{MX+i}, v{MX+i}, v{S[cur]+r}, v{S[cur]+r+1}')
        A(f'v_add_u32 v{vK0}, 2048, v{vK0}\nv_add_u32 v{vK1}, 256, v{vK1}\ns_add_u32 s{sIt}, s{sIt}, 1\ns_cmp_lt_u32 s{sIt}, 32\ns_cbranch_scc1 {lp}')
        for i in range(4):
            A(f'''
v_mov_b32 v{MX+4}, v{MX+i}
v_permlane32_swap_b32 v{MX+i}, v{MX+4}
v_max_f32 v{MX+i}, v{MX+i}, v{MX+4}
v_sub_f32 v{MX+i}, 0, v{MX+i}
v_cvt_pk_bf16_f32 v{MX+i}, v{MX+i}, 0
v_cndmask_b32 v{Q+8*H[i]+5}, 0, v{MX+i}, s[34:35]''')
        reset_addr()
        A(f'v_add_u32 v11, {AV}, v{vV}')
        for i in range(64): A(f'v_accvgpr_write_b32 a{i}, 0')
        for i in range(8): A(f'v_mov_b32 v{P[1]+i}, 0')
        kread(0,0); vread(1,0)
        qk(0,0,H[0],0); qk(0,0,H[0],1)
        lp=A.label('P2L')
        A(f's_mov_b32 s{sIt}, 0\n.p2align 6\n{lp}:')
        def pv(pb,vb,i,j): A(f'{M32} {q16(16*i,"a")}, {q4(VA[vb]+4*j)}, {q4(P[pb]+4*j)}, {q16(16*i,"a")}')
        for tb in range(2):
            for i in range(4):
                n=4*tb+i; cur=n%2
                nk,nh=(tb,i+1) if i<3 else (1-tb,0)
                pvb,pi=(tb,i-1) if i>0 else (1-tb,3)
                if i==0: vread(tb,tb)
                if i==1: kread(1-tb,tb+1)
                s=S[cur]
                def ex(lo,hi):
                    for r in range(lo,hi): A(f'v_exp_f32 v{s+r}, v{s+r}')
                def cv(j,t):
                    a=j+2*t
                    for p in range(2): A(f'v_cvt_pk_bf16_f32 v{P[cur]+4*j+2*t+p}, v{s+4*a+2*p}, v{s+4*a+2*p+1}')
                qk(1-cur,nk,H[nh],0); ex(0,4)
                pv(1-cur,pvb,pi,0); ex(4,8); cv(0,0)
                qk(1-cur,nk,H[nh],1); ex(8,12); cv(1,0)
                pv(1-cur,pvb,pi,1); ex(12,16); cv(0,1); cv(1,1)
        A(f'v_add_u32 v{vK0}, 2048, v{vK0}\nv_add_u32 v{vK1}, 256, v{vK1}\nv_add_u32 v11, 2560, v11\ns_add_u32 s{sIt}, s{sIt}, 1\ns_cmp_lt_u32 s{sIt}, 32\ns_cbranch_scc1 {lp}')
        pv(1,1,3,0); pv(1,1,3,1)
        for i in range(4):
            o=S[0]
            for r in range(11): A(f'v_accvgpr_read_b32 v{o+r}, a{16*i+r}')
            A(f'v_mov_b32 v{o+11}, v{o+10}\nv_permlane32_swap_b32 v{o+10}, v{o+11}\nv_rcp_f32 v{o+10}, v{o+10}')
            for r in range(10): A(f'v_mul_f32 v{o+r}, v{o+10}, v{o+r}')
            for p in range(5): A(f'v_cvt_pk_bf16_f32 v{OS+5*H[i]+p}, v{o+2*p}, v{o+2*p+1}')
    OSTR=1168
    A(f'''
s_barrier
v_mul_u32_u24 v9, {OSTR}, v3
v_lshl_add_u32 v10, v4, 4, v9
v_lshl_add_u32 v9, v4, 3, v9
s_mul_i32 s{sT0}, s{sW}, 288
v_add_u32 v9, s{sT0}, v9
''')
    for i in range(8):
        A(f'ds_write2_b32 v9, v{OS+5*i}, v{OS+5*i+1} offset0:{9*i} offset1:{9*i+1}')
        A(f'ds_write2_b32 v9, v{OS+5*i+2}, v{OS+5*i+3} offset0:{9*i+4} offset1:{9*i+5}')
    A('s_mov_b64 exec, 0xffffffff')
    for i in range(8): A(f'ds_write_b32 v9, v{OS+5*i+4} offset:{36*i+32}')
    A('s_mov_b64 exec, -1\ns_waitcnt lgkmcnt(0)\ns_barrier')
    for ks in range(36): A(f'ds_read_b128 {q4(XF+4*ks)}, v10 offset:{32*ks}')
    A('s_waitcnt lgkmcnt(0)\ns_barrier')
    stream_gemm(A,'s[44:47]',XF,0,sBase,vD,vT,'o')
    A(f'''
v_mul_u32_u24 v9, 2304, v3
v_lshl_add_u32 v9, v4, 3, v9
v_add_u32 v9, s{sC0}, v9
s_mul_i32 s{sT0}, s{sH}, {32*2304}
''')
    for t in range(5):
        for r in range(16): A(f'v_accvgpr_read_b32 v{168+r}, a{16*t+r}')
        for a in range(4):
            A(f'v_cvt_pk_bf16_f32 v{184+2*a}, v{168+4*a}, v{169+4*a}\nv_cvt_pk_bf16_f32 v{185+2*a}, v{170+4*a}, v{171+4*a}')
            A(f'buffer_store_dwordx2 v[{184+2*a}:{185+2*a}], v9, s[48:51], s{sT0} offen offset:{64*t+16*a} sc1')
    A(f's_branch {end}')
```

```python
from asmgen import *
from common import *
import math, struct

POLLMAX=400000
M32='v_mfma_f32_32x32x16_bf16'
def q4(b,f='v'): return f'{f}[{b}:{b+3}]'
def q16(b,f='v'): return f'{f}[{b}:{b+15}]'
def fbits(x): return struct.unpack('<I',struct.pack('<f',x))[0]

sH,sW = 12,13
sT0,sT1,sT2,sT3=36,37,38,39
sPoll=40

def lane_setup(A):
    A('''
v_and_b32 v1, 63, v0
v_lshlrev_b32 v2, 4, v1
v_and_b32 v3, 31, v1
v_lshrrev_b32 v4, 5, v1
v_bfe_u32 v5, v1, 4, 1
v_bfe_u32 v6, v1, 2, 2
v_and_b32 v7, 3, v1
''')

def wait_init(A, fail, dbg='s[66:67]'):
    lp=A.label('WI')
    A(f'''
s_mov_b32 s{sPoll}, 0
v_mov_b32 v8, 0
{lp}:
global_load_dword v9, v8, {dbg} offset:{D_INIT} sc1
s_add_u32 s{sPoll}, s{sPoll}, 1
s_cmp_gt_u32 s{sPoll}, {POLLMAX}
s_cbranch_scc1 {fail}
v_readfirstlane_b32 s{sT1}, v9
s_cmp_eq_u32 s{sT1}, 0
s_cbranch_scc1 {lp}
''')

def poll_ge(A, fail, soff, need, offs, tmp, cache=None, sleep=4):
    lp=A.label('PG'); ok=A.label('PK')
    if cache is not None: A(f's_cmp_ge_u32 s{cache}, s{need}\ns_cbranch_scc1 {ok}')
    res=cache if cache is not None else sT3
    A(f's_mov_b32 s{sPoll}, 0\nv_mov_b32 v{tmp}, 0\n{lp}:')
    for i,o in enumerate(offs): A(f'buffer_load_dword v{tmp+1+i}, v{tmp}, s[4:7], s{soff} offen offset:{o} sc1')
    A(f's_add_u32 s{sPoll}, s{sPoll}, 1\ns_cmp_gt_u32 s{sPoll}, {POLLMAX}\ns_cbranch_scc1 {fail}')
    for i in range(1,len(offs)): A(f'v_min_u32 v{tmp+1}, v{tmp+1}, v{tmp+1+i}')
    A(f'v_readfirstlane_b32 s{res}, v{tmp+1}\ns_cmp_ge_u32 s{res}, s{need}\ns_cbranch_scc1 {ok}\ns_sleep {sleep}\ns_branch {lp}\n{ok}:')

def emit_proj(A, kind, fail, end, X=()):
    wname={'K':'B_Wk','V':'B_Wv','Q':'B_Wq'}[kind]
    A(f'''
s_load_dwordx2 s[4:5], s[0:1], {KA['ws']}
s_load_dwordx2 s[8:9], s[0:1], {KA[wname]}
s_load_dwordx2 s[16:17], s[0:1], {KA['B_x']}
s_load_dwordx2 s[66:67], s[0:1], {KA['dbg']}
''')
    lane_setup(A)
    vA=10
    vX=14; vX2=250; vR=244; sXs=34
    XB=[16,32]
    WB=48
    ACC=0
    A(f'''
v_lshrrev_b32 v8, 4, v1
v_and_b32 v9, 15, v1
v_lshlrev_b32 v15, 2, v8
v_xor_b32 v9, v9, v15
v_lshlrev_b32 v9, 4, v9
v_lshl_add_u32 v9, v8, 13, v9
s_lshl_b32 s{sT0}, s{sH}, 8
v_add_u32 v9, s{sT0}, v9
v_lshl_add_u32 v8, v4, 5, v6
v_lshlrev_b32 v8, 8, v8
v_lshl_add_u32 v8, v5, 5, v8
v_lshl_add_u32 v8, v7, 3, v8
''')
    for E in range(4): A(f'v_xor_b32 v15, {E}, v6\nv_lshl_add_u32 v{vA+E}, v15, 6, v8')
    A(f'''
v_lshrrev_b32 v15, 3, v1
v_mul_u32_u24 v{vX}, 1152, v15
v_lshrrev_b32 v15, 4, v1
v_and_b32 v{vX2}, 7, v1
v_xor_b32 v15, v15, v{vX2}
v_xor_b32 v{vX2}, 4, v15
v_lshl_add_u32 v{vX2}, v{vX2}, 4, v{vX}
v_lshl_add_u32 v{vX}, v15, 4, v{vX}
s_lshl_b32 s{sXs}, s{sW}, 12
s_add_u32 s{sXs}, s{sXs}, 147456
v_bfe_u32 v15, v3, 1, 3
v_lshlrev_b32 v{vR}, 2, v4
v_xor_b32 v15, v15, v{vR}
v_lshlrev_b32 v{vR+3}, 7, v3
v_add_u32 v{vR+3}, s{sXs}, v{vR+3}
v_lshl_add_u32 v{vR}, v15, 4, v{vR+3}
v_xor_b32 v{vR+1}, 16, v{vR}
v_xor_b32 v{vR+2}, 32, v{vR}
v_xor_b32 v{vR+3}, 48, v{vR}
s_waitcnt lgkmcnt(0)
s_mov_b32 s6, {WS_BYTES}
s_mov_b32 s7, 0x20000
s_mov_b32 s10, {576*8192}
s_mov_b32 s11, 0x20000
s_mov_b32 s18, {2048*1152}
s_mov_b32 s19, 0x20000
s_mul_i32 s{sT0}, s{sW}, {36*1024}
s_mul_i32 s{sT1}, s{sW}, {36*4*8192}
s_mov_b32 s{sT2}, 0
''')
    A(f's_lshl_b32 s{sT3}, s{sH}, 2\ns_add_u32 s{sT3}, s{sT3}, s{sW}\ns_mul_i32 s{sT3}, s{sT3}, 18432\nv_lshlrev_b32 v15, 6, v1')
    for i in range(5): A(f'buffer_load_dword v{100+i}, v15, s[16:19], s{sT3} offen\ns_add_u32 s{sT3}, s{sT3}, 4096')
    lp=A.label('WD')
    A(f'''
{lp}:
s_mov_b32 m0, s{sT0}
s_add_u32 s{sT0}, s{sT0}, 1024
buffer_load_dwordx4 v9, s[8:11], s{sT1} offen lds
s_add_u32 s{sT1}, s{sT1}, {4*8192}
s_add_u32 s{sT2}, s{sT2}, 1
s_cmp_lt_u32 s{sT2}, 36
s_cbranch_scc1 {lp}
''')
    sSeg,sXo,sCc,sRound,sOut,sFl,sKVok,sMok,sFlM,sNeed=20,21,22,23,24,25,26,27,28,29
    SEGX=32*1152
    A(f'''
s_mov_b32 s{sSeg}, s{sW}
s_mul_i32 s{sXo}, s{sW}, {SEGX}
s_mov_b32 s{sRound}, 0
s_mov_b32 s{sKVok}, 0
s_mov_b32 s{sMok}, 0
s_lshl_b32 s{sFl}, s{sH}, 9
s_add_u32 s{sFl}, s{sFl}, {F_KV+(256 if kind=='V' else 0)}
s_lshl_b32 s{sFlM}, s{sH}, 7
s_add_u32 s{sFlM}, s{sFlM}, {F_M}
''')
    def xdma():
        A(f's_mov_b32 m0, s{sXs}')
        for i in range(4):
            A(f's_add_u32 s{sT3}, s{sXo}, {i*(9216-1024)}')
            A(f'buffer_load_dwordx4 v{vX2 if i%2 else vX}, s[16:19], s{sT3} offen offset:{1024*i} lds')
        A(f's_add_u32 s{sXo}, s{sXo}, 128')
    def xread(buf):
        for j in range(4): A(f'ds_read_b128 {q4(buf+4*j)}, v{vR+j}')
    xdma()
    if kind=='Q':
        A(f'v_lshlrev_b32 v15, 2, v4\nv_mov_b32 v8, {fbits(-1e30):#x}')
        for r in range(16):
            A(f'v_add_u32 v9, {8*(r//4)+r%4}, v15\nv_cmp_gt_u32 vcc, v9, v3\nv_cndmask_b32 v{80+r}, 0, v8, vcc')
    wait_init(A, fail)
    A('s_waitcnt vmcnt(0)\ns_barrier')
    xread(XB[0]); A('s_waitcnt lgkmcnt(0)'); xdma()
    A('s_memrealtime s[90:91]\ns_waitcnt lgkmcnt(0)\ns_mov_b32 s99, s90')
    seg=A.label('SEG'); cl=A.label('CC')
    A(f'{seg}:')
    for i in range(64): A(f'v_accvgpr_write_b32 a{i}, 0')
    def wread(slot,E,j,base):
        if 'notr' in X: return
        for x in range(2): A(f'ds_read_b64_tr_b16 v[{WB+4*slot+2*x}:{WB+4*slot+2*x+1}], v{vA+E} offset:{base+(8*j+4*x)*256}')
    def chunk(cc):
        buf,nbuf,base,last,first=XB[cc%2],XB[(cc+1)%2],(cc%3)*16384,cc==8,cc==0
        seq=[(j,E) for j in range(4) for E in range(4)]
        if first:
            for n in range(6): wread(n%8,seq[n][1],seq[n][0],base)
        for n,(j,E) in enumerate(seq):
            m=n+6
            if n==11:
                if 'nox' not in X: A('s_waitcnt vmcnt(0)')
                xread(nbuf)
            if m<16: wread(m%8,seq[m][1],seq[m][0],base)
            elif not last: wread(m%8,seq[m-16][1],seq[m-16][0],base+16384)
            w=q4(WB+4*(n%8)); x=q4(buf+4*j)
            a,b=(x,w) if kind=='V' else (w,x)
            A(f'{M32} {q16(16*E,"a")}, {a}, {b}, {q16(16*E,"a")}')
            if n==13:
                A(f's_waitcnt lgkmcnt({0 if last else 6})')
                if cc==7: A(f's_add_u32 s{sXo}, s{sXo}, {4*SEGX-9*128}')
                xdma()
    for cc in range(9):
        chunk(cc)
        if cc in (2,5):
            for E in range(4): A(f'v_add_u32 v{vA+E}, {3*16384}, v{vA+E}')
    for E in range(4): A(f'v_subrev_u32 v{vA+E}, {6*16384}, v{vA+E}')
    PK=96
    for E in range(4):
        for r in range(16): A(f'v_accvgpr_read_b32 v{128+r}, a{16*E+r}')
        for j in range(2):
            for t,a in enumerate((j,j+2)):
                for p in range(2): A(f'v_cvt_pk_bf16_f32 v{PK+8*E+4*j+2*t+p}, v{128+4*a+2*p}, v{128+4*a+2*p+1}')
    A(f's_lshl_b32 s{sOut}, s{sSeg}, 5\ns_add_u32 s{sOut}, s{sOut}, s{sH}')
    if kind in 'KV':
        A(f's_lshl_b32 s{sOut}, s{sOut}, 14\ns_add_u32 s{sOut}, s{sOut}, {WS_KV+(8192 if kind=="V" else 0)}\ns_add_u32 s{sT0}, s{sOut}, 4096')
        for p in range(8 if 'nost' not in X else 0): A(f'buffer_store_dwordx4 {q4(PK+4*p)}, v2, s[4:7], s{sOut if p<4 else sT0} offen offset:{1024*(p%4)} sc1')
        for i in range(16): A(f'v_mov_b32 v{XB[0]+i}, v{XB[1]+i}')
        nf=A.label('NF')
        A(f'''
s_add_u32 s{sRound}, s{sRound}, 1
s_waitcnt vmcnt(0)
s_barrier
s_cmp_lg_u32 s{sW}, 0
s_cbranch_scc1 {nf}
v_mov_b32 v8, 0
v_mov_b32 v9, s{sRound}
buffer_store_dword v9, v8, s[4:7], s{sFl} offen sc1
{nf}:
''')
    else:
        c=math.log2(math.e)/math.sqrt(128.0)
        KB=128
        VB=160; VM=192; S=208; SM=224;
        sKVb,sKMb,sVMb,sOb=30,31,32,33
        A(f'''
s_lshl_b32 s{sKVb}, s{sOut}, 14
s_add_u32 s{sKVb}, s{sKVb}, {WS_KV}
s_lshl_b32 s{sKMb}, s{sOut}, 11
s_add_u32 s{sKMb}, s{sKMb}, {WS_KM}
s_lshl_b32 s{sVMb}, s{sOut}, 12
s_add_u32 s{sVMb}, s{sVMb}, {WS_VM}
s_lshl_b32 s{sOb}, s{sOut}, 13
s_add_u32 s{sOb}, s{sOb}, {WS_O}
s_add_u32 s{sNeed}, s{sRound}, 1
''')
        poll_ge(A,fail,sFl,sNeed,[0,256],240,cache=sKVok)
        for p in range(16):
            if p%4==0 and p: A(f's_add_u32 s{sKVb}, s{sKVb}, 4096')
            A(f'buffer_load_dwordx4 {q4(KB+4*p)}, v2, s[4:7], s{sKVb} offen offset:{1024*(p%4)} sc1')
        for p in range(8): A(f'{M32} {q16(S)}, {q4(KB+4*p)}, {q4(PK+4*p)}, {q16(80) if p==0 else q16(S)}')
        for i in range(16): A(f'v_mov_b32 v{XB[0]+i}, v{XB[1]+i}')
        A(f'''
v_and_b32 v8, 7, v1
v_lshlrev_b32 v8, 4, v8
v_lshl_add_u32 v8, v4, 7, v8
v_and_b32 v9, 15, v1
v_lshlrev_b32 v9, 4, v9
v_lshl_add_u32 v9, v4, 8, v9
v_lshl_add_u32 v9, v5, 3, v9
s_add_u32 s{sNeed}, s{sSeg}, 1
''')
        poll_ge(A,fail,sFlM,sNeed,[0],240,cache=sMok,sleep=2)
        for p in range(8): A(f'buffer_load_dwordx4 {q4(KB+4*p)}, v8, s[4:7], s{sKMb} offen offset:{256*p} sc1')
        for E in range(4):
            for hf in range(2): A(f'buffer_load_dwordx2 v[{VM+4*E+2*hf}:{VM+4*E+2*hf+1}], v9, s[4:7], s{sVMb} offen offset:{1024*E+512*hf} sc1')
        mx,t=240,241
        A(f'v_max3_f32 v{mx}, v{S}, v{S+1}, v{S+2}')
        for r in range(3,15,2): A(f'v_max3_f32 v{mx}, v{mx}, v{S+r}, v{S+r+1}')
        A(f'v_max_f32 v{mx}, v{mx}, v{S+15}')
        for p in range(8): A(f'{M32} {q16(SM)}, {q4(KB+4*p)}, {q4(PK+4*p)}, {"0" if p==0 else q16(SM)}')
        A(f'''
s_mov_b32 s{sT0}, {fbits(c):#x}
v_max3_f32 v{mx}, v{mx}, v{SM}, v{SM+1}
v_max3_f32 v{mx}, v{mx}, v{SM+2}, v{SM+3}
v_mov_b32 v{t}, v{mx}
v_permlane32_swap_b32 v{mx}, v{t}
v_max_f32 v{mx}, v{mx}, v{t}
v_mul_f32 v{mx}, s{sT0}, v{mx}
''')
        regs=[S+r for r in range(16)]+[SM+r for r in range(4)]
        for r in regs: A(f'v_fma_f32 v{r}, v{r}, s{sT0}, -v{mx}')
        for r in regs: A(f'v_exp_f32 v{r}, v{r}')
        P=KB
        for j in range(2):
            for tt,a in enumerate((j,j+2)):
                for p in range(2): A(f'v_cvt_pk_bf16_f32 v{P+4*j+2*tt+p}, v{S+4*a+2*p}, v{S+4*a+2*p+1}')
        for tt in range(2):
            for p in range(2): A(f'v_cvt_pk_bf16_f32 v{P+8+2*tt+p}, v{SM+2*p}, v{SM+2*p+1}')
        for E in range(4):
            A(f'{M32} {q16(16*E,"a")}, {q4(VB+8*E)}, {q4(P)}, 0')
            A(f'{M32} {q16(16*E,"a")}, {q4(VB+8*E+4)}, {q4(P+4)}, {q16(16*E,"a")}')
            A(f'{M32} {q16(16*E,"a")}, {q4(VM+4*E)}, {q4(P+8)}, {q16(16*E,"a")}')
            if E==0:
                for r in regs[1:10]: A(f'v_add_f32 v{S}, v{S}, v{r}')
            if E==1:
                for r in regs[10:]: A(f'v_add_f32 v{S}, v{S}, v{r}')
        A(f'v_mov_b32 v{t}, v{S}\nv_permlane32_swap_b32 v{S}, v{t}\nv_add_f32 v{S}, v{S}, v{t}\nv_rcp_f32 v{mx}, v{S}')
        A(f's_add_u32 s{sT0}, s{sOb}, 4096')
        for E in range(4):
            for r in range(16): A(f'v_accvgpr_read_b32 v{S+r}, a{16*E+r}')
            for r in range(16): A(f'v_mul_f32 v{S+r}, v{mx}, v{S+r}')
            for j in range(2):
                for tt,a in enumerate((j,j+2)):
                    for p in range(2): A(f'v_cvt_pk_bf16_f32 v{PK+8*E+4*j+2*tt+p}, v{S+4*a+2*p}, v{S+4*a+2*p+1}')
                p=2*E+j
                A(f'buffer_store_dwordx4 {q4(PK+4*p)}, v2, s[4:7], s{sOb if p<4 else sT0} offen offset:{1024*(p%4)} sc1')
        A(f'''
s_lshl_b32 s{sT0}, s{sOut}, 2
s_add_u32 s{sT0}, s{sT0}, {F_O}
v_mov_b32 v8, 0
v_mov_b32 v9, 1
s_add_u32 s{sRound}, s{sRound}, 1
s_waitcnt vmcnt(0)
buffer_store_dword v9, v8, s[4:7], s{sT0} offen sc1
''')
    A(f'''
s_add_u32 s{sSeg}, s{sSeg}, 4
s_cmp_lt_u32 s{sSeg}, 64
s_cbranch_scc1 {seg}
s_branch {end}
''')

def emit_outproj(A, fail, end):
    A(f'''
s_load_dwordx2 s[4:5], s[0:1], {KA['ws']}
s_load_dwordx2 s[8:9], s[0:1], {KA['B_Wo']}
s_load_dwordx2 s[16:17], s[0:1], {KA['out']}
s_load_dwordx2 s[66:67], s[0:1], {KA['dbg']}
''')
    lane_setup(A)
    sZ,sNb,sSeg,sSrc,sLb,sPar,sFl=20,21,22,23,24,25,26
    A(f'''
s_cmp_ge_u32 s{sH}, 18
s_cselect_b32 s{sZ}, 1, 0
s_mul_i32 s{sT0}, s{sZ}, 18
s_sub_u32 s{sNb}, s{sH}, s{sT0}
v_lshrrev_b32 v8, 2, v1
v_mul_u32_u24 v8, 1152, v8
v_lshl_add_u32 v8, v7, 4, v8
s_lshl_b32 s{sT0}, s{sNb}, 6
v_add_u32 v8, s{sT0}, v8
s_mul_i32 s{sLb}, s{sW}, 32768
v_lshl_add_u32 v9, v4, 2, v6
v_lshlrev_b32 v9, 6, v9
v_lshl_add_u32 v9, v5, 5, v9
v_lshl_add_u32 v9, v7, 3, v9
v_add_u32 v9, s{sLb}, v9
s_waitcnt lgkmcnt(0)
s_mov_b32 s6, {WS_BYTES}
s_mov_b32 s7, 0x20000
s_mov_b32 s10, {4096*1152}
s_mov_b32 s11, 0x20000
s_mov_b32 s18, {2048*2304}
s_mov_b32 s19, 0x20000
s_mul_i32 s{sSrc}, s{sW}, {1024*1152}
''')
    def dma(hd):
        for i in range(8):
            A(f's_add_u32 m0, s{sLb}, {(hd%4)*8192+1024*i}\nbuffer_load_dwordx4 v8, s[8:11], s{sSrc} offen lds\ns_add_u32 s{sSrc}, s{sSrc}, {16*1152}')
    for hd in range(4): dma(hd)
    for hd in range(8):
        A(f's_waitcnt vmcnt({8*min(3,7-hd)})')
        for E in range(4):
            for j in range(2):
                for x in range(2):
                    r=(hd*8+E*2+j)*4+2*x
                    A(f'ds_read_b64_tr_b16 a[{r}:{r+1}], v9 offset:{(hd%4)*8192+(32*E+16*x+8*j)*64}')
        if hd+4<8:
            A('s_waitcnt lgkmcnt(0)'); dma(hd+4)
    A(f'''
v_mul_u32_u24 v10, 2304, v3
v_lshl_add_u32 v10, v4, 3, v10
s_lshl_b32 s{sT0}, s{sNb}, 6
s_lshl_b32 s{sT1}, s{sW}, 4
s_add_u32 s{sT0}, s{sT0}, s{sT1}
s_add_u32 s{sT0}, s{sT0}, 1152
v_add_u32 v10, s{sT0}, v10
s_lshl_b32 s{sT0}, s{sW}, 12
v_add_u32 v11, s{sT0}, v2
s_lshl_b32 s{sT0}, s{sW}, 10
v_add_u32 v12, s{sT0}, v2
v_and_b32 v13, 7, v1
v_lshlrev_b32 v13, 2, v13
s_lshl_b32 s{sT0}, s{sW}, 5
v_add_u32 v13, s{sT0}, v13
s_mov_b32 s{sSeg}, s{sZ}
''')
    wait_init(A, fail)
    A('s_waitcnt lgkmcnt(0)\ns_barrier')
    seg=A.label('OSEG'); lp=A.label('OP'); ok=A.label('OK')
    OB=32; NB=48; ACC=16
    A(f'''
{seg}:
s_lshl_b32 s{sFl}, s{sSeg}, 7
s_add_u32 s{sFl}, s{sFl}, {F_O}
s_mov_b32 s{sPoll}, 0
{lp}:
buffer_load_dword v14, v13, s[4:7], s{sFl} offen sc1
s_add_u32 s{sPoll}, s{sPoll}, 1
s_cmp_gt_u32 s{sPoll}, {POLLMAX}
s_cbranch_scc1 {fail}
v_cmp_eq_u32 vcc, 0, v14
s_cbranch_vccz {ok}
s_sleep 2
s_branch {lp}
{ok}:
s_lshl_b32 s{sSrc}, s{sSeg}, 18
s_lshl_b32 s{sT0}, s{sW}, 16
s_add_u32 s{sSrc}, s{sSrc}, s{sT0}
s_add_u32 s{sSrc}, s{sSrc}, {WS_O}
''')
    def ld(k):
        if k%4==0 and k: A(f's_add_u32 s{sSrc}, s{sSrc}, 4096')
        A(f'buffer_load_dwordx4 {q4(OB+4*(k%NB))}, v2, s[4:7], s{sSrc} offen offset:{1024*(k%4)} sc1')
    for k in range(NB): ld(k)
    for k in range(64):
        A(f'{M32} {q16(ACC)}, {q4(4*k,"a")}, {q4(OB+4*(k%NB))}, {"0" if k==0 else q16(ACC)}')
        if k+NB<64: ld(k+NB)
    for a in range(4): A(f'ds_write_b128 v11, {q4(ACC+4*a)} offset:{1024*a}')
    A('s_waitcnt lgkmcnt(0)\ns_barrier')
    for w in range(4): A(f'ds_read_b128 {q4(OB+4*w)}, v12 offset:{4096*w}')
    for w in range(1,4):
        for b in range(4): A(f'v_add_f32 v{OB+b}, v{OB+b}, v{OB+4*w+b}')
    A(f'''
v_cvt_pk_bf16_f32 v{OB}, v{OB}, v{OB+1}
v_cvt_pk_bf16_f32 v{OB+1}, v{OB+2}, v{OB+3}
s_mul_i32 s{sT0}, s{sSeg}, {32*2304}
buffer_store_dwordx2 v[{OB}:{OB+1}], v10, s[16:19], s{sT0} offen sc1
v_xor_b32 v11, 16384, v11
v_xor_b32 v12, 16384, v12
s_add_u32 s{sSeg}, s{sSeg}, 2
s_cmp_lt_u32 s{sSeg}, 64
s_cbranch_scc1 {seg}
s_branch {end}
''')

def emit_flaginit(A, end):
    A(f'''
s_load_dwordx2 s[4:5], s[0:1], {KA['ws']}
s_load_dwordx2 s[66:67], s[0:1], {KA['dbg']}
v_lshlrev_b32 v2, 4, v0
v_mov_b32 v4, 0
v_mov_b32 v5, 0
v_mov_b32 v6, 0
v_mov_b32 v7, 0
s_waitcnt lgkmcnt(0)
s_mov_b32 s6, {WS_BYTES}
s_mov_b32 s7, 0x20000
''')
    for i in range(FLAG_BYTES//4096): A(f's_mov_b32 s{sT0}, {WS_FLAGS+4096*i}\nbuffer_store_dwordx4 v[4:7], v2, s[4:7], s{sT0} offen sc1')
    A(f'''
s_waitcnt vmcnt(0)
s_barrier
s_cmp_lg_u32 s{sW}, 0
s_cbranch_scc1 {end}
v_mov_b32 v5, 1
s_mov_b64 exec, 1
global_store_dword v4, v5, s[66:67] offset:{D_INIT} sc1
s_branch {end}
''')
```

```python
from asmgen import *
from common import *
import math, struct

L_M  = 0
L_O  = 8192
L_QK = 10240
L_MX = L_QK+4096
L_C  = L_MX+1024
L_W  = L_C+64
WREG = 36864
assert L_W+4*WREG<=163840

vL16,vIdx,vS16,vS16b,vWl,vYw,vOw,vOr,vMw,vH1st,vH1s1,vH2st,vKx,vMl_,vSel,vCon = range(16)
KX = 16
VX = 24
T = lambda i: 32+i
sH,sW,sStep,sU = 12,13,14,15
sTag,sH1ld,sKVc = 16,17,18
sH2c,sH2n,sH2p = 19,20,21
sKn,sKMo,sVMo = 24,25,26
sScale = 27
sMask = 28
sT0,sT1,sT2,sT3 = 36,37,38,39
sPoll = 40
sH2ld = 41
sFlagM = 42
sFlagKV = 43
sKVok = 44
sH2pz = 45
sHi = 46
sW3k = 48
s32k = 49
sMode = 50
sW256 = 52
sStep1 = 53
sPrb = 54
sFlg = 55
sLate = 22
sSc2 = 70
sLo20 = 69
sHi20 = 23
sPf = 27
sFlagMw = 51
sTr = 56
sSt = 80
POLLMAX=200000

TORD=[0,2,4,6,8,1,3,5,7]
QKPOS=[1,3,7,11,14,18,22,25,28,32]
QKBUF=[0,1,0,1,0,1,0,1,0,1]
def operand_map():
    qk_order=[]
    for t in TORD:
        qk_order += [('q',t,0),('q',t,1),('k',t,0),('k',t,1)]
    lds_qk = [qk_order[n] for n in QKPOS]
    lds_o = [('o',0,2),('o',0,3),('o',2,0),('o',3,0),('o',3,1),('o',1,2),('o',1,3),('o',3,3)]
    m={}
    li=0
    for op in lds_o+lds_qk:
        m[op]=('l',li); li+=1
    rest=[op for op in qk_order if op not in m]
    rest+=[('v',t,c) for t in range(9) for c in range(2)]
    rest+=[('o',k,P) for k in range(4) for P in range(4) if ('o',k,P) not in m]
    rest+=[('s',0),('s',1)]
    regs=[('v',80+8*i) for i in range(22)]+[('a',8*i) for i in range(32)]
    assert len(rest)==len(regs)==54
    for op,r in zip(rest,regs): m[op]=r
    return m, qk_order, lds_qk, lds_o

def R(loc,off=0,n=8):
    return vr(loc[1]+off,n,loc[0])
def q4(b): return f'v[{b}:{b+3}]'

def emit_chain_init(A, m):
    l,n,g,n7,n8,g1,g2,r4,cc=['v%d'%i for i in range(32,41)]
    t0,t1,t2='v41','v42','v43'
    A(f"""
s_load_dwordx2 s[4:5], s[0:1], {KA['ws']}
s_load_dwordx2 s[56:57], s[0:1], {KA['B_Wq']}
s_load_dwordx2 s[58:59], s[0:1], {KA['B_Wk']}
s_load_dwordx2 s[60:61], s[0:1], {KA['B_Wv']}
s_load_dwordx2 s[62:63], s[0:1], {KA['B_Wo']}
s_load_dwordx2 s[64:65], s[0:1], {KA['B_mem0']}
s_load_dwordx2 s[66:67], s[0:1], {KA['dbg']}
v_and_b32 {l}, 63, v0
v_and_b32 {n}, 15, {l}
v_lshrrev_b32 {g}, 4, {l}
v_lshlrev_b32 v{vL16}, 4, {l}
v_and_b32 {n7}, 7, {n}
v_lshrrev_b32 {n8}, 3, {n}
v_and_b32 {g1}, 1, {g}
v_lshrrev_b32 {g2}, 1, {g}
v_lshrrev_b32 {r4}, 2, {n}
v_and_b32 {cc}, 3, {n}
v_mov_b32 {t0}, 0x4444
v_mov_b32 {t1}, 0xeeee
v_cmp_eq_u32 s[{sHi}:{sHi+1}], 1, {n8}
v_cndmask_b32 v{vIdx}, {t0}, {t1}, s[{sHi}:{sHi+1}]
s_mul_i32 s{sT0}, s{sW}, {WREG}
s_add_u32 s{sT0}, s{sT0}, {L_W}
v_add_u32 v{vWl}, s{sT0}, v{vL16}
s_lshl_b32 s{sT1}, s{sW}, 10
v_add_u32 v{vYw}, s{sT1}, v{vL16}
v_lshlrev_b32 {t0}, 7, {g}
v_lshl_add_u32 {t0}, {n7}, 4, {t0}
v_and_b32 v{vOr}, 255, {t0}
s_lshl_b32 s{sT1}, s{sW}, 9
v_add_u32 v{vOw}, s{sT1}, {t0}
s_lshl_b32 s{sW256}, s{sW}, 8
s_lshl_b32 s{sW3k}, s{sW}, 10
s_cmp_eq_u32 s{sW}, 2
s_cselect_b32 s{sW3k}, 6144, s{sW3k}
s_cmp_eq_u32 s{sW}, 3
s_cselect_b32 s{sW3k}, 5120, s{sW3k}
v_add_u32 v{vMw}, s{sW3k}, v{vL16}
; vH1st = (16w + l/8)*4096 + h*128 + (l%8)*16
v_lshrrev_b32 {t0}, 3, {l}
v_lshlrev_b32 {t0}, 12, {t0}
v_lshl_add_u32 {t0}, {n7}, 4, {t0}
s_lshl_b32 s{sT1}, s{sW}, 16
s_lshl_b32 s{sT2}, s{sH}, 7
s_add_u32 s{sT1}, s{sT1}, s{sT2}
v_add_u32 v{vH1st}, s{sT1}, {t0}
; vH1s1 = (64 + 2w + n8)*4096 + h*128 + n7*16 + g1*8
v_lshlrev_b32 {t0}, 12, {n8}
v_lshl_add_u32 {t0}, {n7}, 4, {t0}
v_lshl_add_u32 {t0}, {g1}, 3, {t0}
s_lshl_b32 s{sT1}, s{sW}, 13
s_add_u32 s{sT1}, s{sT1}, s{sT2}
s_add_u32 s{sT1}, s{sT1}, {64*4096}
v_add_u32 v{vH1s1}, s{sT1}, {t0}
s_lshr_b32 s{sU}, s{sH}, 3
s_lshl_b32 s{sU}, s{sU}, 4
s_and_b32 s{sT1}, s{sH}, 7
s_add_u32 s{sU}, s{sU}, s{sT1}
s_lshl_b32 s{sT1}, s{sW}, 3
s_add_u32 s{sU}, s{sU}, s{sT1}
s_add_u32 s{sT1}, s{sH}, 64
s_cmp_eq_u32 s{sW}, 2
s_cselect_b32 s{sU}, s{sT1}, s{sU}
s_cmp_eq_u32 s{sW}, 3
s_cselect_b32 s{sU}, 72, s{sU}
v_lshlrev_b32 {t0}, 4, {n7}
v_lshl_add_u32 {t0}, {g1}, 3, {t0}
v_lshl_add_u32 {t0}, {g2}, 2, {t0}
s_lshl_b32 s{sT1}, s{sU}, 7
v_add_u32 v{vH2st}, s{sT1}, {t0}
s_lshl_b32 s{sT1}, s{sW}, 11
v_lshlrev_b32 {t0}, 9, {g}
v_add_u32 {t0}, s{sT1}, {t0}
v_lshl_add_u32 {t1}, {n}, 4, {t0}
v_mov_b32 v{vKx}, {t1}
v_add_u32 v{vMl_}, s{sT1}, v{vL16}
v_mov_b32 {t0}, 0x3f80
v_mov_b32 {t1}, 0x3f800000
v_and_b32 {t2}, 1, {n}
v_cmp_eq_u32 vcc, 0, {t2}
v_cndmask_b32 v{vSel}, {t1}, {t0}, vcc
v_lshrrev_b32 {t2}, 1, {n7}
v_cmp_eq_u32 s[{sMask}:{sMask+1}], 0, {t2}
v_cmp_eq_u32 s[{sMask+2}:{sMask+3}], 1, {t2}
v_cmp_eq_u32 s[{sMask+4}:{sMask+5}], 2, {t2}
v_cmp_eq_u32 s[{sMask+6}:{sMask+7}], 3, {t2}
v_mov_b32 v{vCon}, {L_C}
v_lshlrev_b32 {t0}, 1, {g1}
v_cmp_eq_u32 vcc, {t0}, {t2}
v_cndmask_b32 v{vS16}, 0, v{vSel}, vcc
v_add_u32 {t0}, 1, {t0}
v_cmp_eq_u32 vcc, {t0}, {t2}
v_cndmask_b32 v{vS16b}, 0, v{vSel}, vcc
; init-only address regs: v16 dma voffset qkv ; v17..v19 tr bases ; v20,v21 mem0 ; v71..v79 Wo dma voffsets
v_lshrrev_b32 {t0}, 2, {l}
v_lshlrev_b32 {t0}, 13, {t0}
v_and_b32 {t1}, 3, {l}
v_lshl_add_u32 {t0}, {t1}, 4, {t0}
s_lshl_b32 s{sT1}, s{sH}, 8
s_lshl_b32 s{sT2}, s{sW}, 6
s_add_u32 s{sT1}, s{sT1}, s{sT2}
v_add_u32 v16, s{sT1}, {t0}
v_lshrrev_b32 {t1}, 1, {r4}
v_and_b32 {t2}, 1, {r4}
v_lshlrev_b32 {t0}, 4, {g2}
v_lshl_add_u32 {t0}, {g1}, 2, {t0}
v_lshl_add_u32 {t0}, {t1}, 3, {t0}
v_add_u32 {t0}, {t0}, {t2}
v_lshlrev_b32 {t0}, 6, {t0}
v_lshl_add_u32 {t0}, {cc}, 3, {t0}
v_add_u32 v17, s{sT0}, {t0}
v_lshlrev_b32 {t0}, 4, {g1}
v_lshl_add_u32 {t0}, {g2}, 2, {t0}
v_add_u32 {t0}, {t0}, {t2}
v_mul_u32_u24 {t0}, 288, {t0}
v_lshl_add_u32 {t0}, {t1}, 6, {t0}
v_lshl_add_u32 {t0}, {cc}, 3, {t0}
v_add_u32 v18, s{sT0}, {t0}
v_lshl_add_u32 {t0}, {g}, 2, {r4}
v_mul_u32_u24 {t0}, 288, {t0}
v_lshl_add_u32 {t0}, {cc}, 3, {t0}
v_add_u32 {t0}, 256, {t0}
v_add_u32 v19, s{sT0}, {t0}
""")
    for ii in range(9):
        A(f"""
v_add_u32 {t0}, {64*ii}, {l}
v_mul_u32_u24 {t1}, 3641, {t0}
v_lshrrev_b32 {t1}, 16, {t1}
v_mul_u32_u24 {t2}, 18, {t1}
v_sub_u32 {t2}, {t0}, {t2}
v_mul_u32_u24 {t1}, 1152, {t1}
v_lshl_add_u32 v{71+ii}, {t2}, 4, {t1}""")
    A(f"""
v_mul_u32_u24 {t0}, 1152, {n7}
v_lshl_add_u32 {t0}, {n8}, 4, {t0}
v_lshl_add_u32 v20, {g}, 5, {t0}
v_mul_u32_u24 {t1}, 288, {g}
v_add_u32 v21, {t0}, {t1}
s_waitcnt lgkmcnt(0)
s_mov_b32 s6, {WS_BYTES}
s_mov_b32 s7, 0x20000
s_mov_b32 s10, {576*8192}
s_mov_b32 s11, 0x20000
s_mov_b32 s68, s{sT0}
s_lshl_b32 s{sH1ld}, s{sU}, 12
s_cmp_lt_u32 s{sU}, 72
s_cselect_b32 s{sH1ld}, s{sH1ld}, {WS_BYTES}
s_cselect_b32 s{sH2pz}, 0, {WS_BYTES}
v_mov_b32 v44, 0
v_mov_b32 v45, 0
v_mov_b32 v46, 0
v_mov_b32 v47, 0
v_mov_b32 v48, 0x3f803f80
v_mov_b32 v49, 0x3f803f80
v_mov_b32 v50, 0x3f803f80
v_mov_b32 v51, 0x3f803f80
v_mov_b32 v52, 0x3f003f00
v_mov_b32 v53, 0x3f003f00
v_mov_b32 v54, -1
""")
    for j in range(4):
        A(f'buffer_store_dwordx4 v[44:47], v{vL16}, s[4:7], s{sH1ld} offen offset:{1024*j} sc1')
    for j in range(3):
        A(f's_add_u32 s{sT1}, s{sH2pz}, {WS_H2+j*H2SZ}')
        A(f'buffer_store_dword v54, v{vH2st}, s[4:7], s{sT1} offen sc1')
    A(f'v_and_b32 v55, 3, {l}\nv_lshlrev_b32 v55, 8, v55\ns_lshl_b32 s{sT1}, s{sH}, 2\ns_add_u32 s{sT1}, s{sT1}, {WS_F1}')
    A(f'buffer_store_dword v44, v55, s[4:7], s{sT1} offen sc1')
    A(f'buffer_store_dword v44, v55, s[4:7], s{sT1} offen offset:256 sc1')
    lab=A.label('CI')
    A(f"""
ds_write_b128 v{vCon}, v[44:47]
ds_write_b128 v{vCon}, v[48:51] offset:16
ds_write_b64 v{vCon}, v[52:53] offset:32
""")
    def arrive():
        A(f"""
s_barrier
s_cmp_lg_u32 s{sW}, 0
s_cbranch_scc1 {lab}
s_mov_b64 exec, 1
v_mov_b32 v22, 0
v_mov_b32 v23, 1
global_atomic_add v22, v23, s[66:67] offset:{D_CBAR}
s_mov_b64 exec, -1
{lab}:
""")
    chunks=[]
    def qkv_chunk(mat,t):
        return dict(kind='w',mat=mat,t=t,size=4096,n=4)
    for k in range(4): chunks.append(dict(kind='o',k=k,size=9216,n=9))
    for t in range(9):
        chunks.append(qkv_chunk('q',t)); chunks.append(qkv_chunk('k',t))
    for t in range(9): chunks.append(qkv_chunk('v',t))
    ptr={'q':56,'k':58,'v':60,'o':62}
    cur_srd=[None]
    def set_srd(mat):
        if cur_srd[0]!=mat:
            A(f's_mov_b32 s8, s{ptr[mat]}\ns_mov_b32 s9, s{ptr[mat]+1}')
            cur_srd[0]=mat
    def issue(c):
        if c['kind']=='w':
            set_srd(c['mat']); t=c['t']
            for ii in range(4):
                d = (144*(t//2)+64*(t%2)+16*ii) if t<8 else (144*ii+128)
                A(f's_add_u32 m0, s68, {c["addr"]+1024*ii}')
                A(f's_mov_b32 s{sT1}, {d*8192}')
                A(f'buffer_load_dwordx4 v16, s[8:11], s{sT1} offen lds')
        else:
            set_srd('o'); k=c['k']
            A(f's_xor_b32 s{sT1}, s{sW}, {k}\ns_lshl_b32 s{sT1}, s{sT1}, 5\ns_lshl_b32 s{sT2}, s{sH}, 7\ns_add_u32 s{sT1}, s{sT1}, s{sT2}\ns_mul_i32 s{sT1}, s{sT1}, 1152\ns_mul_i32 s{sT2}, s{sW}, 288\ns_add_u32 s{sT1}, s{sT1}, s{sT2}')
            for ii in range(9):
                A(f's_add_u32 m0, s68, {c["addr"]+1024*ii}')
                A(f'buffer_load_dwordx4 v{71+ii}, s[8:11], s{sT1} offen lds')
    def ops_of(c):
        if c['kind']=='w': return [(c['mat'],c['t'],0),(c['mat'],c['t'],1)]
        return [('o',c['k'],P) for P in range(4)]+[('sx',c['k'])]
    def tr_reads(c,op,loc):
        f,b=loc
        if c['kind']=='w':
            for jh in range(2):
                for jl in (0,2):
                    off=c['addr']+(32*jh+jl)*64+op[2]*32
                    A(f'ds_read_b64_tr_b16 {vr(b+4*jh+jl,2,f)}, v17 offset:{off}')
        elif op[0]=='o':
            P=op[2]; PP,q=P//2,P%2
            for jh in range(2):
                for jl in (0,2):
                    off=c['addr']+(8*jh+jl)*288+(64*PP+16*q)*2
                    A(f'ds_read_b64_tr_b16 {vr(b+4*jh+jl,2,f)}, v18 offset:{off}')
        else:
            for a in range(2):
                A(f'ds_read_b64_tr_b16 {vr(b+2*a,2,f)}, v19 offset:{c["addr"]+16*a*288}')
    parkregs=[('v',32),('v',40)]+[m[('v',t,c)] for t in range(1,9) for c in range(2)]
    parked={}
    live=[]; nissued=0; nslot=[0]
    def alloc(c):
        a = c['k']*9216 if c['kind']=='o' else (nslot[0]%9)*4096
        if any(not (x['addr']+x['size']<=a or x['addr']>=a+c['size']) for x in live): return None
        if c['kind']!='o': nslot[0]+=1
        return a
    def flush(loc,addr):
        op=parked.pop(loc); m[op]=('l',addr//2048)
        for j in range(2): A(f'ds_write_b128 v{vWl}, {R(loc,4*j,4)} offset:{addr+1024*j}')
    pending_reads=False
    for ci,c in enumerate(chunks):
        while nissued<len(chunks):
            nc=chunks[nissued]
            if sum(x['n'] for x in live)+nc['n']>52: break
            a=alloc(nc)
            if a is None: break
            nc['addr']=a
            if pending_reads:
                A('s_waitcnt lgkmcnt(0)'); pending_reads=False
            issue(nc); live.append(nc); nissued+=1
        assert c in live
        younger=sum(x['n'] for x in live if x is not c)
        A(f's_waitcnt vmcnt({younger})')
        if ci==0: arrive()
        for op in ops_of(c):
            if op[0]=='sx':
                k=op[1]; loc=m[('s',k//2)]; tr_reads(c,op,(loc[0],loc[1]+4*(k%2)))
            elif m[op][0]!='l':
                assert m[op] not in parked
                tr_reads(c,op,m[op])
            else:
                loc=parkregs.pop(0); parked[loc]=op
                tr_reads(c,op,loc)
        pending_reads=True
        live.remove(c)
        if c['kind']=='w' and c['mat']=='v':
            A('s_waitcnt lgkmcnt(0)')
            t=c['t']
            src=[m[('v',t+1,0)],m[('v',t+1,1)]] if t<8 else [('v',32),('v',40)]
            for j in range(2): flush(src[j],c['addr']+2048*j)
    assert not parked and not parkregs
    A(f's_mov_b32 s8, s64\ns_mov_b32 s9, s65\ns_mov_b32 s10, 9216')
    for j in range(3):
        A(f"""
s_mul_i32 s{sT1}, s{sW}, 3
s_add_u32 s{sT1}, s{sT1}, {j}
s_lshr_b32 s{sT2}, s{sT1}, 1
s_mul_i32 s{sT2}, s{sT2}, 288
s_and_b32 s{sT3}, s{sT1}, 1
s_lshl_b32 s{sT3}, s{sT3}, 7
s_add_u32 s{sT2}, s{sT2}, s{sT3}
""")
        if j==2:
            A(f"""
s_cmp_eq_u32 s{sT1}, 8
s_cselect_b32 s{sT2}, 256, s{sT2}
s_cselect_b64 vcc, -1, 0
v_cndmask_b32 v20, v20, v21, vcc
""")
        A(f'buffer_load_dwordx4 v[{T(16)+4*j}:{T(19)+4*j}], v20, s[8:11], s{sT2} offen')
    c = math.log2(math.e)/math.sqrt(128.0)
    cb = struct.unpack('<I',struct.pack('<f',c))[0]
    A(f"""
s_mov_b32 s{sSc2}, {cb:#x}
s_mov_b32 s{sSc2+1}, {cb:#x}
s_mov_b32 s{sLo20}, 0x35800000
s_mov_b32 s{sHi20}, 0x49800000
s_mov_b32 s{sStep}, 0
s_mov_b32 s{sTag}, 1
s_mov_b32 s{s32k}, 32768
s_lshl_b32 s{sLate}, s{sW}, 11
s_add_u32 s{sLate}, s{sLate}, 1024
s_mov_b32 s{sH2c}, {WS_H2}
s_mov_b32 s{sH2n}, {WS_H2+H2SZ}
s_mov_b32 s{sH2p}, {WS_H2+2*H2SZ}
s_lshl_b32 s{sT1}, s{sH}, 14
s_add_u32 s{sKVc}, s{sT1}, {WS_KV}
s_add_u32 s{sKn}, s{sKVc}, {32*16384}
s_lshl_b32 s{sT2}, s{sW}, 11
s_add_u32 s{sPf}, s{sKn}, s{sT2}
s_add_u32 s{sPf}, s{sPf}, 8192
s_mov_b32 m0, {L_W+4*WREG}
s_lshl_b32 s{sT1}, s{sH}, 11
s_add_u32 s{sKMo}, s{sT1}, {WS_KM}
s_lshl_b32 s{sT1}, s{sH}, 12
s_add_u32 s{sVMo}, s{sT1}, {WS_VM}
s_lshl_b32 s{sT1}, s{sW}, 10
s_add_u32 s{sVMo}, s{sVMo}, s{sT1}
s_lshl_b32 s{sT1}, s{sH}, 7
s_add_u32 s{sFlagM}, s{sT1}, {F_M}
s_lshl_b32 s{sT1}, s{sH}, 9
s_add_u32 s{sFlagKV}, s{sT1}, {F_KV}
s_mov_b32 s{sKVok}, 0
s_sub_u32 s{sFlagMw}, s{sFlagM}, {L_C}
s_mov_b32 s{sT1}, {WS_BYTES}
s_cmp_eq_u32 s{sW}, 3
s_cselect_b32 s{sFlagMw}, s{sFlagMw}, s{sT1}
s_add_u32 s{sPrb}, s{sH}, s{sW}
s_and_b32 s{sPrb}, s{sPrb}, 3
s_lshl_b32 s{sPrb}, s{sPrb}, 8
s_add_u32 s{sPrb}, s{sPrb}, {WS_F1}
s_lshl_b32 s{sFlg}, s{sH}, 2
s_add_u32 s{sFlg}, s{sFlg}, {WS_F1}
s_cmp_eq_u32 s{sW}, 3
s_cselect_b32 s{sPrb}, s{sPrb}, s{sT1}
s_cmp_eq_u32 s{sW}, 1
s_cselect_b32 s{sFlg}, s{sFlg}, s{sT1}
""")

def emit_wait_kv(A, need_sreg, fail, tmp):
    lp=A.label('KVW'); ok=A.label('KVOK')
    A(f"""
s_cmp_ge_u32 s{sKVok}, s{need_sreg}
s_cbranch_scc1 {ok}
s_mov_b32 s{sPoll}, 0
{lp}:
v_mov_b32 v{tmp}, 0
buffer_load_dword v{tmp+1}, v{tmp}, s[4:7], s{sFlagKV} offen offset:256 sc1
buffer_load_dword v{tmp}, v{tmp}, s[4:7], s{sFlagKV} offen sc1
s_add_u32 s{sPoll}, s{sPoll}, 1
s_cmp_gt_u32 s{sPoll}, {POLLMAX}
s_cbranch_scc1 {fail}
v_min_u32 v{tmp}, v{tmp}, v{tmp+1}
v_readfirstlane_b32 s{sKVok}, v{tmp}
s_cmp_lt_u32 s{sKVok}, s{need_sreg}
s_cbranch_scc1 {lp}
{ok}:
""")

def emit_chain_loop(A, m, qk_order, lds_qk, lds_o, st, tag, fail, done, D1=0, D2=2, stamps=(), X=()):
    def stamp(i):
        if ('tr',i) in X:
            k=[x for x in X if isinstance(x,tuple)].index(('tr',i))
            sk=A.label('TR')
            A(f's_cmp_gt_u32 s{sStep}, {31 if i in (8,7,13) or (i==0 and k>0) else 30}\ns_cbranch_scc1 {sk}\ns_memtime s[{sTr+2*k}:{sTr+2*k+1}]\n{sk}:')
        if i in stamps:
            k=stamps.index(i)
            A(f's_memtime s[{sSt+2}:{sSt+3}]\ns_waitcnt lgkmcnt(0)')
            if k==0: A(f's_mov_b32 s{sSt}, s{sSt+2}')
            else: A(f's_sub_u32 s{sSt+3}, s{sSt+2}, s{sSt}\ns_add_u32 s{sSt+4+k}, s{sSt+4+k}, s{sSt+3}')
    def delay(n):
        while n>0:
            c=min(n,16); A(f's_nop {c-1}'); n-=c
    Dl=dict(a1=0,a2=65,al=50,b1=40,b2=65,n2=150,d1=190,nl=8,a2w=6,fl=2,vl=16,v4=0,pr=(6,9,12,14),sp=6); Dl.update(D1 if isinstance(D1,dict) else {})
    SM='v_smfmac_f32_16x16x64_bf16'
    M32='v_mfma_f32_16x16x32_bf16'; M16='v_mfma_f32_16x16x16_bf16'
    accq=[T(0),T(4)]; acck=[T(8),T(12)]; ring=[T(16),T(20),T(24)]; stg=[T(28),T(36),VX]
    def ldsop(op,buf):
        A(f'ds_read_b128 {q4(buf)}, v{vWl} offset:{m[op][1]*2048}')
        A(f'ds_read_b128 {q4(buf+4)}, v{vWl} offset:{m[op][1]*2048+1024}')
    def zero(b): A(f'ds_read_b128 {q4(b)}, v{vCon}')
    Q=[]
    def qop(op,buf):
        Q.append(f'ds_read_b128 {q4(buf)}, v{vWl} offset:{m[op][1]*2048}')
        Q.append(f'ds_read_b128 {q4(buf+4)}, v{vWl} offset:{m[op][1]*2048+1024}')
    def pop(k=1):
        for _ in range(k):
            if Q: A(Q.pop(0))
    top=f'CSTEP_{tag}'; p2=f'CP2_{tag}'; barA=f'CBA_{tag}'
    late=T(44); vMl=vMl_; lateL=A.label('LATE')
    A(f'{top}_prep:')
    for i in range(16): A(f'v_mov_b32 v{T(i)}, 0')
    for j in range(2): ldsop(lds_qk[j],stg[j])
    pw=A.label('PW')
    A(f's_cmp_eq_u32 s{sW}, 3\ns_cbranch_scc1 {pw}')
    A(f's_mul_i32 s{sT1}, s{sW}, 3072\nv_add_u32 v{T(45)}, s{sT1}, v{vL16}')
    for j in range(3): A(f'ds_write_b128 v{T(45)}, {q4(T(16)+4*j)} offset:{L_M+1024*j}')
    A(f'{pw}:')
    A('s_waitcnt lgkmcnt(0)\ns_barrier')
    A(f'ds_read_b128 {q4(late)}, v{vMl} offset:{L_M+1024}')
    A('.p2align 6')
    A(f'{barA}:')
    A('s_waitcnt lgkmcnt(0)\ns_barrier')
    stamp(0)
    def mtxt(pos): return f'ds_read_b128 {q4(ring[pos%3])}, v{vL16} offset:{L_M+1024*(TORD[pos%9])}'
    def mread(pos): A(mtxt(pos))
    mread(0); mread(1); Q.append(mtxt(2))
    accv=[T(44),T(28)]
    li=0
    cold=[]
    NL=Dl['nl']
    for n,op in enumerate(qk_order):
        pos=n//4; acc=(accq if op[0]=='q' else acck)[op[2]]
        if m[op][0]=='l':
            b=stg[QKBUF[li]]; B=f'v[{b}:{b+7}]'
        else: B=R(m[op])
        A(f'{SM} {q4(acc)}, {q4(ring[pos%3])}, {B}, v{vIdx}')
        if m[op][0]=='l':
            nx=[j for j in range(li+1,len(lds_qk)) if QKBUF[j]==QKBUF[li]]
            if nx: qop(lds_qk[nx[0]],b)
            li+=1
        if n==NL:
            ck=late; ok=A.label('LOK')
            A(f'ds_write_b128 v{vMl}, {q4(late)} offset:{L_M+1024}'); wpos=len(A.items)
        if n==NL+1: A(f'v_max3_u32 v{ck}, v{late}, v{late+1}, v{late+2}')
        if n==NL+2: A(f'v_max_u32 v{ck}, v{ck}, v{late+3}')
        if n==NL+3:
            A(f'v_cmp_eq_u32 vcc, -1, v{ck}\ns_cbranch_vccnz {lateL}\n{ok}:')
            def c(ok=ok):
                A(f'{lateL}:')
                A(f'buffer_load_dwordx4 {q4(late)}, v{vL16}, s[4:7], s{sT3} offen sc1')
                A(f's_add_u32 s{sPoll}, s{sPoll}, 1\ns_add_u32 s{sSt+12}, s{sSt+12}, 1\ns_cmp_gt_u32 s{sPoll}, {POLLMAX}\ns_cbranch_scc1 {fail}')
                A(f'ds_write_b128 v{vMl}, {q4(late)} offset:{L_M+1024}')
                A(f's_nop 1\nv_max3_u32 v{ck}, v{late}, v{late+1}, v{late+2}\nv_max_u32 v{ck}, v{ck}, v{late+3}')
                A(f'v_cmp_eq_u32 vcc, -1, v{ck}\ns_cbranch_vccnz {lateL}\ns_waitcnt lgkmcnt(0)\ns_branch {ok}')
            cold.append(c)
        if n%4==3:
            if pos<2: Q.insert(0,mtxt(pos+3))
            elif pos==3:
                A('LGKM_A2\ns_barrier'.replace('LGKM_A2',f's_waitcnt lgkmcnt({sum(1 for it in A.items[wpos:] if isinstance(it,Ins) and it.kind=="ds")})'))
                Q.insert(0,mtxt(5)); Q.insert(1,mtxt(6))
            elif pos>3: Q.insert(0,mtxt(pos+3))
        if n!=NL: pop()
        if n==Dl['vl'] and 'nov' not in X: A(f'buffer_load_dwordx4 {q4(VX)}, v{vKx}, s[4:7], s{sKVc} offen sc1')
        if n==Dl['vl']+1 and 'nov' not in X: A(f'buffer_load_dwordx4 {q4(VX+4)}, v{vKx}, s[4:7], s{sKVc} offen offset:256 sc1')
        if n==18: A(f'v_mov_b32 v{T(44)}, -1')
        if n==19: A(f'v_lshlrev_b32 v{T(46)}, 2, v{vL16}')
        if n==20 and 'nopf' not in X: A(f's_mov_b64 exec, 0xffffffff\nbuffer_load_dword v{T(46)}, s[4:7], s{sPf} offen sc1 lds\ns_mov_b64 exec, -1')
        if n==19: A(f's_add_u32 s{sT1}, s{sH2p}, s{sH2pz}\nbuffer_store_dword v{T(44)}, v{vH2st}, s[4:7], s{sT1} offen {st}')
        if n==22: A(f'v_mov_b32 v{T(45)}, s{sStep}')
        if n==23 and 'nofm' not in X: A(f'buffer_store_dword v{T(45)}, v{vCon}, s[4:7], s{sFlagMw} offen sc1')
        if 25<=n<29: A(f'v_mov_b32 v{accv[0]+n-25}, 0')
        if 30<=n<34: A(f'v_mov_b32 v{accv[1]+n-30}, 0')
    stamp(1)
    def vstep(p):
        for c in range(2):
            A(f'{SM} {q4(accv[c])}, {q4(ring[p%3])}, {R(m[("v",TORD[p],c)])}, v{vIdx}')
            if c==1 and p+3<9: Q.insert(0,mtxt(p+3))
            pop()
    def cv(d,a): A(f'v_cvt_pk_bf16_f32 v{d}, v{a}, v{a+1}')
    vstep(0)
    for a in accq: cv(a,a); cv(a+1,a+2)
    tq=[T(32),T(36)]; tk=[T(0),T(4)]
    A(f'{M16} {q4(tq[0])}, v[{accq[0]}:{accq[0]+1}], v[{vS16}:{vS16+1}], 0')
    cv(acck[0],acck[0]); cv(acck[0]+1,acck[0]+2)
    A(f'{M16} {q4(tq[1])}, v[{accq[1]}:{accq[1]+1}], v[{vS16}:{vS16+1}], 0')
    cv(acck[1],acck[1]); cv(acck[1]+1,acck[1]+2)
    A(f'{M16} {q4(tk[0])}, v[{acck[0]}:{acck[0]+1}], v[{vS16}:{vS16+1}], 0')
    A(f'{M16} {q4(tk[1])}, v[{acck[1]}:{acck[1]+1}], v[{vS16}:{vS16+1}], 0')
    qf,kf=T(32),T(8)
    A(f'v_add_u32 v{T(40)}, s{sW256}, v{vOr}')
    cv(qf,tq[0]); cv(qf+1,tq[0]+2); cv(qf+2,tq[1]); cv(qf+3,tq[1]+2)
    X0,X1,Mm=T(4),T(12),T(0)
    cv(kf,tk[0]); cv(kf+1,tk[0]+2)
    A(f'{M32} {q4(X1)}, {q4(KX+4)}, {q4(qf)}, 0')
    cv(kf+2,tk[1]); cv(kf+3,tk[1]+2)
    A(f'{M32} {q4(X0)}, {q4(KX)}, {q4(qf)}, 0')
    A(f'{M32} {q4(Mm)}, {q4(kf)}, {q4(qf)}, 0')
    vstep(1)
    if 'nok' not in X: A(f'buffer_load_dwordx4 {q4(KX)}, v{vKx}, s[4:7], s{sKn} offen sc1')
    if 'nokm' not in X: A(f'buffer_store_dwordx4 {q4(kf)}, v{vOw}, s[4:7], s{sKMo} offen sc1')
    for r in range(4): A(f'v_cndmask_b32 v{X0+r}, v{X0+r}, v{X1+r}, s[{sHi}:{sHi+1}]')
    A(f'ds_write_b128 v{vYw}, {q4(X0)} offset:{L_QK}')
    if 'nok' not in X: A(f'buffer_load_dwordx4 {q4(KX+4)}, v{vKx}, s[4:7], s{sKn} offen offset:256 sc1')
    A(f'ds_write_b128 v{T(40)}, {q4(Mm)} offset:{L_MX}')
    wp=len(A.items)
    vstep(2); vstep(3)
    if Dl['v4']: vstep(4)
    A(f's_waitcnt lgkmcnt({sum(1 for it in A.items[wp:] if isinstance(it,Ins) and it.kind=="ds")})\ns_barrier')
    stamp(2)
    Y=[T(0),T(4),T(8),T(12)]; Mp=[T(32),T(36),T(40),T(16)]
    A(f'ds_read_b128 {q4(Y[0])}, v{vL16} offset:{L_QK}')
    for j in range(1,4): Q.append(f'ds_read_b128 {q4(Y[j])}, v{vL16} offset:{L_QK+1024*j}')
    for j in range(3): Q.append(f'ds_read_b128 {q4(Mp[j])}, v{vOr} offset:{L_MX+256*j}')
    if not Dl['v4']: vstep(4)
    vstep(5); vstep(6)
    Q.append(f'ds_read_b128 {q4(Mp[3])}, v{vOr} offset:{L_MX+256*3}')
    vstep(7); vstep(8)
    pop(len(Q))
    def padd(a,b):
        A(f'v_pk_add_f32 v[{a}:{a+1}], v[{a}:{a+1}], v[{b}:{b+1}]\nv_pk_add_f32 v[{a+2}:{a+3}], v[{a+2}:{a+3}], v[{b+2}:{b+3}]')
    def pmul(a):
        for o in (0,2): A(f'v_pk_mul_f32 v[{a+o}:{a+o+1}], v[{a+o}:{a+o+1}], s[{sSc2}:{sSc2+1}]')
    Ys,Ms=Y[0],Mp[0]
    vm=T(20); P=T(12); ones,half=T(4),T(8)
    accO=[T(16),T(20),T(24),T(28)]; accS=T(44)
    O0,O1,Lr=T(0),T(40),T(44)
    def softpv(fast):
        for r in range(4): A(f'v_exp_f32 v{Ys+r}, v{Ys+r}')
        if fast:
            padd(Mp[0],Mp[1]); padd(Mp[2],Mp[3])
        A(f'v_cvt_pk_bf16_f32 v{P}, v{Ys}, v{Ys+1}\nv_cvt_pk_bf16_f32 v{P+2}, v{Ys}, v{Ys+1}')
        A(f'v_cvt_pk_bf16_f32 v{P+1}, v{Ys+2}, v{Ys+3}\nv_cvt_pk_bf16_f32 v{P+3}, v{Ys+2}, v{Ys+3}')
        if fast:
            padd(Mp[0],Mp[2])
        A(f'v_mov_b32_dpp v{P}, v{P+2} row_ror:8 row_mask:0xf bank_mask:0xc')
        A(f'v_mov_b32_dpp v{P+1}, v{P+3} row_ror:8 row_mask:0xf bank_mask:0xc')
        A(f'v_mov_b32_dpp v{P+2}, v{P+2} row_ror:8 row_mask:0xf bank_mask:0x3')
        A(f'v_mov_b32_dpp v{P+3}, v{P+3} row_ror:8 row_mask:0xf bank_mask:0x3')
        if fast:
            pmul(Ms)
        A(f'{M32} {q4(Lr)}, {q4(ones)}, {q4(P)}, 0')
        A(f'v_exp_f32 v{Ms}, v{Ms}')
        A(f'{M32} {q4(O0)}, {q4(VX)}, {q4(P)}, 0')
        A(f'v_exp_f32 v{Ms+1}, v{Ms+1}')
        A(f'{M32} {q4(O1)}, {q4(VX+4)}, {q4(P)}, 0')
        A(f'v_exp_f32 v{Ms+2}, v{Ms+2}\nv_exp_f32 v{Ms+3}, v{Ms+3}')
        A(f'v_cvt_pk_bf16_f32 v{Ms}, v{Ms}, v{Ms+1}')
        A(f'v_cvt_pk_bf16_f32 v{Ms+1}, v{Ms+2}, v{Ms+3}')
        zero(accO[0])
        A(f'{M16} {q4(Lr)}, v[{half}:{half+1}], v[{Ms}:{Ms+1}], {q4(Lr)}')
        zero(accO[2])
        A(f'{M16} {q4(O0)}, v[{vm}:{vm+1}], v[{Ms}:{Ms+1}], {q4(O0)}')
        zero(accO[3])
        A(f'{M16} {q4(O1)}, v[{vm+2}:{vm+3}], v[{Ms}:{Ms+1}], {q4(O1)}')
    padd(Y[0],Y[1]); padd(Y[2],Y[3]); padd(Y[0],Y[2])
    A(f'ds_read_b128 {q4(ones)}, v{vCon} offset:16\nds_read_b64 v[{half}:{half+1}], v{vCon} offset:32')
    pmul(Ys)
    for c in range(2): cv(vm+2*c,accv[c]); cv(vm+2*c+1,accv[c]+2)
    if 'nokm' not in X: A(f'buffer_store_dwordx4 {q4(vm)}, v{vL16}, s[4:7], s{sVMo} offen sc1')
    A(f's_cmp_eq_u32 s{sStep}, 63\ns_cbranch_scc1 {done}')
    stamp(3)
    softpv(True)
    ostg=[VX,T(36)]
    ra=[T(33),T(34),T(35)]
    rl=T(32); m1,m2=T(10),T(11)
    sm_slow=A.label('SMX'); sm_ok=A.label('SMK')
    A(f'v_xor_b32 v{ra[1]}, 1024, v{vOw}\nv_xor_b32 v{ra[2]}, 1536, v{vOw}')
    A(f'v_mov_b32 v{m2}, s{sHi20}\nv_med3_f32 v{m1}, v{Lr}, s{sLo20}, v{m2}\nv_rcp_f32 v{rl}, v{Lr}')
    A(f'v_cmp_neq_f32 vcc, v{m1}, v{Lr}')
    if 'forceslow' in X: A(f's_branch {sm_slow}')
    else: A(f's_cbranch_vccnz {sm_slow}')
    A(f'{sm_ok}:')
    def c():
        A(f'{sm_slow}:')
        tm=[T(16),T(36),T(24),T(28)]
        for j in range(4): A(f'ds_read_b128 {q4(tm[j])}, v{vL16} offset:{L_QK+1024*j}')
        padd(tm[0],tm[1]); padd(tm[2],tm[3]); padd(tm[0],tm[2])
        for r in range(4): A(f'v_mov_b32 v{Ys+r}, v{T(16)+r}')
        for j in range(4): A(f'ds_read_b128 {q4(tm[j])}, v{vOr} offset:{L_MX+256*j}')
        padd(tm[0],tm[1]); padd(tm[2],tm[3]); padd(tm[0],tm[2])
        for r in range(4): A(f'v_mov_b32 v{Ms+r}, v{T(16)+r}')
        pmul(Ys); pmul(Ms)
        A(f"""
v_max3_f32 v{m1}, v{Ys}, v{Ys+1}, v{Ys+2}
v_max3_f32 v{m2}, v{Ms}, v{Ms+1}, v{Ys+3}
v_max3_f32 v{m1}, v{m1}, v{Ms+2}, v{Ms+3}
v_max_f32 v{m1}, v{m1}, v{m2}
v_max_f32_dpp v{m1}, v{m1}, v{m1} row_ror:8 row_mask:0xf bank_mask:0xf
v_mov_b32 v{m2}, v{m1}
v_permlane32_swap_b32 v{m1}, v{m2}
v_max_f32 v{m1}, v{m1}, v{m2}
v_mov_b32 v{m2}, v{m1}
v_permlane16_swap_b32 v{m1}, v{m2}
v_max_f32 v{m1}, v{m1}, v{m2}
""")
        for r in range(4): A(f'v_sub_f32 v{Ys+r}, v{Ys+r}, v{m1}\nv_sub_f32 v{Ms+r}, v{Ms+r}, v{m1}')
        softpv(False)
        A(f'v_xor_b32 v{ra[1]}, 1024, v{vOw}\nv_xor_b32 v{ra[2]}, 1536, v{vOw}\nv_rcp_f32 v{rl}, v{Lr}\ns_branch {sm_ok}')
    cold.append(c)
    zero(accO[1])
    Q.clear(); qop(lds_o[0],ostg[0]); qop(lds_o[1],ostg[1])
    A(f'v_xor_b32 v{ra[0]}, 512, v{vOw}')
    own=T(12)
    for i,b in enumerate((O0,O0+2,O1,O1+2)):
        A(f'v_pk_mul_f32 v[{b}:{b+1}], v[{b}:{b+1}], v[{rl}:{rl+1}] op_sel_hi:[1,0]')
    for i,b in enumerate((O0,O0+2,O1,O1+2)):
        A(f'v_cvt_pk_bf16_f32 v{own+i}, v{b}, v{b+1}')
    A(f'ds_write_b128 v{vOw}, {q4(own)} offset:{L_O}')
    wp=len(A.items); pop()
    vP,vPa,vFa,vFd=T(32),T(33),T(34),T(35)
    def flag(): A(f'buffer_store_dword v{vFd}, v{vFa}, s[4:7], s{sFlg} offen {st}')
    def probe(): A(f'buffer_load_dword v{vP}, v{vPa}, s[4:7], s{sPrb} offen sc1 ;nw')
    stamp(4)
    fr=[own,T(0),T(4),T(8)]
    def osm(k,P):
        op=('o',k,P)
        if m[op][0]=='l':
            i=lds_o.index(op); b=ostg[i%2]; B=f'v[{b}:{b+7}]'
        else: B=R(m[op])
        A(f'{SM} {q4(accO[P])}, {q4(fr[k])}, {B}, v{vIdx}')
        if m[op][0]=='l' and i+2<len(lds_o): qop(lds_o[i+2],ostg[i%2])
        pop()
    def osg(k):
        loc=m[('s',k//2)]
        A(f'{M32} {q4(accS)}, {q4(fr[k])}, {R(loc,4*(k%2),4)}, {"0" if k==0 else q4(accS)}')
        pop()
    osg(0); osm(0,0); osm(0,1)
    A(f's_waitcnt lgkmcnt({sum(1 for it in A.items[wp:] if isinstance(it,Ins) and it.kind=="ds")})\ns_barrier')
    for k in range(1,4): A(f'ds_read_b128 {q4(fr[k])}, v{ra[k-1]} offset:{L_O}')
    osm(0,2); osm(0,3)
    stamp(5)
    def tagit(r): A(f'v_and_or_b32 v{r}, v{r}, -2, s{sTag}')
    def pack(x,y,so):
        A(f'v_cvt_pk_bf16_f32 v{x}, v{x}, v{x+1}\nv_cvt_pk_bf16_f32 v{x+1}, v{x+2}, v{x+3}')
        tagit(x)
        A(f'v_cvt_pk_bf16_f32 v{x+2}, v{y}, v{y+1}\nv_cvt_pk_bf16_f32 v{x+3}, v{y+2}, v{y+3}')
        tagit(x+2)
        A(f'v_permlane16_swap_b32 v{x+1}, v{x+3}\nv_permlane16_swap_b32 v{x}, v{x+2}')
        A(f'buffer_store_dwordx4 {q4(x)}, v{vH1st}, s[4:7], {so} offen {st}')
    A(f's_add_u32 s{sStep1}, s{sStep}, 1\nv_bfe_u32 v{vFa}, v{vL16}, 0, 6\nv_mov_b32 v{vFd}, s{sStep1}\nv_lshlrev_b32 v{vFa}, 4, v{vFa}')
    if Dl['fl']<0: flag()
    A(f'v_bfe_u32 v{vPa}, v{vL16}, 2, 7\nv_mov_b32 v{vP}, 0')
    cnt=[0]
    def tick():
        if cnt[0]==Dl['fl']: flag()
        if cnt[0] in Dl['pr']: probe()
        cnt[0]+=1
    for k in range(1,4): osg(k); tick()
    for k in range(1,4): osm(k,0); tick()
    for k in range(1,4): osm(k,1); tick()
    A(f'v_cvt_pk_bf16_f32 v{accS}, v{accS}, v{accS+1}\nv_cvt_pk_bf16_f32 v{accS+1}, v{accS+2}, v{accS+3}')
    tagit(accS)
    A(f's_mov_b64 exec, 0xffffffff\nbuffer_store_dwordx2 v[{accS}:{accS+1}], v{vH1s1}, s[4:7], 0 offen {st}\ns_mov_b64 exec, -1')
    pack(accO[0],accO[1],'0')
    sel=T(44); D=T(16)
    for j in range(4): A(f'v_cndmask_b32 v{sel+j}, 0, v{vSel}, s[{sMask+2*j}:{sMask+2*j+1}]')
    for k in range(1,4): osm(k,2); tick()
    for k in range(1,4): osm(k,3); tick()
    pack(accO[2],accO[3],f's{s32k}')
    stamp(6)
    f1=sum((((a^c)|(b^c))<<(a*4+b*2+c)) for a in (0,1) for b in (0,1) for c in (0,1))
    f2=sum(((a|(b^c))<<(a*4+b*2+c)) for a in (0,1) for b in (0,1) for c in (0,1))
    def zacc(lo=0,hi=16):
        for i in range(lo,hi): A(f'v_mov_b32 v{T(i)}, 0 ;nw')
    def h1loads(hd):
        for j in range(4): A(f'buffer_load_dwordx4 {q4(hd+4*j)}, v{vL16}, s[4:7], s{sH1ld} offen offset:{1024*j} sc1')
    def rbody(hd):
        ck=T(20)
        for j in range(4):
            A(f'{M32} {q4(D)}, {q4(hd+4*j)}, {q4(sel)}, {q4(D) if j else "0"}')
            if j==0: A(f'v_bitop3_b32 v{ck}, v{hd}, v{hd+2}, s{sTag} bitop3:{f1:#x}')
            else:
                A(f'v_bitop3_b32 v{ck}, v{ck}, v{hd+4*j}, s{sTag} bitop3:{f2:#x}')
                A(f'v_bitop3_b32 v{ck}, v{ck}, v{hd+4*j+2}, s{sTag} bitop3:{f2:#x}')
        A(f'v_and_b32 v{ck}, 1, v{ck}\nv_cmp_ne_u32 vcc, 0, v{ck}')
    def reduce(between=None):
        p1=A.label('P1'); ok=A.label('P1K')
        hd=T(28)
        stamp(10)
        h1loads(hd)
        if between: between()
        rbody(hd); A(f's_cbranch_vccnz {p1}')
        A(f'{ok}:')
        A(f'v_permlane32_swap_b32 v{D}, v{D+2}\nv_permlane32_swap_b32 v{D+1}, v{D+3}')
        A(f'v_pk_add_f32 v[{D}:{D+1}], v[{D}:{D+1}], v[{D+2}:{D+3}]\nv_cvt_pk_bf16_f32 v{D}, v{D}, v{D+1}')
        A(f'buffer_store_dword v{D}, v{vH2st}, s[4:7], s{sH2c} offen {st}')
        stamp(11)
        def c():
            A(f'{p1}:')
            h1loads(hd)
            A(f's_add_u32 s{sPoll}, s{sPoll}, 1\ns_add_u32 s{sSt+13}, s{sSt+13}, 1\ns_cmp_gt_u32 s{sPoll}, {POLLMAX}\ns_cbranch_scc1 {fail}')
            rbody(hd); A(f's_cbranch_vccz {ok}\ns_branch {p1}')
        cold.append(c)
    def book():
        for j in range(2): ldsop(lds_qk[j],stg[j])
        A(f"""
s_add_u32 s{sH2ld}, s{sH2c}, s{sW3k}
s_add_u32 s{sT2}, s{sH2ld}, 4096
s_add_u32 s{sT3}, s{sH2c}, s{sLate}
s_xor_b32 s{sTag}, s{sTag}, 1
s_mov_b32 s{sT1}, s{sH2p}
s_mov_b32 s{sH2p}, s{sH2n}
s_mov_b32 s{sH2n}, s{sH2c}
s_mov_b32 s{sH2c}, s{sT1}
s_add_u32 s{sKVc}, s{sKn}, 8192
s_add_u32 s{sKn}, s{sKn}, {0 if 'samekv' in X else 32*16384}
s_add_u32 s{sPf}, s{sPf}, {32*16384}
s_add_u32 s{sKMo}, s{sKMo}, {32*2048}
s_add_u32 s{sVMo}, s{sVMo}, {32*4096}
s_add_u32 s{sStep}, s{sStep}, 1
s_mov_b32 s{sPoll}, 0
""")
    def l_load(): A(f'buffer_load_dwordx4 {q4(late)}, v{vL16}, s[4:7], s{sT3} offen sc1')
    def gather(ne,dl):
        p2=A.label('P2')
        regs=[T(20),T(24),T(16)][:ne]; ck=T(16) if ne==2 else T(20)
        offs=[(f's{sH2ld}',0),(f's{sH2ld}',2048),(f's{sT2}',0)]
        def e_loads():
            for j in range(ne): A(f'buffer_load_dwordx4 {q4(regs[j])}, v{vL16}, s[4:7], {offs[j][0]} offen offset:{offs[j][1]} sc1')
        def body():
            for j,r in enumerate(regs):
                spec = not (ne==2 and j==1)
                if spec: A(f'ds_write_b128 v{vMw}, {q4(r)} offset:{L_M+2048*j}')
                if j==0: A(f's_nop 1\nv_max3_u32 v{ck}, v{r}, v{r+1}, v{r+2}\nv_max_u32 v{ck}, v{ck}, v{r+3}')
                else: A(f'v_max3_u32 v{ck}, v{ck}, v{r}, v{r+1}\nv_max3_u32 v{ck}, v{ck}, v{r+2}, v{r+3}')
            A(f'v_cmp_eq_u32 vcc, -1, v{ck}\ns_cbranch_vccnz {p2}')
            if ne==2: A(f'ds_write_b128 v{vMw}, {q4(regs[1])} offset:{L_M+2048}')
            stamp(8)
            A(f's_branch {barA}')
        e_loads(); delay(dl); l_load(); body()
        def c():
            A(f'{p2}:')
            e_loads(); l_load()
            A(f's_add_u32 s{sPoll}, s{sPoll}, 1\ns_add_u32 s{sSt+14}, s{sSt+14}, 1\ns_cmp_gt_u32 s{sPoll}, {POLLMAX}\ns_cbranch_scc1 {fail}')
            body()
        cold.append(c)
    W1,W2,W3,W2n=[A.label(x) for x in ('W1','W2','W3','W2X')]
    def setml(): A(f's_mov_b32 s{sPoll}, 0')
    A(f's_cmp_lg_u32 s{sW}, 0\ns_cbranch_scc1 {W3}')
    A('s_barrier'); delay(Dl['a1']); reduce(lambda: (zacc(),setml())); book(); delay(Dl['a2']); gather(3,Dl['al'])
    A(f'{W3}:\ns_cmp_lg_u32 s{sW}, 3\ns_cbranch_scc1 {W2}')
    sp=A.label('SPIN'); go=A.label('GO')
    A(f'v_cmp_gt_u32 vcc, s{sStep1}, v{vP} ;nw\ns_cbranch_vccnz {sp}')
    A(f'{go}:\ns_barrier'); stamp(9)
    def c():
        A(f'{sp}:\ns_mov_b32 s{sPoll}, 0\n{sp}_l:')
        for i in range(4):
            probe(); A(f's_add_u32 s{sSt+11}, s{sSt+11}, 1'); delay(Dl['sp'])
            A(f'v_cmp_gt_u32 vcc, s{sStep1}, v{vP} ;nw\ns_cbranch_vccz {go}')
        A(f's_add_u32 s{sPoll}, s{sPoll}, 1\ns_cmp_lt_u32 s{sPoll}, 32\ns_cbranch_scc1 {sp}_l\ns_branch {go}')
    cold.append(c)
    zacc(); setml()
    A(f's_add_u32 s{sT1}, s{sStep}, 2\ns_lshr_b32 s{sT1}, s{sT1}, 2\ns_add_u32 s{sT1}, s{sT1}, 1\ns_min_u32 s{sT1}, s{sT1}, 16')
    emit_wait_kv(A,sT1,fail,T(26))
    delay(Dl['d1']); book(); l_load(); stamp(8); A(f's_branch {barA}')
    A(f'{W2}:\ns_cmp_lg_u32 s{sW}, 2\ns_cbranch_scc1 {W1}')
    A(f's_cmp_ge_u32 s{sU}, 72\ns_barrier\ns_cbranch_scc1 {W2n}')
    reduce(lambda: (zacc(),setml())); book(); delay(Dl['a2']); gather(2,Dl['al'])
    A(f'{W2n}:')
    zacc(); setml(); delay(Dl['n2']); book(); gather(2,Dl['al'])
    A(f'{W1}:')
    zacc(); setml(); A('s_barrier'); delay(Dl['b1']); reduce(); book(); delay(Dl['b2']); l_load(); stamp(8); A(f's_branch {barA}')
    for c in cold: c()

def emit_chain(A, fail, end, D1=0, D2=2, stamps=(), modes=('',), X=()):
    m, qk_order, lds_qk, lds_o = operand_map()
    emit_chain_init(A, m)
    lp=A.label('CB')
    A(f"""
s_mov_b32 s{sPoll}, 0
{lp}:
v_mov_b32 v{VX}, 0
global_load_dword v{VX+1}, v{VX}, s[66:67] offset:{D_CBAR} sc1
global_load_dword v{VX+2}, v{VX}, s[66:67] offset:{D_INIT} sc1
global_load_dword v{VX+3}, v{VX}, s[66:67] offset:{D_TICK} sc1
s_add_u32 s{sPoll}, s{sPoll}, 1
s_cmp_gt_u32 s{sPoll}, {POLLMAX}
s_cbranch_scc1 {fail}
v_readfirstlane_b32 s{sT1}, v{VX+1}
v_readfirstlane_b32 s{sT2}, v{VX+2}
s_cmp_lt_u32 s{sT1}, 32
s_cbranch_scc1 {lp}
s_cmp_eq_u32 s{sT2}, 0
s_cbranch_scc1 {lp}
v_readfirstlane_b32 s{sT2}, v{VX+3}
s_cmp_lt_u32 s{sT2}, 32
s_cselect_b32 s{sMode}, 1, 0
s_mov_b32 s{sT1}, 1
""")
    emit_wait_kv(A,sT1,fail,VX)
    A(f'buffer_load_dwordx4 {q4(KX)}, v{vKx}, s[4:7], s{sKVc} offen sc1')
    A(f'buffer_load_dwordx4 {q4(KX+4)}, v{vKx}, s[4:7], s{sKVc} offen offset:256 sc1')
    A(f's_add_u32 s{sKVc}, s{sKVc}, 8192')
    for i in range(16): A(f's_mov_b32 s{sSt+i}, 0')
    A('s_memrealtime s[90:91]\ns_waitcnt lgkmcnt(0)\ns_mov_b32 s99, s90\ns_mov_b32 s90, 0\ns_mov_b32 s91, 0')
    if 'initstamp' in X: A(f's_memtime s[{sSt+10}:{sSt+11}]\ns_waitcnt lgkmcnt(0)\ns_sub_u32 s{sSt+10}, s{sSt+10}, s72\ns_mov_b32 s{sSt+11}, 0')
    done=A.label('CDONE')
    trcopy='\n'.join(f's_mov_b32 s{sSt+4+i}, s{sTr+2*i}' for i in range(6))+'\n' if any(isinstance(x,tuple) for x in X) else ''
    if len(modes)==2:
        A(f's_cmp_lg_u32 s{sMode}, 0\ns_cbranch_scc1 CSTEP_1_prep')
    for i,st in enumerate(modes):
        emit_chain_loop(A, m, qk_order, lds_qk, lds_o, st, i, fail, done, D1, D2, list(stamps), X)
    A(f"""
{done}:
s_waitcnt lgkmcnt(0)
{trcopy}s_waitcnt vmcnt(0)
s_barrier
s_cmp_lg_u32 s{sW}, 3
s_cbranch_scc1 {end}
v_mov_b32 v{T(0)}, 0
v_mov_b32 v{T(1)}, 64
buffer_store_dword v{T(1)}, v{T(0)}, s[4:7], s{sFlagM} offen sc1
s_branch {end}
""")
```

```python
from asmgen import *
from common import *
import math, struct

L_M  = 0
L_O  = 8192
L_QK = 10240
L_MX = L_QK+4096
L_C  = L_MX+1024
L_W  = L_C+64
WREG = 36864
assert L_W+4*WREG<=163840

vL16,vIdx,vS16,vS16b,vWl,vYw,vOw,vOr,vMw,vH1st,vH1s1,vH2st,vKx,vMl_,vSel,vCon = range(16)
KX = 16
VX = 24
T = lambda i: 32+i
sH,sW,sStep,sU = 12,13,14,15
sTag,sH1ld,sKVc = 16,17,18
sH2c,sH2n,sH2p = 19,20,21
sKn,sKMo,sVMo = 24,25,26
sScale = 27
sMask = 28
sT0,sT1,sT2,sT3 = 36,37,38,39
sPoll = 40
sH2ld = 41
sFlagM = 42
sFlagKV = 43
sKVok = 44
sH2pz = 45
sHi = 46
sW3k = 48
s32k = 49
sMode = 50
sW256 = 52
sStep1 = 53
sPrb = 54
sFlg = 55
sLate = 22
sSc2 = 70
sLo20 = 69
sHi20 = 23
sPf = 27
sFlagMw = 51
sTr = 56
sSt = 80
POLLMAX=200000

TORD=[0,2,4,6,8,1,3,5,7]
QKPOS=[1,3,7,11,14,18,22,25,28,32]
QKBUF=[0,1,0,1,0,1,0,1,0,1]
def operand_map():
    qk_order=[]
    for t in TORD:
        qk_order += [('q',t,0),('q',t,1),('k',t,0),('k',t,1)]
    lds_qk = [qk_order[n] for n in QKPOS]
    lds_o = [('o',0,2),('o',0,3),('o',2,0),('o',3,0),('o',3,1),('o',1,2),('o',1,3),('o',3,3)]
    m={}
    li=0
    for op in lds_o+lds_qk:
        m[op]=('l',li); li+=1
    rest=[op for op in qk_order if op not in m]
    rest+=[('v',t,c) for t in range(9) for c in range(2)]
    rest+=[('o',k,P) for k in range(4) for P in range(4) if ('o',k,P) not in m]
    rest+=[('s',0),('s',1)]
    regs=[('v',80+8*i) for i in range(22)]+[('a',8*i) for i in range(32)]
    assert len(rest)==len(regs)==54
    for op,r in zip(rest,regs): m[op]=r
    return m, qk_order, lds_qk, lds_o

def R(loc,off=0,n=8):
    return vr(loc[1]+off,n,loc[0])
def q4(b): return f'v[{b}:{b+3}]'

def emit_chain_init(A, m, X=()):
    l,n,g,n7,n8,g1,g2,r4,cc=['v%d'%i for i in range(32,41)]
    t0,t1,t2='v41','v42','v43'
    A(f"""
s_load_dwordx2 s[4:5], s[0:1], {KA['ws']}
s_load_dwordx2 s[56:57], s[0:1], {KA['B_Wq']}
s_load_dwordx2 s[58:59], s[0:1], {KA['B_Wk']}
s_load_dwordx2 s[60:61], s[0:1], {KA['B_Wv']}
s_load_dwordx2 s[62:63], s[0:1], {KA['B_Wo']}
s_load_dwordx2 s[64:65], s[0:1], {KA['B_mem0']}
s_load_dwordx2 s[66:67], s[0:1], {KA['dbg']}
v_and_b32 {l}, 63, v0
v_and_b32 {n}, 15, {l}
v_lshrrev_b32 {g}, 4, {l}
v_lshlrev_b32 v{vL16}, 4, {l}
v_and_b32 {n7}, 7, {n}
v_lshrrev_b32 {n8}, 3, {n}
v_and_b32 {g1}, 1, {g}
v_lshrrev_b32 {g2}, 1, {g}
v_lshrrev_b32 {r4}, 2, {n}
v_and_b32 {cc}, 3, {n}
v_mov_b32 {t0}, 0x4444
v_mov_b32 {t1}, 0xeeee
v_cmp_eq_u32 s[{sHi}:{sHi+1}], 1, {n8}
v_cndmask_b32 v{vIdx}, {t0}, {t1}, s[{sHi}:{sHi+1}]
s_mul_i32 s{sT0}, s{sW}, {WREG}
s_add_u32 s{sT0}, s{sT0}, {L_W}
v_add_u32 v{vWl}, s{sT0}, v{vL16}
s_lshl_b32 s{sT1}, s{sW}, 10
v_add_u32 v{vYw}, s{sT1}, v{vL16}
v_lshlrev_b32 {t0}, 7, {g}
v_lshl_add_u32 {t0}, {n7}, 4, {t0}
v_and_b32 v{vOr}, 255, {t0}
s_lshl_b32 s{sT1}, s{sW}, 9
v_add_u32 v{vOw}, s{sT1}, {t0}
s_lshl_b32 s{sW256}, s{sW}, 8
s_lshl_b32 s{sW3k}, s{sW}, 10
s_cmp_eq_u32 s{sW}, 2
s_cselect_b32 s{sW3k}, 6144, s{sW3k}
s_cmp_eq_u32 s{sW}, 3
s_cselect_b32 s{sW3k}, 5120, s{sW3k}
v_add_u32 v{vMw}, s{sW3k}, v{vL16}
; vH1st = (16w + l/8)*4096 + h*128 + (l%8)*16
v_lshrrev_b32 {t0}, 3, {l}
v_lshlrev_b32 {t0}, 12, {t0}
v_lshl_add_u32 {t0}, {n7}, 4, {t0}
s_lshl_b32 s{sT1}, s{sW}, 16
s_lshl_b32 s{sT2}, s{sH}, 7
s_add_u32 s{sT1}, s{sT1}, s{sT2}
v_add_u32 v{vH1st}, s{sT1}, {t0}
; vH1s1 = (64 + 2w + n8)*4096 + h*128 + n7*16 + g1*8
v_lshlrev_b32 {t0}, 12, {n8}
v_lshl_add_u32 {t0}, {n7}, 4, {t0}
v_lshl_add_u32 {t0}, {g1}, 3, {t0}
s_lshl_b32 s{sT1}, s{sW}, 13
s_add_u32 s{sT1}, s{sT1}, s{sT2}
s_add_u32 s{sT1}, s{sT1}, {64*4096}
v_add_u32 v{vH1s1}, s{sT1}, {t0}
s_lshr_b32 s{sU}, s{sH}, 3
s_lshl_b32 s{sU}, s{sU}, 4
s_and_b32 s{sT1}, s{sH}, 7
s_add_u32 s{sU}, s{sU}, s{sT1}
s_lshl_b32 s{sT1}, s{sW}, 3
s_add_u32 s{sU}, s{sU}, s{sT1}
s_add_u32 s{sT1}, s{sH}, 64
s_cmp_eq_u32 s{sW}, 2
s_cselect_b32 s{sU}, s{sT1}, s{sU}
s_cmp_eq_u32 s{sW}, 3
s_cselect_b32 s{sU}, 72, s{sU}
v_lshlrev_b32 {t0}, 4, {n7}
v_lshl_add_u32 {t0}, {g1}, 3, {t0}
v_lshl_add_u32 {t0}, {g2}, 2, {t0}
s_lshl_b32 s{sT1}, s{sU}, 7
v_add_u32 v{vH2st}, s{sT1}, {t0}
s_lshl_b32 s{sT1}, s{sW}, 11
v_lshlrev_b32 {t0}, 9, {g}
v_add_u32 {t0}, s{sT1}, {t0}
v_lshl_add_u32 {t1}, {n}, 4, {t0}
v_mov_b32 v{vKx}, {t1}
v_add_u32 v{vMl_}, s{sT1}, v{vL16}
v_mov_b32 {t0}, 0x3f80
v_mov_b32 {t1}, 0x3f800000
v_and_b32 {t2}, 1, {n}
v_cmp_eq_u32 vcc, 0, {t2}
v_cndmask_b32 v{vSel}, {t1}, {t0}, vcc
v_lshrrev_b32 {t2}, 1, {n7}
v_cmp_eq_u32 s[{sMask}:{sMask+1}], 0, {t2}
v_cmp_eq_u32 s[{sMask+2}:{sMask+3}], 1, {t2}
v_cmp_eq_u32 s[{sMask+4}:{sMask+5}], 2, {t2}
v_cmp_eq_u32 s[{sMask+6}:{sMask+7}], 3, {t2}
v_mov_b32 v{vCon}, {L_C}
v_lshlrev_b32 {t0}, 1, {g1}
v_cmp_eq_u32 vcc, {t0}, {t2}
v_cndmask_b32 v{vS16}, 0, v{vSel}, vcc
v_add_u32 {t0}, 1, {t0}
v_cmp_eq_u32 vcc, {t0}, {t2}
v_cndmask_b32 v{vS16b}, 0, v{vSel}, vcc
; init-only address regs: v16 dma voffset qkv ; v17..v19 tr bases ; v20,v21 mem0 ; v71..v79 Wo dma voffsets
v_lshrrev_b32 {t0}, 2, {l}
v_lshlrev_b32 {t0}, 13, {t0}
v_and_b32 {t1}, 3, {l}
v_lshl_add_u32 {t0}, {t1}, 4, {t0}
s_lshl_b32 s{sT1}, s{sH}, 8
s_lshl_b32 s{sT2}, s{sW}, 6
s_add_u32 s{sT1}, s{sT1}, s{sT2}
v_add_u32 v16, s{sT1}, {t0}
v_lshrrev_b32 {t1}, 1, {r4}
v_and_b32 {t2}, 1, {r4}
v_lshlrev_b32 {t0}, 4, {g2}
v_lshl_add_u32 {t0}, {g1}, 2, {t0}
v_lshl_add_u32 {t0}, {t1}, 3, {t0}
v_add_u32 {t0}, {t0}, {t2}
v_lshlrev_b32 {t0}, 6, {t0}
v_lshl_add_u32 {t0}, {cc}, 3, {t0}
v_add_u32 v17, s{sT0}, {t0}
v_lshlrev_b32 {t0}, 4, {g1}
v_lshl_add_u32 {t0}, {g2}, 2, {t0}
v_add_u32 {t0}, {t0}, {t2}
v_mul_u32_u24 {t0}, 288, {t0}
v_lshl_add_u32 {t0}, {t1}, 6, {t0}
v_lshl_add_u32 {t0}, {cc}, 3, {t0}
v_add_u32 v18, s{sT0}, {t0}
v_lshl_add_u32 {t0}, {g}, 2, {r4}
v_mul_u32_u24 {t0}, 288, {t0}
v_lshl_add_u32 {t0}, {cc}, 3, {t0}
v_add_u32 {t0}, 256, {t0}
v_add_u32 v19, s{sT0}, {t0}
""")
    for ii in range(9):
        A(f"""
v_add_u32 {t0}, {64*ii}, {l}
v_mul_u32_u24 {t1}, 3641, {t0}
v_lshrrev_b32 {t1}, 16, {t1}
v_mul_u32_u24 {t2}, 18, {t1}
v_sub_u32 {t2}, {t0}, {t2}
v_mul_u32_u24 {t1}, 1152, {t1}
v_lshl_add_u32 v{71+ii}, {t2}, 4, {t1}""")
    A(f"""
v_mul_u32_u24 {t0}, 1152, {n7}
v_lshl_add_u32 {t0}, {n8}, 4, {t0}
v_lshl_add_u32 v20, {g}, 5, {t0}
v_mul_u32_u24 {t1}, 288, {g}
v_add_u32 v21, {t0}, {t1}
s_waitcnt lgkmcnt(0)
s_mov_b32 s6, {WS_BYTES}
s_mov_b32 s7, 0x20000
s_mov_b32 s10, {576*8192}
s_mov_b32 s11, 0x20000
s_mov_b32 s68, s{sT0}
s_lshl_b32 s{sH1ld}, s{sU}, 12
s_cmp_lt_u32 s{sU}, 72
s_cselect_b32 s{sH1ld}, s{sH1ld}, {WS_BYTES}
s_cselect_b32 s{sH2pz}, 0, {WS_BYTES}
v_mov_b32 v44, 0
v_mov_b32 v45, 0
v_mov_b32 v46, 0
v_mov_b32 v47, 0
v_mov_b32 v48, 0x3f803f80
v_mov_b32 v49, 0x3f803f80
v_mov_b32 v50, 0x3f803f80
v_mov_b32 v51, 0x3f803f80
v_mov_b32 v52, 0x3f003f00
v_mov_b32 v53, 0x3f003f00
v_mov_b32 v54, -1
""")
    A(f'v_and_b32 v22, 3, {l}\nv_lshlrev_b32 v22, 8, v22')
    lab=A.label('CI')
    A(f"""
ds_write_b128 v{vCon}, v[44:47]
ds_write_b128 v{vCon}, v[48:51] offset:16
ds_write_b64 v{vCon}, v[52:53] offset:32
""")
    def initstores():
        for r in range(24,28): A(f'v_mov_b32 v{r}, 0')
        A('v_mov_b32 v28, -1')
        for j in range(4): A(f'buffer_store_dwordx4 v[24:27], v{vL16}, s[4:7], s{sH1ld} offen offset:{1024*j} sc1')
        for j in range(3):
            A(f's_add_u32 s{sT1}, s{sH2pz}, {WS_H2+j*H2SZ}')
            A(f'buffer_store_dword v28, v{vH2st}, s[4:7], s{sT1} offen sc1')
        A(f's_lshl_b32 s{sT1}, s{sH}, 2\ns_add_u32 s{sT1}, s{sT1}, {WS_F1}')
        A(f'buffer_store_dword v24, v22, s[4:7], s{sT1} offen sc1')
    def arrive():
        A(f"""
s_barrier
s_cmp_lg_u32 s{sW}, 0
s_cbranch_scc1 {lab}
s_mov_b64 exec, 1
v_mov_b32 v22, 0
v_mov_b32 v23, 1
global_atomic_add v22, v23, s[66:67] offset:{D_CBAR}
s_mov_b64 exec, -1
{lab}:
""")
    chunks=[]
    def qkv_chunk(mat,t):
        return dict(kind='w',mat=mat,t=t,size=4096,n=4)
    qk=[qkv_chunk(mm,t) for t in range(9) for mm in 'qk']
    oc=[dict(kind='o',k=k,size=9216,n=9) for k in range(4)]
    for grp in 'qoqqoqoqoq':
        if grp=='q': chunks+= [qk.pop(0) for _ in range(3)]
        else: chunks.append(oc.pop(0))
    for t in range(9): chunks.append(qkv_chunk('v',t))
    ptr={'q':56,'k':58,'v':60,'o':62}
    cur_srd=[None]
    def set_srd(mat):
        if cur_srd[0]!=mat:
            A(f's_mov_b32 s8, s{ptr[mat]}\ns_mov_b32 s9, s{ptr[mat]+1}')
            cur_srd[0]=mat
    def issue(c):
        if c['kind']=='w':
            set_srd(c['mat']); t=c['t']
            for ii in range(4):
                d = (144*(t//2)+64*(t%2)+16*ii) if t<8 else (144*ii+128)
                A(f's_add_u32 m0, s68, {c["addr"]+1024*ii}')
                A(f's_mov_b32 s{sT1}, {d*8192}')
                A(f'buffer_load_dwordx4 v16, s[8:11], s{sT1} offen lds')
        else:
            set_srd('o'); k=c['k']
            A(f's_xor_b32 s{sT1}, s{sW}, {k}\ns_lshl_b32 s{sT1}, s{sT1}, 5\ns_lshl_b32 s{sT2}, s{sH}, 7\ns_add_u32 s{sT1}, s{sT1}, s{sT2}\ns_mul_i32 s{sT1}, s{sT1}, 1152\ns_mul_i32 s{sT2}, s{sW}, 288\ns_add_u32 s{sT1}, s{sT1}, s{sT2}')
            for ii in range(9):
                A(f's_add_u32 m0, s68, {c["addr"]+1024*ii}')
                A(f'buffer_load_dwordx4 v{71+ii}, s[8:11], s{sT1} offen nt lds')
    def ops_of(c):
        if c['kind']=='w': return [(c['mat'],c['t'],0),(c['mat'],c['t'],1)]
        return [('o',c['k'],P) for P in range(4)]+[('sx',c['k'])]
    def tr_reads(c,op,loc):
        f,b=loc
        if c['kind']=='w':
            for jh in range(2):
                for jl in (0,2):
                    off=c['addr']+(32*jh+jl)*64+op[2]*32
                    A(f'ds_read_b64_tr_b16 {vr(b+4*jh+jl,2,f)}, v17 offset:{off}')
        elif op[0]=='o':
            P=op[2]; PP,q=P//2,P%2
            for jh in range(2):
                for jl in (0,2):
                    off=c['addr']+(8*jh+jl)*288+(64*PP+16*q)*2
                    A(f'ds_read_b64_tr_b16 {vr(b+4*jh+jl,2,f)}, v18 offset:{off}')
        else:
            for a in range(2):
                A(f'ds_read_b64_tr_b16 {vr(b+2*a,2,f)}, v19 offset:{c["addr"]+16*a*288}')
    parkregs=[('v',32),('v',40)]+[m[('v',t,c)] for t in range(1,9) for c in range(2)]
    parked={}
    live=[]; nissued=0; nslot=[0]
    def alloc(c):
        a = (nslot[0]%9)*4096
        if any(not (x['addr']+x['size']<=a or x['addr']>=a+c['size']) for x in live): return None
        nslot[0]+= 3 if c['kind']=='o' else 1
        return a
    def flush(loc,addr):
        op=parked.pop(loc); m[op]=('l',addr//2048)
        for j in range(2): A(f'ds_write_b128 v{vWl}, {R(loc,4*j,4)} offset:{addr+1024*j}')
    pending_reads=False
    def its(k):
        if 'itrace' in X: A(f's_memtime s[{sSt+2}:{sSt+3}]\ns_waitcnt lgkmcnt(0)\ns_sub_u32 s{sSt+4+k}, s{sSt+2}, s72')
    its(0)
    A(f's_and_b32 s{sT1}, s{sH}, 3\ns_cmp_eq_u32 s{sT1}, 1\ns_cselect_b64 vcc, -1, 0')
    for ci,c in enumerate(chunks):
        while nissued<len(chunks):
            nc=chunks[nissued]
            if sum(x['n'] for x in live)+nc['n']>50: break
            a=alloc(nc)
            if a is None: break
            nc['addr']=a
            if pending_reads:
                A('s_waitcnt lgkmcnt(0)'); pending_reads=False
            thr=[x for x in X if isinstance(x,tuple) and x[0]=='thr']
            if thr and nc['kind']=='w':
                sk=A.label('TH'); A(f's_cbranch_vccnz {sk}\ns_waitcnt vmcnt({thr[0][1]})\n{sk}:')
            issue(nc); live.append(nc); nissued+=1
        assert c in live
        younger=sum(x['n'] for x in live if x is not c)
        if ci==0: its(1)
        A(f's_waitcnt vmcnt({younger})')
        if ci in (0,3,12): its((0,0,0,3,12).index(ci,2))
        if ci==8: initstores(); stores_before=nissued
        if ci>8 and ci==stores_before: arrive()
        for op in ops_of(c):
            if op[0]=='sx':
                k=op[1]; loc=m[('s',k//2)]; tr_reads(c,op,(loc[0],loc[1]+4*(k%2)))
            elif m[op][0]!='l':
                assert m[op] not in parked
                tr_reads(c,op,m[op])
            else:
                loc=parkregs.pop(0); parked[loc]=op
                tr_reads(c,op,loc)
        pending_reads=True
        live.remove(c)
        if c['kind']=='w' and c['mat']=='v':
            A('s_waitcnt lgkmcnt(0)')
            t=c['t']
            src=[m[('v',t+1,0)],m[('v',t+1,1)]] if t<8 else [('v',32),('v',40)]
            for j in range(2): flush(src[j],c['addr']+2048*j)
    assert not parked and not parkregs
    if 'nohelp' not in X:
        nh=A.label('NH')
        A(f"""
s_and_b32 s{sT1}, s{sH}, 3
s_cmp_eq_u32 s{sT1}, 1
s_cbranch_scc1 {nh}
s_add_u32 s{sT2}, s{sT1}, -1
s_cselect_b32 s{sT1}, s{sT2}, 0
s_lshl_b32 s{sT1}, s{sT1}, 2
s_add_u32 s{sT1}, s{sT1}, s{sW}
s_mul_i32 s{sT1}, s{sT1}, {32*8192}
s_add_u32 s{sT1}, s{sT1}, {192*8192}
s_and_b32 s{sT2}, s{sH}, 28
s_add_u32 s{sT2}, s{sT2}, 1
s_lshl_b32 s{sT2}, s{sT2}, 8
s_add_u32 s{sT1}, s{sT1}, s{sT2}
v_lshrrev_b32 v24, 6, v{vL16}
v_lshlrev_b32 v24, 13, v24
v_and_b32 v25, 48, v{vL16}
v_lshl_add_u32 v24, v25, 2, v24
buffer_load_dword v25, v24, s[8:11], s{sT1} offen
s_add_u32 s{sT1}, s{sT1}, {16*8192}
buffer_load_dword v26, v24, s[8:11], s{sT1} offen
{nh}:
""")
    if 'rdy0' in X: A('s_memrealtime s[90:91]\ns_waitcnt lgkmcnt(0)\ns_mov_b32 s99, s90')
    A(f's_mov_b32 s8, s64\ns_mov_b32 s9, s65\ns_mov_b32 s10, 9216')
    for j in range(3):
        A(f"""
s_mul_i32 s{sT1}, s{sW}, 3
s_add_u32 s{sT1}, s{sT1}, {j}
s_lshr_b32 s{sT2}, s{sT1}, 1
s_mul_i32 s{sT2}, s{sT2}, 288
s_and_b32 s{sT3}, s{sT1}, 1
s_lshl_b32 s{sT3}, s{sT3}, 7
s_add_u32 s{sT2}, s{sT2}, s{sT3}
""")
        if j==2:
            A(f"""
s_cmp_eq_u32 s{sT1}, 8
s_cselect_b32 s{sT2}, 256, s{sT2}
s_cselect_b64 vcc, -1, 0
v_cndmask_b32 v20, v20, v21, vcc
""")
        A(f'buffer_load_dwordx4 v[{T(16)+4*j}:{T(19)+4*j}], v20, s[8:11], s{sT2} offen')
    c = math.log2(math.e)/math.sqrt(128.0)
    cb = struct.unpack('<I',struct.pack('<f',c))[0]
    A(f"""
s_mov_b32 s{sSc2}, {cb:#x}
s_mov_b32 s{sSc2+1}, {cb:#x}
s_mov_b32 s{sLo20}, 0x35800000
s_mov_b32 s{sHi20}, 0x49800000
s_mov_b32 s{sStep}, 0
s_mov_b32 s{sTag}, 1
s_mov_b32 s{s32k}, 32768
s_lshl_b32 s{sLate}, s{sW}, 11
s_add_u32 s{sLate}, s{sLate}, 1024
s_mov_b32 s{sH2c}, {WS_H2}
s_mov_b32 s{sH2n}, {WS_H2+H2SZ}
s_mov_b32 s{sH2p}, {WS_H2+2*H2SZ}
s_lshl_b32 s{sT1}, s{sH}, 14
s_add_u32 s{sKVc}, s{sT1}, {WS_KV}
s_add_u32 s{sKn}, s{sKVc}, {32*16384}
s_lshl_b32 s{sT2}, s{sW}, 11
s_add_u32 s{sPf}, s{sKn}, s{sT2}
s_add_u32 s{sPf}, s{sPf}, 8192
s_mov_b32 m0, {L_W+4*WREG}
s_lshl_b32 s{sT1}, s{sH}, 11
s_add_u32 s{sKMo}, s{sT1}, {WS_KM}
s_lshl_b32 s{sT1}, s{sH}, 12
s_add_u32 s{sVMo}, s{sT1}, {WS_VM}
s_lshl_b32 s{sT1}, s{sW}, 10
s_add_u32 s{sVMo}, s{sVMo}, s{sT1}
s_lshl_b32 s{sT1}, s{sH}, 7
s_add_u32 s{sFlagM}, s{sT1}, {F_M}
s_lshl_b32 s{sT1}, s{sH}, 9
s_add_u32 s{sFlagKV}, s{sT1}, {F_KV}
s_mov_b32 s{sKVok}, 0
s_sub_u32 s{sFlagMw}, s{sFlagM}, {L_C}
s_mov_b32 s{sT1}, {WS_BYTES}
s_cmp_eq_u32 s{sW}, 3
s_cselect_b32 s{sFlagMw}, s{sFlagMw}, s{sT1}
s_add_u32 s{sPrb}, s{sH}, s{sW}
s_and_b32 s{sPrb}, s{sPrb}, 3
s_lshl_b32 s{sPrb}, s{sPrb}, 8
s_add_u32 s{sPrb}, s{sPrb}, {WS_F1}
s_lshl_b32 s{sFlg}, s{sH}, 2
s_add_u32 s{sFlg}, s{sFlg}, {WS_F1}
s_cmp_eq_u32 s{sW}, 3
s_cselect_b32 s{sPrb}, s{sPrb}, s{sT1}
s_cmp_eq_u32 s{sW}, 1
s_cselect_b32 s{sFlg}, s{sFlg}, s{sT1}
""")

def emit_wait_kv(A, need_sreg, fail, tmp):
    lp=A.label('KVW'); ok=A.label('KVOK')
    A(f"""
s_cmp_ge_u32 s{sKVok}, s{need_sreg}
s_cbranch_scc1 {ok}
s_mov_b32 s{sPoll}, 0
{lp}:
v_mov_b32 v{tmp}, 0
buffer_load_dword v{tmp+1}, v{tmp}, s[4:7], s{sFlagKV} offen offset:256 sc1
buffer_load_dword v{tmp}, v{tmp}, s[4:7], s{sFlagKV} offen sc1
s_add_u32 s{sPoll}, s{sPoll}, 1
s_cmp_gt_u32 s{sPoll}, {POLLMAX}
s_cbranch_scc1 {fail}
v_min_u32 v{tmp}, v{tmp}, v{tmp+1}
v_readfirstlane_b32 s{sKVok}, v{tmp}
s_cmp_lt_u32 s{sKVok}, s{need_sreg}
s_cbranch_scc1 {lp}
{ok}:
""")

def emit_chain_loop(A, m, qk_order, lds_qk, lds_o, st, tag, fail, done, D1=0, D2=2, stamps=(), X=()):
    def stamp(i):
        if ('tr',i) in X:
            k=[x for x in X if isinstance(x,tuple) and x[0]=='tr'].index(('tr',i))
            sk=A.label('TR')
            A(f's_cmp_gt_u32 s{sStep}, {31 if i in (8,7,13) or (i==0 and k>0) else 30}\ns_cbranch_scc1 {sk}\ns_memtime s[{sTr+2*k}:{sTr+2*k+1}]\n{sk}:')
        if i in stamps:
            k=stamps.index(i)
            A(f's_memtime s[{sSt+2}:{sSt+3}]\ns_waitcnt lgkmcnt(0)')
            if k==0: A(f's_mov_b32 s{sSt}, s{sSt+2}')
            else: A(f's_sub_u32 s{sSt+3}, s{sSt+2}, s{sSt}\ns_add_u32 s{sSt+4+k}, s{sSt+4+k}, s{sSt+3}')
    def delay(n):
        while n>0:
            c=min(n,16); A(f's_nop {c-1}'); n-=c
    Dl=dict(a1=0,a2=70,al=-1,b1=40,b2=65,n2=155,d1=190,nl=10,a2w=6,fl=2,vl=16,v4=0,fm=23,pr=(6,9,12,14),sp=6); Dl.update(D1 if isinstance(D1,dict) else {})
    SM='v_smfmac_f32_16x16x64_bf16'
    M32='v_mfma_f32_16x16x32_bf16'; M16='v_mfma_f32_16x16x16_bf16'
    accq=[T(0),T(4)]; acck=[T(8),T(12)]; ring=[T(16),T(20),T(24)]; stg=[T(28),T(36),VX]
    def ldsop(op,buf):
        A(f'ds_read_b128 {q4(buf)}, v{vWl} offset:{m[op][1]*2048}')
        A(f'ds_read_b128 {q4(buf+4)}, v{vWl} offset:{m[op][1]*2048+1024}')
    def zero(b): A(f'ds_read_b128 {q4(b)}, v{vCon}')
    Q=[]
    def qop(op,buf):
        Q.append(f'ds_read_b128 {q4(buf)}, v{vWl} offset:{m[op][1]*2048}')
        Q.append(f'ds_read_b128 {q4(buf+4)}, v{vWl} offset:{m[op][1]*2048+1024}')
    def pop(k=1):
        for _ in range(k):
            if Q: A(Q.pop(0))
    top=f'CSTEP_{tag}'; p2=f'CP2_{tag}'; barA=f'CBA_{tag}'
    late=T(44); vMl=vMl_; lateL=A.label('LATE')
    A(f'{top}_prep:')
    for i in range(16): A(f'v_mov_b32 v{T(i)}, 0')
    for j in range(2): ldsop(lds_qk[j],stg[j])
    pw=A.label('PW')
    A(f's_cmp_eq_u32 s{sW}, 3\ns_cbranch_scc1 {pw}')
    A(f's_mul_i32 s{sT1}, s{sW}, 3072\nv_add_u32 v{T(45)}, s{sT1}, v{vL16}')
    for j in range(3): A(f'ds_write_b128 v{T(45)}, {q4(T(16)+4*j)} offset:{L_M+1024*j}')
    A(f'{pw}:')
    A('s_waitcnt lgkmcnt(0)\ns_barrier')
    A(f'ds_read_b128 {q4(late)}, v{vMl} offset:{L_M+1024}')
    A('.p2align 6')
    A(f'{barA}:')
    A('s_waitcnt lgkmcnt(0)\ns_barrier')
    stamp(0)
    def mtxt(pos): return f'ds_read_b128 {q4(ring[pos%3])}, v{vL16} offset:{L_M+1024*(TORD[pos%9])}'
    def mread(pos): A(mtxt(pos))
    mread(0); mread(1); Q.append(mtxt(2))
    accv=[T(44),T(28)]
    li=0
    cold=[]
    NL=Dl['nl']
    for n,op in enumerate(qk_order):
        pos=n//4; acc=(accq if op[0]=='q' else acck)[op[2]]
        if m[op][0]=='l':
            b=stg[QKBUF[li]]; B=f'v[{b}:{b+7}]'
        else: B=R(m[op])
        A(f'{SM} {q4(acc)}, {q4(ring[pos%3])}, {B}, v{vIdx}')
        if m[op][0]=='l':
            nx=[j for j in range(li+1,len(lds_qk)) if QKBUF[j]==QKBUF[li]]
            if nx: qop(lds_qk[nx[0]],b)
            li+=1
        if n==NL:
            ck=late; ok=A.label('LOK')
            A(f'ds_write_b128 v{vMl}, {q4(late)} offset:{L_M+1024}'); wpos=len(A.items)
        if n==NL+1: A(f'v_max3_u32 v{ck}, v{late}, v{late+1}, v{late+2}')
        if n==NL+2: A(f'v_max_u32 v{ck}, v{ck}, v{late+3}')
        if n==NL+3:
            A(f'v_cmp_eq_u32 vcc, -1, v{ck}\ns_cbranch_vccnz {lateL}\n{ok}:')
            def c(ok=ok):
                A(f'{lateL}:')
                A(f'buffer_load_dwordx4 {q4(late)}, v{vL16}, s[4:7], s{sT3} offen sc1')
                A(f's_add_u32 s{sPoll}, s{sPoll}, 1\ns_add_u32 s{sSt+12}, s{sSt+12}, 1\ns_cmp_gt_u32 s{sPoll}, {POLLMAX}\ns_cbranch_scc1 {fail}')
                A(f'ds_write_b128 v{vMl}, {q4(late)} offset:{L_M+1024}')
                A(f's_nop 1\nv_max3_u32 v{ck}, v{late}, v{late+1}, v{late+2}\nv_max_u32 v{ck}, v{ck}, v{late+3}')
                A(f'v_cmp_eq_u32 vcc, -1, v{ck}\ns_cbranch_vccnz {lateL}\ns_waitcnt lgkmcnt(0)\ns_branch {ok}')
            cold.append(c)
        if n%4==3:
            if pos<2: Q.insert(0,mtxt(pos+3))
            elif pos==3:
                A('LGKM_A2\ns_barrier'.replace('LGKM_A2',f's_waitcnt lgkmcnt({sum(1 for it in A.items[wpos:] if isinstance(it,Ins) and it.kind=="ds")})'))
                Q.insert(0,mtxt(5)); Q.insert(1,mtxt(6))
            elif pos>3: Q.insert(0,mtxt(pos+3))
        if n!=NL: pop()
        if n==Dl['vl'] and 'nov' not in X: A(f'buffer_load_dwordx4 {q4(VX)}, v{vKx}, s[4:7], s{sKVc} offen sc1')
        if n==Dl['vl']+1 and 'nov' not in X: A(f'buffer_load_dwordx4 {q4(VX+4)}, v{vKx}, s[4:7], s{sKVc} offen offset:256 sc1')
        if n==Dl['fm']-1: A(f'v_mov_b32 v{T(45)}, s{sStep}')
        if n==Dl['fm']: A(f'buffer_store_dword v{T(45)}, v{vCon}, s[4:7], s{sFlagMw} offen sc1')
        if n==18: A(f'v_mov_b32 v{T(44)}, -1')
        if n==19: A(f'v_lshlrev_b32 v{T(46)}, 2, v{vL16}')
        if n==20 and 'nopf' not in X: A(f's_mov_b64 exec, 0xffffffff\nbuffer_load_dword v{T(46)}, s[4:7], s{sPf} offen sc1 lds\ns_mov_b64 exec, -1')
        if n==19: A(f's_add_u32 s{sT1}, s{sH2p}, s{sH2pz}\nbuffer_store_dword v{T(44)}, v{vH2st}, s[4:7], s{sT1} offen {st}')
        if 25<=n<29: A(f'v_mov_b32 v{accv[0]+n-25}, 0')
        if 30<=n<34: A(f'v_mov_b32 v{accv[1]+n-30}, 0')
    stamp(1)
    def vstep(p):
        for c in range(2):
            A(f'{SM} {q4(accv[c])}, {q4(ring[p%3])}, {R(m[("v",TORD[p],c)])}, v{vIdx}')
            if c==1 and p+3<9: Q.insert(0,mtxt(p+3))
            pop()
    def cv(d,a): A(f'v_cvt_pk_bf16_f32 v{d}, v{a}, v{a+1}')
    vstep(0)
    for a in accq: cv(a,a); cv(a+1,a+2)
    tq=[T(32),T(36)]; tk=[T(0),T(4)]
    A(f'{M16} {q4(tq[0])}, v[{accq[0]}:{accq[0]+1}], v[{vS16}:{vS16+1}], 0')
    cv(acck[0],acck[0]); cv(acck[0]+1,acck[0]+2)
    A(f'{M16} {q4(tq[1])}, v[{accq[1]}:{accq[1]+1}], v[{vS16}:{vS16+1}], 0')
    cv(acck[1],acck[1]); cv(acck[1]+1,acck[1]+2)
    A(f'{M16} {q4(tk[0])}, v[{acck[0]}:{acck[0]+1}], v[{vS16}:{vS16+1}], 0')
    A(f'{M16} {q4(tk[1])}, v[{acck[1]}:{acck[1]+1}], v[{vS16}:{vS16+1}], 0')
    qf,kf=T(32),T(8)
    A(f'v_add_u32 v{T(40)}, s{sW256}, v{vOr}')
    cv(qf,tq[0]); cv(qf+1,tq[0]+2); cv(qf+2,tq[1]); cv(qf+3,tq[1]+2)
    X0,X1,Mm=T(4),T(12),T(0)
    cv(kf,tk[0]); cv(kf+1,tk[0]+2)
    A(f'{M32} {q4(X1)}, {q4(KX+4)}, {q4(qf)}, 0')
    cv(kf+2,tk[1]); cv(kf+3,tk[1]+2)
    A(f'{M32} {q4(X0)}, {q4(KX)}, {q4(qf)}, 0')
    A(f'{M32} {q4(Mm)}, {q4(kf)}, {q4(qf)}, 0')
    vstep(1)
    if 'nok' not in X: A(f'buffer_load_dwordx4 {q4(KX)}, v{vKx}, s[4:7], s{sKn} offen sc1')
    if 'nokm' not in X: A(f'buffer_store_dwordx4 {q4(kf)}, v{vOw}, s[4:7], s{sKMo} offen sc1')
    for r in range(4): A(f'v_cndmask_b32 v{X0+r}, v{X0+r}, v{X1+r}, s[{sHi}:{sHi+1}]')
    A(f'ds_write_b128 v{vYw}, {q4(X0)} offset:{L_QK}')
    if 'nok' not in X: A(f'buffer_load_dwordx4 {q4(KX+4)}, v{vKx}, s[4:7], s{sKn} offen offset:256 sc1')
    A(f'ds_write_b128 v{T(40)}, {q4(Mm)} offset:{L_MX}')
    wp=len(A.items)
    vstep(2); vstep(3)
    if Dl['v4']: vstep(4)
    A(f's_waitcnt lgkmcnt({sum(1 for it in A.items[wp:] if isinstance(it,Ins) and it.kind=="ds")})\ns_barrier')
    stamp(2)
    Y=[T(0),T(4),T(8),T(12)]; Mp=[T(32),T(36),T(40),T(16)]
    A(f'ds_read_b128 {q4(Y[0])}, v{vL16} offset:{L_QK}')
    for j in range(1,4): Q.append(f'ds_read_b128 {q4(Y[j])}, v{vL16} offset:{L_QK+1024*j}')
    for j in range(3): Q.append(f'ds_read_b128 {q4(Mp[j])}, v{vOr} offset:{L_MX+256*j}')
    if not Dl['v4']: vstep(4)
    vstep(5); vstep(6)
    Q.append(f'ds_read_b128 {q4(Mp[3])}, v{vOr} offset:{L_MX+256*3}')
    vstep(7); vstep(8)
    pop(len(Q))
    def padd(a,b):
        A(f'v_pk_add_f32 v[{a}:{a+1}], v[{a}:{a+1}], v[{b}:{b+1}]\nv_pk_add_f32 v[{a+2}:{a+3}], v[{a+2}:{a+3}], v[{b+2}:{b+3}]')
    def pmul(a):
        for o in (0,2): A(f'v_pk_mul_f32 v[{a+o}:{a+o+1}], v[{a+o}:{a+o+1}], s[{sSc2}:{sSc2+1}]')
    Ys,Ms=Y[0],Mp[0]
    vm=T(20); P=T(12); ones,half=T(4),T(8)
    accO=[T(16),T(20),T(24),T(28)]; accS=T(44)
    O0,O1,Lr=T(0),T(40),T(44)
    def softpv(fast):
        for r in range(4): A(f'v_exp_f32 v{Ys+r}, v{Ys+r}')
        if fast:
            padd(Mp[0],Mp[1]); padd(Mp[2],Mp[3])
        A(f'v_cvt_pk_bf16_f32 v{P}, v{Ys}, v{Ys+1}\nv_cvt_pk_bf16_f32 v{P+2}, v{Ys}, v{Ys+1}')
        A(f'v_cvt_pk_bf16_f32 v{P+1}, v{Ys+2}, v{Ys+3}\nv_cvt_pk_bf16_f32 v{P+3}, v{Ys+2}, v{Ys+3}')
        if fast:
            padd(Mp[0],Mp[2])
        A(f'v_mov_b32_dpp v{P}, v{P+2} row_ror:8 row_mask:0xf bank_mask:0xc')
        A(f'v_mov_b32_dpp v{P+1}, v{P+3} row_ror:8 row_mask:0xf bank_mask:0xc')
        A(f'v_mov_b32_dpp v{P+2}, v{P+2} row_ror:8 row_mask:0xf bank_mask:0x3')
        A(f'v_mov_b32_dpp v{P+3}, v{P+3} row_ror:8 row_mask:0xf bank_mask:0x3')
        if fast:
            pmul(Ms)
        A(f'{M32} {q4(Lr)}, {q4(ones)}, {q4(P)}, 0')
        A(f'v_exp_f32 v{Ms}, v{Ms}')
        A(f'{M32} {q4(O0)}, {q4(VX)}, {q4(P)}, 0')
        A(f'v_exp_f32 v{Ms+1}, v{Ms+1}')
        A(f'{M32} {q4(O1)}, {q4(VX+4)}, {q4(P)}, 0')
        A(f'v_exp_f32 v{Ms+2}, v{Ms+2}\nv_exp_f32 v{Ms+3}, v{Ms+3}')
        A(f'v_cvt_pk_bf16_f32 v{Ms}, v{Ms}, v{Ms+1}')
        A(f'v_cvt_pk_bf16_f32 v{Ms+1}, v{Ms+2}, v{Ms+3}')
        zero(accO[0])
        A(f'{M16} {q4(Lr)}, v[{half}:{half+1}], v[{Ms}:{Ms+1}], {q4(Lr)}')
        zero(accO[2])
        A(f'{M16} {q4(O0)}, v[{vm}:{vm+1}], v[{Ms}:{Ms+1}], {q4(O0)}')
        zero(accO[3])
        A(f'{M16} {q4(O1)}, v[{vm+2}:{vm+3}], v[{Ms}:{Ms+1}], {q4(O1)}')
    padd(Y[0],Y[1]); padd(Y[2],Y[3]); padd(Y[0],Y[2])
    A(f'ds_read_b128 {q4(ones)}, v{vCon} offset:16\nds_read_b64 v[{half}:{half+1}], v{vCon} offset:32')
    pmul(Ys)
    for c in range(2): cv(vm+2*c,accv[c]); cv(vm+2*c+1,accv[c]+2)
    if 'nokm' not in X: A(f'buffer_store_dwordx4 {q4(vm)}, v{vL16}, s[4:7], s{sVMo} offen sc1')
    A(f's_cmp_eq_u32 s{sStep}, 63\ns_cbranch_scc1 {done}')
    stamp(3)
    softpv(True)
    ostg=[VX,T(36)]
    ra=[T(33),T(34),T(35)]
    rl=T(32); m1,m2=T(10),T(11)
    sm_slow=A.label('SMX'); sm_ok=A.label('SMK')
    A(f'v_xor_b32 v{ra[1]}, 1024, v{vOw}\nv_xor_b32 v{ra[2]}, 1536, v{vOw}')
    A(f'v_mov_b32 v{m2}, s{sHi20}\nv_med3_f32 v{m1}, v{Lr}, s{sLo20}, v{m2}\nv_rcp_f32 v{rl}, v{Lr}')
    A(f'v_cmp_neq_f32 vcc, v{m1}, v{Lr}')
    if 'forceslow' in X: A(f's_branch {sm_slow}')
    else: A(f's_cbranch_vccnz {sm_slow}')
    A(f'{sm_ok}:')
    def c():
        A(f'{sm_slow}:')
        tm=[T(16),T(36),T(24),T(28)]
        for j in range(4): A(f'ds_read_b128 {q4(tm[j])}, v{vL16} offset:{L_QK+1024*j}')
        padd(tm[0],tm[1]); padd(tm[2],tm[3]); padd(tm[0],tm[2])
        for r in range(4): A(f'v_mov_b32 v{Ys+r}, v{T(16)+r}')
        for j in range(4): A(f'ds_read_b128 {q4(tm[j])}, v{vOr} offset:{L_MX+256*j}')
        padd(tm[0],tm[1]); padd(tm[2],tm[3]); padd(tm[0],tm[2])
        for r in range(4): A(f'v_mov_b32 v{Ms+r}, v{T(16)+r}')
        pmul(Ys); pmul(Ms)
        A(f"""
v_max3_f32 v{m1}, v{Ys}, v{Ys+1}, v{Ys+2}
v_max3_f32 v{m2}, v{Ms}, v{Ms+1}, v{Ys+3}
v_max3_f32 v{m1}, v{m1}, v{Ms+2}, v{Ms+3}
v_max_f32 v{m1}, v{m1}, v{m2}
v_max_f32_dpp v{m1}, v{m1}, v{m1} row_ror:8 row_mask:0xf bank_mask:0xf
v_mov_b32 v{m2}, v{m1}
v_permlane32_swap_b32 v{m1}, v{m2}
v_max_f32 v{m1}, v{m1}, v{m2}
v_mov_b32 v{m2}, v{m1}
v_permlane16_swap_b32 v{m1}, v{m2}
v_max_f32 v{m1}, v{m1}, v{m2}
""")
        for r in range(4): A(f'v_sub_f32 v{Ys+r}, v{Ys+r}, v{m1}\nv_sub_f32 v{Ms+r}, v{Ms+r}, v{m1}')
        softpv(False)
        A(f'v_xor_b32 v{ra[1]}, 1024, v{vOw}\nv_xor_b32 v{ra[2]}, 1536, v{vOw}\nv_rcp_f32 v{rl}, v{Lr}\ns_branch {sm_ok}')
    cold.append(c)
    vmpos=len(A.items)
    zero(accO[1])
    Q.clear(); qop(lds_o[0],ostg[0]); qop(lds_o[1],ostg[1])
    A(f'v_xor_b32 v{ra[0]}, 512, v{vOw}')
    own=T(12)
    for i,b in enumerate((O0,O0+2,O1,O1+2)):
        A(f'v_pk_mul_f32 v[{b}:{b+1}], v[{b}:{b+1}], v[{rl}:{rl+1}] op_sel_hi:[1,0]')
    for i,b in enumerate((O0,O0+2,O1,O1+2)):
        A(f'v_cvt_pk_bf16_f32 v{own+i}, v{b}, v{b+1}')
    A(f'ds_write_b128 v{vOw}, {q4(own)} offset:{L_O}')
    wp=len(A.items); pop()
    vP,vPa,vFa,vFd=T(32),T(33),T(34),T(35)
    def flag(): A(f'buffer_store_dword v{vFd}, v{vFa}, s[4:7], s{sFlg} offen {st}')
    def probe(): A(f'buffer_load_dword v{vP}, v{vPa}, s[4:7], s{sPrb} offen sc1 ;nw')
    stamp(4)
    fr=[own,T(0),T(4),T(8)]
    def osm(k,P):
        op=('o',k,P)
        if m[op][0]=='l':
            i=lds_o.index(op); b=ostg[i%2]; B=f'v[{b}:{b+7}]'
        else: B=R(m[op])
        A(f'{SM} {q4(accO[P])}, {q4(fr[k])}, {B}, v{vIdx}')
        if m[op][0]=='l' and i+2<len(lds_o): qop(lds_o[i+2],ostg[i%2])
        pop()
    def osg(k):
        loc=m[('s',k//2)]
        A(f'{M32} {q4(accS)}, {q4(fr[k])}, {R(loc,4*(k%2),4)}, {"0" if k==0 else q4(accS)}')
        pop()
    osg(0); osm(0,0); osm(0,1)
    A(f's_waitcnt lgkmcnt({sum(1 for it in A.items[wp:] if isinstance(it,Ins) and it.kind=="ds")})\ns_barrier')
    for k in range(1,4): A(f'ds_read_b128 {q4(fr[k])}, v{ra[k-1]} offset:{L_O}')
    osm(0,2); osm(0,3)
    stamp(5)
    def tagit(r): A(f'v_and_or_b32 v{r}, v{r}, -2, s{sTag}')
    def pack(x,y,so):
        A(f'v_cvt_pk_bf16_f32 v{x}, v{x}, v{x+1}\nv_cvt_pk_bf16_f32 v{x+1}, v{x+2}, v{x+3}')
        tagit(x)
        A(f'v_cvt_pk_bf16_f32 v{x+2}, v{y}, v{y+1}\nv_cvt_pk_bf16_f32 v{x+3}, v{y+2}, v{y+3}')
        tagit(x+2)
        A(f'v_permlane16_swap_b32 v{x+1}, v{x+3}\nv_permlane16_swap_b32 v{x}, v{x+2}')
        A(f'buffer_store_dwordx4 {q4(x)}, v{vH1st}, s[4:7], {so} offen {st}')
    A(f's_add_u32 s{sStep1}, s{sStep}, 1\nv_bfe_u32 v{vFa}, v{vL16}, 0, 6\nv_mov_b32 v{vFd}, s{sStep1}\nv_lshlrev_b32 v{vFa}, 4, v{vFa}')
    if Dl['fl']<0: flag()
    A(f'v_bfe_u32 v{vPa}, v{vL16}, 2, 7\nv_mov_b32 v{vP}, 0')
    cnt=[0]
    def tick():
        if cnt[0]==Dl['fl']: flag()
        if cnt[0] in Dl['pr']: probe()
        cnt[0]+=1
    for k in range(1,4): osg(k); tick()
    for k in range(1,4): osm(k,0); tick()
    for k in range(1,4): osm(k,1); tick()
    A(f'v_cvt_pk_bf16_f32 v{accS}, v{accS}, v{accS+1}\nv_cvt_pk_bf16_f32 v{accS+1}, v{accS+2}, v{accS+3}')
    tagit(accS)
    A(f's_mov_b64 exec, 0xffffffff\nbuffer_store_dwordx2 v[{accS}:{accS+1}], v{vH1s1}, s[4:7], 0 offen {st}\ns_mov_b64 exec, -1')
    pack(accO[0],accO[1],'0')
    sel=T(44); D=T(16)
    for j in range(4): A(f'v_cndmask_b32 v{sel+j}, 0, v{vSel}, s[{sMask+2*j}:{sMask+2*j+1}]')
    for k in range(1,4): osm(k,2); tick()
    for k in range(1,4): osm(k,3); tick()
    pack(accO[2],accO[3],f's{s32k}')
    stamp(6)
    nyoung=sum(1 for it in A.items[vmpos:] if isinstance(it,Ins) and it.vm)
    f1=sum((((a^c)|(b^c))<<(a*4+b*2+c)) for a in (0,1) for b in (0,1) for c in (0,1))
    f2=sum(((a|(b^c))<<(a*4+b*2+c)) for a in (0,1) for b in (0,1) for c in (0,1))
    def zacc(lo=0,hi=16):
        for i in range(lo,hi): A(f'v_mov_b32 v{T(i)}, 0 ;nw')
    def h1loads(hd):
        for j in range(4): A(f'buffer_load_dwordx4 {q4(hd+4*j)}, v{vL16}, s[4:7], s{sH1ld} offen offset:{1024*j} sc1')
    def rbody(hd):
        ck=T(20)
        for j in range(4):
            A(f'{M32} {q4(D)}, {q4(hd+4*j)}, {q4(sel)}, {q4(D) if j else "0"}')
            if j==0: A(f'v_bitop3_b32 v{ck}, v{hd}, v{hd+2}, s{sTag} bitop3:{f1:#x}')
            else:
                A(f'v_bitop3_b32 v{ck}, v{ck}, v{hd+4*j}, s{sTag} bitop3:{f2:#x}')
                A(f'v_bitop3_b32 v{ck}, v{ck}, v{hd+4*j+2}, s{sTag} bitop3:{f2:#x}')
        A(f'v_and_b32 v{ck}, 1, v{ck}\nv_cmp_ne_u32 vcc, 0, v{ck}')
    def reduce(between=None):
        p1=A.label('P1'); ok=A.label('P1K')
        hd=T(28)
        stamp(10)
        h1loads(hd)
        if between: between()
        rbody(hd); A(f's_cbranch_vccnz {p1}')
        A(f'{ok}:')
        A(f'v_permlane32_swap_b32 v{D}, v{D+2}\nv_permlane32_swap_b32 v{D+1}, v{D+3}')
        A(f'v_pk_add_f32 v[{D}:{D+1}], v[{D}:{D+1}], v[{D+2}:{D+3}]\nv_cvt_pk_bf16_f32 v{D}, v{D}, v{D+1}')
        A(f'buffer_store_dword v{D}, v{vH2st}, s[4:7], s{sH2c} offen {st}')
        stamp(11)
        def c():
            A(f'{p1}:')
            h1loads(hd)
            A(f's_add_u32 s{sPoll}, s{sPoll}, 1\ns_add_u32 s{sSt+13}, s{sSt+13}, 1\ns_cmp_gt_u32 s{sPoll}, {POLLMAX}\ns_cbranch_scc1 {fail}')
            rbody(hd); A(f's_cbranch_vccz {ok}\ns_branch {p1}')
        cold.append(c)
    def book():
        for j in range(2): ldsop(lds_qk[j],stg[j])
        A(f"""
s_add_u32 s{sH2ld}, s{sH2c}, s{sW3k}
s_add_u32 s{sT2}, s{sH2ld}, 4096
s_add_u32 s{sT3}, s{sH2c}, s{sLate}
s_xor_b32 s{sTag}, s{sTag}, 1
s_mov_b32 s{sT1}, s{sH2p}
s_mov_b32 s{sH2p}, s{sH2n}
s_mov_b32 s{sH2n}, s{sH2c}
s_mov_b32 s{sH2c}, s{sT1}
s_add_u32 s{sKVc}, s{sKn}, 8192
s_add_u32 s{sKn}, s{sKn}, {0 if 'samekv' in X else 32*16384}
s_add_u32 s{sPf}, s{sPf}, {32*16384}
s_add_u32 s{sKMo}, s{sKMo}, {32*2048}
s_add_u32 s{sVMo}, s{sVMo}, {32*4096}
s_add_u32 s{sStep}, s{sStep}, 1
s_mov_b32 s{sPoll}, 0
""")
    def l_load(): A(f'buffer_load_dwordx4 {q4(late)}, v{vL16}, s[4:7], s{sT3} offen sc1')
    def gather(ne,dl):
        p2=A.label('P2')
        regs=[T(20),T(24),T(16)][:ne]; ck=T(16) if ne==2 else T(20)
        offs=[(f's{sH2ld}',0),(f's{sH2ld}',2048),(f's{sT2}',0)]
        def e_loads():
            for j in range(ne): A(f'buffer_load_dwordx4 {q4(regs[j])}, v{vL16}, s[4:7], {offs[j][0]} offen offset:{offs[j][1]} sc1')
        def body():
            for j,r in enumerate(regs):
                spec = not (ne==2 and j==1)
                if spec: A(f'ds_write_b128 v{vMw}, {q4(r)} offset:{L_M+2048*j}')
                if j==0: A(f's_nop 1\nv_max3_u32 v{ck}, v{r}, v{r+1}, v{r+2}\nv_max_u32 v{ck}, v{ck}, v{r+3}')
                else: A(f'v_max3_u32 v{ck}, v{ck}, v{r}, v{r+1}\nv_max3_u32 v{ck}, v{ck}, v{r+2}, v{r+3}')
            A(f'v_cmp_eq_u32 vcc, -1, v{ck}\ns_cbranch_vccnz {p2}')
            if ne==2: A(f'ds_write_b128 v{vMw}, {q4(regs[1])} offset:{L_M+2048}')
            if dl<0: l_load()
            stamp(8)
            A(f's_branch {barA}')
        e_loads()
        if dl>=0: delay(dl); l_load()
        body()
        def c():
            A(f'{p2}:')
            e_loads()
            if dl>=0: l_load()
            A(f's_add_u32 s{sPoll}, s{sPoll}, 1\ns_add_u32 s{sSt+14}, s{sSt+14}, 1\ns_cmp_gt_u32 s{sPoll}, {POLLMAX}\ns_cbranch_scc1 {fail}')
            body()
        cold.append(c)
    W1,W2,W3,W2n=[A.label(x) for x in ('W1','W2','W3','W2X')]
    def setml(): A(f's_mov_b32 s{sPoll}, 0')
    A(f's_cmp_lg_u32 s{sW}, 0\ns_cbranch_scc1 {W3}')
    A('s_barrier'); delay(Dl['a1']); reduce(lambda: (zacc(),setml())); book(); delay(Dl['a2']); gather(3,Dl['al'])
    A(f'{W3}:\ns_cmp_lg_u32 s{sW}, 3\ns_cbranch_scc1 {W2}')
    sp=A.label('SPIN'); go=A.label('GO')
    A(f'v_cmp_gt_u32 vcc, s{sStep1}, v{vP} ;nw\ns_cbranch_vccnz {sp}')
    A(f'{go}:\ns_barrier'); stamp(9)
    def c():
        A(f'{sp}:\ns_mov_b32 s{sPoll}, 0\n{sp}_l:')
        for i in range(4):
            probe(); A(f's_add_u32 s{sSt+11}, s{sSt+11}, 1'); delay(Dl['sp'])
            A(f'v_cmp_gt_u32 vcc, s{sStep1}, v{vP} ;nw\ns_cbranch_vccz {go}')
        A(f's_add_u32 s{sPoll}, s{sPoll}, 1\ns_cmp_lt_u32 s{sPoll}, 32\ns_cbranch_scc1 {sp}_l\ns_branch {go}')
    cold.append(c)
    zacc(); setml()
    A(f's_add_u32 s{sT1}, s{sStep}, 2\ns_lshr_b32 s{sT1}, s{sT1}, 2\ns_add_u32 s{sT1}, s{sT1}, 1\ns_min_u32 s{sT1}, s{sT1}, 16')
    emit_wait_kv(A,sT1,fail,T(26))
    delay(Dl['d1']); book(); l_load()
    stamp(8); A(f's_branch {barA}')
    A(f'{W2}:\ns_cmp_lg_u32 s{sW}, 2\ns_cbranch_scc1 {W1}')
    A(f's_cmp_ge_u32 s{sU}, 72\ns_barrier\ns_cbranch_scc1 {W2n}')
    reduce(lambda: (zacc(),setml())); book(); delay(Dl['a2']); gather(2,Dl['al'])
    A(f'{W2n}:')
    zacc(); setml(); delay(Dl['n2']); book(); gather(2,Dl['al'])
    A(f'{W1}:')
    zacc(); setml(); A('s_barrier'); delay(Dl['b1']); reduce(); book(); delay(Dl['b2']); l_load(); stamp(8); A(f's_branch {barA}')
    for c in cold: c()

def emit_chain(A, fail, end, D1=0, D2=2, stamps=(), modes=('',), X=()):
    m, qk_order, lds_qk, lds_o = operand_map()
    emit_chain_init(A, m, X)
    lp=A.label('CB')
    A(f"""
s_mov_b32 s{sPoll}, 0
{lp}:
v_mov_b32 v{VX}, 0
global_load_dword v{VX+1}, v{VX}, s[66:67] offset:{D_CBAR} sc1
global_load_dword v{VX+2}, v{VX}, s[66:67] offset:{D_INIT} sc1
global_load_dword v{VX+3}, v{VX}, s[66:67] offset:{D_TICK} sc1
s_add_u32 s{sPoll}, s{sPoll}, 1
s_cmp_gt_u32 s{sPoll}, {POLLMAX}
s_cbranch_scc1 {fail}
v_readfirstlane_b32 s{sT1}, v{VX+1}
v_readfirstlane_b32 s{sT2}, v{VX+2}
s_cmp_lt_u32 s{sT1}, 32
s_cbranch_scc1 {lp}
s_cmp_eq_u32 s{sT2}, 0
s_cbranch_scc1 {lp}
v_readfirstlane_b32 s{sT2}, v{VX+3}
s_cmp_lt_u32 s{sT2}, 32
s_cselect_b32 s{sMode}, 1, 0
s_mov_b32 s{sT1}, 1
""")
    emit_wait_kv(A,sT1,fail,VX)
    A(f'buffer_load_dwordx4 {q4(KX)}, v{vKx}, s[4:7], s{sKVc} offen sc1')
    A(f'buffer_load_dwordx4 {q4(KX+4)}, v{vKx}, s[4:7], s{sKVc} offen offset:256 sc1')
    A(f's_add_u32 s{sKVc}, s{sKVc}, 8192')
    for i in range(16):
        if not ('itrace' in X and 4<=i<9): A(f's_mov_b32 s{sSt+i}, 0')
    if 'rdy' in X: A('s_memrealtime s[90:91]\ns_waitcnt lgkmcnt(0)\ns_mov_b32 s99, s90\ns_mov_b32 s90, 0\ns_mov_b32 s91, 0')
    if 'initstamp' in X: A(f's_memtime s[{sSt+10}:{sSt+11}]\ns_waitcnt lgkmcnt(0)\ns_sub_u32 s{sSt+10}, s{sSt+10}, s72\ns_mov_b32 s{sSt+11}, 0')
    done=A.label('CDONE')
    trcopy='\n'.join(f's_mov_b32 s{sSt+4+i}, s{sTr+2*i}' for i in range(6))+'\n' if any(isinstance(x,tuple) and x[0]=='tr' for x in X) else ''
    if len(modes)==2:
        A(f's_cmp_lg_u32 s{sMode}, 0\ns_cbranch_scc1 CSTEP_1_prep')
    for i,st in enumerate(modes):
        emit_chain_loop(A, m, qk_order, lds_qk, lds_o, st, i, fail, done, D1, D2, list(stamps), X)
    A(f"""
{done}:
s_waitcnt lgkmcnt(0)
{trcopy}s_waitcnt vmcnt(0)
s_barrier
s_cmp_lg_u32 s{sW}, 3
s_cbranch_scc1 {end}
v_mov_b32 v{T(0)}, 0
v_mov_b32 v{T(1)}, 64
buffer_store_dword v{T(1)}, v{T(0)}, s[4:7], s{sFlagM} offen sc1
s_branch {end}
""")
```

```python
from asmgen import *
from common import *
import math, struct

POLLMAX=400000
PROF=False
DEFER=True
PROFSEG=63
M32='v_mfma_f32_32x32x16_bf16'
def q4(b,f='v'): return f'{f}[{b}:{b+3}]'
def q16(b,f='v'): return f'{f}[{b}:{b+15}]'
def fbits(x): return struct.unpack('<I',struct.pack('<f',x))[0]

sH,sW = 12,13
sT0,sT1,sT2,sT3=36,37,38,39
sPoll=40

def lane_setup(A):
    A('''
v_and_b32 v1, 63, v0
v_lshlrev_b32 v2, 4, v1
v_and_b32 v3, 31, v1
v_lshrrev_b32 v4, 5, v1
v_bfe_u32 v5, v1, 4, 1
v_bfe_u32 v6, v1, 2, 2
v_and_b32 v7, 3, v1
''')

def wait_init(A, fail, dbg='s[66:67]'):
    lp=A.label('WI')
    A(f'''
s_mov_b32 s{sPoll}, 0
v_mov_b32 v8, 0
{lp}:
global_load_dword v9, v8, {dbg} offset:{D_INIT} sc1
s_add_u32 s{sPoll}, s{sPoll}, 1
s_cmp_gt_u32 s{sPoll}, {POLLMAX}
s_cbranch_scc1 {fail}
v_readfirstlane_b32 s{sT1}, v9
s_cmp_eq_u32 s{sT1}, 0
s_cbranch_scc1 {lp}
''')

def wait_chain_loaded(A, fail):
    lp=A.label('WC'); ok=A.label('WK')
    A(f'''
s_mov_b32 s{sPoll}, 0
v_mov_b32 v250, 0
{lp}:
global_load_dword v251, v250, s[66:67] offset:{D_CBAR} sc1
s_add_u32 s{sPoll}, s{sPoll}, 1
s_cmp_gt_u32 s{sPoll}, {POLLMAX}
s_cbranch_scc1 {fail}
v_readfirstlane_b32 s{sT1}, v251
s_cmp_ge_u32 s{sT1}, 32
s_cbranch_scc1 {ok}
s_sleep 8
s_branch {lp}
{ok}:
''')

def poll_ge(A, fail, soff, need, offs, tmp, cache=None, sleep=4):
    lp=A.label('PG'); ok=A.label('PK')
    if cache is not None: A(f's_cmp_ge_u32 s{cache}, s{need}\ns_cbranch_scc1 {ok}')
    res=cache if cache is not None else sT3
    A(f's_mov_b32 s{sPoll}, 0\nv_mov_b32 v{tmp}, 0\n{lp}:')
    for i,o in enumerate(offs): A(f'buffer_load_dword v{tmp+1+i}, v{tmp}, s[4:7], s{soff} offen offset:{o} sc1')
    A(f's_add_u32 s{sPoll}, s{sPoll}, 1\ns_cmp_gt_u32 s{sPoll}, {POLLMAX}\ns_cbranch_scc1 {fail}')
    for i in range(1,len(offs)): A(f'v_min_u32 v{tmp+1}, v{tmp+1}, v{tmp+1+i}')
    A(f'v_readfirstlane_b32 s{res}, v{tmp+1}\ns_cmp_ge_u32 s{res}, s{need}\ns_cbranch_scc1 {ok}\ns_sleep {sleep}\ns_branch {lp}\n{ok}:')

def emit_proj(A, kind, fail, end, X=()):
    wname={'K':'B_Wk','V':'B_Wv','Q':'B_Wq'}[kind]
    A(f'''
s_load_dwordx2 s[4:5], s[0:1], {KA['ws']}
s_load_dwordx2 s[8:9], s[0:1], {KA[wname]}
s_load_dwordx2 s[16:17], s[0:1], {KA['B_x']}
s_load_dwordx2 s[66:67], s[0:1], {KA['dbg']}
''')
    lane_setup(A)
    if kind=='Q' and DEFER: A('s_waitcnt lgkmcnt(0)'); wait_chain_loaded(A, fail)
    vA=10
    vX=14; vX2=250; vR=244; sXs=34
    XB=[16,32]
    WB=48
    ACC=0
    A(f'''
v_lshrrev_b32 v8, 4, v1
v_and_b32 v9, 15, v1
v_lshlrev_b32 v15, 2, v8
v_xor_b32 v9, v9, v15
v_lshlrev_b32 v9, 4, v9
v_lshl_add_u32 v9, v8, 13, v9
s_lshl_b32 s{sT0}, s{sH}, 8
v_add_u32 v9, s{sT0}, v9
v_lshl_add_u32 v8, v4, 5, v6
v_lshlrev_b32 v8, 8, v8
v_lshl_add_u32 v8, v5, 5, v8
v_lshl_add_u32 v8, v7, 3, v8
''')
    for E in range(4): A(f'v_xor_b32 v15, {E}, v6\nv_lshl_add_u32 v{vA+E}, v15, 6, v8')
    A(f'''
v_lshrrev_b32 v15, 3, v1
v_mul_u32_u24 v{vX}, 1152, v15
v_lshrrev_b32 v15, 4, v1
v_and_b32 v{vX2}, 7, v1
v_xor_b32 v15, v15, v{vX2}
v_xor_b32 v{vX2}, 4, v15
v_lshl_add_u32 v{vX2}, v{vX2}, 4, v{vX}
v_lshl_add_u32 v{vX}, v15, 4, v{vX}
s_lshl_b32 s{sXs}, s{sW}, 12
s_add_u32 s{sXs}, s{sXs}, 147456
v_bfe_u32 v15, v3, 1, 3
v_lshlrev_b32 v{vR}, 2, v4
v_xor_b32 v15, v15, v{vR}
v_lshlrev_b32 v{vR+3}, 7, v3
v_add_u32 v{vR+3}, s{sXs}, v{vR+3}
v_lshl_add_u32 v{vR}, v15, 4, v{vR+3}
v_xor_b32 v{vR+1}, 16, v{vR}
v_xor_b32 v{vR+2}, 32, v{vR}
v_xor_b32 v{vR+3}, 48, v{vR}
s_waitcnt lgkmcnt(0)
s_mov_b32 s6, {WS_BYTES}
s_mov_b32 s7, 0x20000
s_mov_b32 s10, {576*8192}
s_mov_b32 s11, 0x20000
s_mov_b32 s18, {2048*1152}
s_mov_b32 s19, 0x20000
s_mul_i32 s{sT0}, s{sW}, {36*1024}
s_mul_i32 s{sT1}, s{sW}, {36*4*8192}
s_mov_b32 s{sT2}, 0
''')
    A(f's_lshl_b32 s{sT3}, s{sH}, 2\ns_add_u32 s{sT3}, s{sT3}, s{sW}\ns_mul_i32 s{sT3}, s{sT3}, 18432\nv_lshlrev_b32 v15, 6, v1')
    for i in range(5): A(f'buffer_load_dword v{100+i}, v15, s[16:19], s{sT3} offen\ns_add_u32 s{sT3}, s{sT3}, 4096')
    lp=A.label('WD')
    A(f'''
{lp}:
s_mov_b32 m0, s{sT0}
s_add_u32 s{sT0}, s{sT0}, 1024
buffer_load_dwordx4 v9, s[8:11], s{sT1} offen lds
s_add_u32 s{sT1}, s{sT1}, {4*8192}
s_add_u32 s{sT2}, s{sT2}, 1
s_cmp_lt_u32 s{sT2}, 36
s_cbranch_scc1 {lp}
''')
    sSeg,sXo,sCc,sRound,sOut,sFl,sKVok,sMok,sFlM,sNeed=20,21,22,23,24,25,26,27,28,29
    SEGX=32*1152
    A(f'''
s_mov_b32 s{sSeg}, s{sW}
s_mul_i32 s{sXo}, s{sW}, {SEGX}
s_mov_b32 s{sRound}, 0
s_mov_b32 s{sKVok}, 0
s_mov_b32 s{sMok}, 0
s_lshl_b32 s{sFl}, s{sH}, 9
s_add_u32 s{sFl}, s{sFl}, {F_KV+(256 if kind=='V' else 0)}
s_lshl_b32 s{sFlM}, s{sH}, 7
s_add_u32 s{sFlM}, s{sFlM}, {F_M}
''')
    def xdma():
        A(f's_mov_b32 m0, s{sXs}')
        for i in range(4):
            A(f's_add_u32 s{sT3}, s{sXo}, {i*(9216-1024)}')
            A(f'buffer_load_dwordx4 v{vX2 if i%2 else vX}, s[16:19], s{sT3} offen offset:{1024*i} lds')
        A(f's_add_u32 s{sXo}, s{sXo}, 128')
    def xread(buf):
        for j in range(4): A(f'ds_read_b128 {q4(buf+4*j)}, v{vR+j}')
    xdma()
    if kind=='Q':
        A(f'v_lshlrev_b32 v15, 2, v4\nv_mov_b32 v8, {fbits(-1e30):#x}')
        for r in range(16):
            A(f'v_add_u32 v9, {8*(r//4)+r%4}, v15\nv_cmp_gt_u32 vcc, v9, v3\nv_cndmask_b32 v{80+r}, 0, v8, vcc')
    wait_init(A, fail)
    A('s_waitcnt vmcnt(0)\ns_barrier')
    xread(XB[0]); A('s_waitcnt lgkmcnt(0)'); xdma()
    if PROF: A('s_memrealtime s[90:91]\ns_waitcnt lgkmcnt(0)\ns_mov_b32 s99, s90')
    seg=A.label('SEG'); cl=A.label('CC')
    A(f'{seg}:')
    for i in range(64): A(f'v_accvgpr_write_b32 a{i}, 0')
    def wread(slot,E,j,base):
        if 'notr' in X: return
        for x in range(2): A(f'ds_read_b64_tr_b16 v[{WB+4*slot+2*x}:{WB+4*slot+2*x+1}], v{vA+E} offset:{base+(8*j+4*x)*256}')
    def chunk(cc):
        buf,nbuf,base,last,first=XB[cc%2],XB[(cc+1)%2],(cc%3)*16384,cc==8,cc==0
        seq=[(j,E) for j in range(4) for E in range(4)]
        if first:
            for n in range(6): wread(n%8,seq[n][1],seq[n][0],base)
        for n,(j,E) in enumerate(seq):
            m=n+6
            if n==11:
                if 'nox' not in X: A('s_waitcnt vmcnt(0)')
                xread(nbuf)
            if m<16: wread(m%8,seq[m][1],seq[m][0],base)
            elif not last: wread(m%8,seq[m-16][1],seq[m-16][0],base+16384)
            w=q4(WB+4*(n%8)); x=q4(buf+4*j)
            a,b=(x,w) if kind=='V' else (w,x)
            A(f'{M32} {q16(16*E,"a")}, {a}, {b}, {q16(16*E,"a")}')
            if n==13:
                A(f's_waitcnt lgkmcnt({0 if last else 6})')
                if cc==7: A(f's_add_u32 s{sXo}, s{sXo}, {4*SEGX-9*128}')
                xdma()
    for cc in range(9):
        chunk(cc)
        if cc in (2,5):
            for E in range(4): A(f'v_add_u32 v{vA+E}, {3*16384}, v{vA+E}')
    for E in range(4): A(f'v_subrev_u32 v{vA+E}, {6*16384}, v{vA+E}')
    PK=96
    for E in range(4):
        for r in range(16): A(f'v_accvgpr_read_b32 v{128+r}, a{16*E+r}')
        for j in range(2):
            for t,a in enumerate((j,j+2)):
                for p in range(2): A(f'v_cvt_pk_bf16_f32 v{PK+8*E+4*j+2*t+p}, v{128+4*a+2*p}, v{128+4*a+2*p+1}')
    A(f's_lshl_b32 s{sOut}, s{sSeg}, 5\ns_add_u32 s{sOut}, s{sOut}, s{sH}')
    if kind in 'KV':
        A(f's_lshl_b32 s{sOut}, s{sOut}, 14\ns_add_u32 s{sOut}, s{sOut}, {WS_KV+(8192 if kind=="V" else 0)}\ns_add_u32 s{sT0}, s{sOut}, 4096')
        for p in range(8 if 'nost' not in X else 0): A(f'buffer_store_dwordx4 {q4(PK+4*p)}, v2, s[4:7], s{sOut if p<4 else sT0} offen offset:{1024*(p%4)} sc1')
        for i in range(16): A(f'v_mov_b32 v{XB[0]+i}, v{XB[1]+i}')
        nf=A.label('NF')
        A(f'''
s_add_u32 s{sRound}, s{sRound}, 1
s_waitcnt vmcnt(0)
s_barrier
s_cmp_lg_u32 s{sW}, 0
s_cbranch_scc1 {nf}
v_mov_b32 v8, 0
v_mov_b32 v9, s{sRound}
buffer_store_dword v9, v8, s[4:7], s{sFl} offen sc1
{nf}:
''')
    else:
        c=math.log2(math.e)/math.sqrt(128.0)
        KB=128
        VB=160; VM=192; S=208; SM=224;
        sKVb,sKMb,sVMb,sOb=30,31,32,33
        A(f'''
s_lshl_b32 s{sKVb}, s{sOut}, 14
s_add_u32 s{sKVb}, s{sKVb}, {WS_KV}
s_lshl_b32 s{sKMb}, s{sOut}, 11
s_add_u32 s{sKMb}, s{sKMb}, {WS_KM}
s_lshl_b32 s{sVMb}, s{sOut}, 12
s_add_u32 s{sVMb}, s{sVMb}, {WS_VM}
s_lshl_b32 s{sOb}, s{sOut}, 13
s_add_u32 s{sOb}, s{sOb}, {WS_O}
s_add_u32 s{sNeed}, s{sRound}, 1
''')
        poll_ge(A,fail,sFl,sNeed,[0,256],240,cache=sKVok)
        for p in range(16):
            if p%4==0 and p: A(f's_add_u32 s{sKVb}, s{sKVb}, 4096')
            A(f'buffer_load_dwordx4 {q4(KB+4*p)}, v2, s[4:7], s{sKVb} offen offset:{1024*(p%4)} sc1')
        for p in range(8): A(f'{M32} {q16(S)}, {q4(KB+4*p)}, {q4(PK+4*p)}, {q16(80) if p==0 else q16(S)}')
        for i in range(16): A(f'v_mov_b32 v{XB[0]+i}, v{XB[1]+i}')
        A(f'''
v_and_b32 v8, 7, v1
v_lshlrev_b32 v8, 4, v8
v_lshl_add_u32 v8, v4, 7, v8
v_and_b32 v9, 15, v1
v_lshlrev_b32 v9, 4, v9
v_lshl_add_u32 v9, v4, 8, v9
v_lshl_add_u32 v9, v5, 3, v9
s_add_u32 s{sNeed}, s{sSeg}, 1
''')
        poll_ge(A,fail,sFlM,sNeed,[0],240,cache=sMok,sleep=2)
        for p in range(8): A(f'buffer_load_dwordx4 {q4(KB+4*p)}, v8, s[4:7], s{sKMb} offen offset:{256*p} sc1')
        for E in range(4):
            for hf in range(2): A(f'buffer_load_dwordx2 v[{VM+4*E+2*hf}:{VM+4*E+2*hf+1}], v9, s[4:7], s{sVMb} offen offset:{1024*E+512*hf} sc1')
        mx,t=240,241
        A(f'v_max3_f32 v{mx}, v{S}, v{S+1}, v{S+2}')
        for r in range(3,15,2): A(f'v_max3_f32 v{mx}, v{mx}, v{S+r}, v{S+r+1}')
        A(f'v_max_f32 v{mx}, v{mx}, v{S+15}')
        for p in range(8): A(f'{M32} {q16(SM)}, {q4(KB+4*p)}, {q4(PK+4*p)}, {"0" if p==0 else q16(SM)}')
        A(f'''
s_mov_b32 s{sT0}, {fbits(c):#x}
v_max3_f32 v{mx}, v{mx}, v{SM}, v{SM+1}
v_max3_f32 v{mx}, v{mx}, v{SM+2}, v{SM+3}
v_mov_b32 v{t}, v{mx}
v_permlane32_swap_b32 v{mx}, v{t}
v_max_f32 v{mx}, v{mx}, v{t}
v_mul_f32 v{mx}, s{sT0}, v{mx}
''')
        regs=[S+r for r in range(16)]+[SM+r for r in range(4)]
        for r in regs: A(f'v_fma_f32 v{r}, v{r}, s{sT0}, -v{mx}')
        for r in regs: A(f'v_exp_f32 v{r}, v{r}')
        P=KB
        for j in range(2):
            for tt,a in enumerate((j,j+2)):
                for p in range(2): A(f'v_cvt_pk_bf16_f32 v{P+4*j+2*tt+p}, v{S+4*a+2*p}, v{S+4*a+2*p+1}')
        for tt in range(2):
            for p in range(2): A(f'v_cvt_pk_bf16_f32 v{P+8+2*tt+p}, v{SM+2*p}, v{SM+2*p+1}')
        for E in range(4):
            A(f'{M32} {q16(16*E,"a")}, {q4(VB+8*E)}, {q4(P)}, 0')
            A(f'{M32} {q16(16*E,"a")}, {q4(VB+8*E+4)}, {q4(P+4)}, {q16(16*E,"a")}')
            A(f'{M32} {q16(16*E,"a")}, {q4(VM+4*E)}, {q4(P+8)}, {q16(16*E,"a")}')
            if E==0:
                for r in regs[1:10]: A(f'v_add_f32 v{S}, v{S}, v{r}')
            if E==1:
                for r in regs[10:]: A(f'v_add_f32 v{S}, v{S}, v{r}')
        A(f'v_mov_b32 v{t}, v{S}\nv_permlane32_swap_b32 v{S}, v{t}\nv_add_f32 v{S}, v{S}, v{t}\nv_rcp_f32 v{mx}, v{S}')
        A(f's_add_u32 s{sT0}, s{sOb}, 4096')
        for E in range(4):
            for r in range(16): A(f'v_accvgpr_read_b32 v{S+r}, a{16*E+r}')
            for r in range(16): A(f'v_mul_f32 v{S+r}, v{mx}, v{S+r}')
            for j in range(2):
                for tt,a in enumerate((j,j+2)):
                    for p in range(2): A(f'v_cvt_pk_bf16_f32 v{PK+8*E+4*j+2*tt+p}, v{S+4*a+2*p}, v{S+4*a+2*p+1}')
                p=2*E+j
                A(f'buffer_store_dwordx4 {q4(PK+4*p)}, v2, s[4:7], s{sOb if p<4 else sT0} offen offset:{1024*(p%4)} sc1')
        A(f'''
s_lshl_b32 s{sT0}, s{sOut}, 2
s_add_u32 s{sT0}, s{sT0}, {F_O}
v_mov_b32 v8, 0
v_mov_b32 v9, 1
s_add_u32 s{sRound}, s{sRound}, 1
s_waitcnt vmcnt(0)
buffer_store_dword v9, v8, s[4:7], s{sT0} offen sc1
''')
    A(f'''
s_add_u32 s{sSeg}, s{sSeg}, 4
s_cmp_lt_u32 s{sSeg}, 64
s_cbranch_scc1 {seg}
''')
    if kind=='K': A(f's_add_u32 s{sH}, s{sH}, 36\ns_branch L_op')
    elif kind=='V': A(f's_add_u32 s{sH}, s{sH}, 68\ns_cmp_lt_u32 s{sH}, 72\ns_cbranch_scc1 L_op\ns_branch {end}')
    else: A(f's_branch {end}')

def emit_outproj(A, fail, end):
    M16='v_mfma_f32_16x16x32_bf16'
    A(f"""
s_load_dwordx2 s[4:5], s[0:1], {KA['ws']}
s_load_dwordx2 s[8:9], s[0:1], {KA['B_Wo']}
s_load_dwordx2 s[16:17], s[0:1], {KA['out']}
s_load_dwordx2 s[66:67], s[0:1], {KA['dbg']}
""")
    lane_setup(A)
    sZ,sNb,sSeg,sSrc,sLb,sPar,sFl=20,21,22,23,24,25,26
    sInc,sJmp,sF1,sF2,sG=27,28,29,30,31
    S0=44
    A(f"""
s_cmp_ge_u32 s{sH}, 36
s_cselect_b32 s{sG}, 1, 0
s_cselect_b32 s{sT0}, 36, 0
s_sub_u32 s{sH}, s{sH}, s{sT0}
s_cmp_ge_u32 s{sH}, 18
s_cselect_b32 s{sZ}, 1, 0
s_mul_i32 s{sT0}, s{sZ}, 18
s_sub_u32 s{sNb}, s{sH}, s{sT0}
v_lshrrev_b32 v8, 2, v1
v_mul_u32_u24 v8, 1152, v8
v_lshl_add_u32 v8, v7, 4, v8
s_lshl_b32 s{sT0}, s{sNb}, 6
v_add_u32 v8, s{sT0}, v8
s_mul_i32 s{sLb}, s{sW}, 32768
v_lshrrev_b32 v15, 4, v1
v_lshl_add_u32 v9, v15, 2, v6
v_lshlrev_b32 v9, 6, v9
v_lshl_add_u32 v9, v7, 3, v9
v_add_u32 v9, s{sLb}, v9
s_waitcnt lgkmcnt(0)
s_mov_b32 s6, {WS_BYTES}
s_mov_b32 s7, 0x20000
s_mov_b32 s10, {4096*1152}
s_mov_b32 s11, 0x20000
s_mov_b32 s18, {2048*2304}
s_mov_b32 s19, 0x20000
s_mul_i32 s{sSrc}, s{sW}, {1024*1152}
""")
    def dma(hd):
        for i in range(8):
            A(f's_add_u32 m0, s{sLb}, {(hd%4)*8192+1024*i}\nbuffer_load_dwordx4 v8, s[8:11], s{sSrc} offen lds\ns_add_u32 s{sSrc}, s{sSrc}, {16*1152}')
    for hd in range(4): dma(hd)
    for hd in range(8):
        A(f's_waitcnt vmcnt({8*min(3,7-hd)})')
        for E in range(4):
            for c in range(2):
                for x in range(2):
                    r=((hd*4+E)*2+c)*4+2*x
                    A(f'ds_read_b64_tr_b16 a[{r}:{r+1}], v9 offset:{(hd%4)*8192+(32*E+16*x)*64+32*c}')
        if hd+4<8:
            A('s_waitcnt lgkmcnt(0)'); dma(hd+4)
    A(f"""
v_and_b32 v14, 15, v1
s_lshl_b32 s{sT0}, s{sZ}, 8
v_lshlrev_b32 v28, 9, v15
v_lshl_add_u32 v28, v14, 4, v28
v_add_u32 v28, s{sT0}, v28
s_lshl_b32 s{sT0}, s{sW}, 11
v_add_u32 v11, s{sT0}, v2
s_lshl_b32 s{sT0}, s{sW}, 9
v_lshlrev_b32 v12, 3, v1
v_add_u32 v12, s{sT0}, v12
v_bfe_u32 v10, v1, 1, 4
v_mul_u32_u24 v10, 2304, v10
v_lshl_add_u32 v10, v4, 3, v10
v_and_b32 v14, 1, v1
v_lshl_add_u32 v10, v14, 2, v10
s_lshl_b32 s{sT0}, s{sNb}, 6
s_lshl_b32 s{sT1}, s{sW}, 4
s_add_u32 s{sT0}, s{sT0}, s{sT1}
s_mul_i32 s{sT1}, s{sZ}, {16*2304}
s_add_u32 s{sT0}, s{sT0}, s{sT1}
s_add_u32 s{sT0}, s{sT0}, 1152
v_add_u32 v10, s{sT0}, v10
v_and_b32 v13, 7, v1
v_lshlrev_b32 v13, 2, v13
s_lshl_b32 s{sT0}, s{sW}, 5
v_add_u32 v13, s{sT0}, v13
s_mul_i32 s{sSeg}, s{sG}, {S0+1}
""")
    wait_init(A, fail)
    A('s_waitcnt lgkmcnt(0)\ns_barrier')
    seg=A.label('OSEG'); lp=A.label('OP'); ok=A.label('OK'); go=A.label('OGO'); plain=A.label('OPL')
    OB=32; ACC=16; RB=160
    def ld(k):
        A(f'buffer_load_dwordx4 {q4(OB+4*k)}, v28, s[4:7], s{sSrc} offen offset:{2048*(k%2)} sc1')
        if k%2 and k<31: A(f's_add_u32 s{sSrc}, s{sSrc}, 4096')
    def epi():
        for c in range(2): A(f'ds_write_b128 v11, {q4(ACC+4*c)} offset:{1024*c}')
        A('s_waitcnt lgkmcnt(0)\ns_barrier')
        for w in range(4): A(f'ds_read_b64 v[{RB+2*w}:{RB+2*w+1}], v12 offset:{2048*w}')
        for w in range(1,4):
            for b in range(2): A(f'v_add_f32 v{RB+b}, v{RB+b}, v{RB+2*w+b}')
        A(f"""
v_cvt_pk_bf16_f32 v{RB}, v{RB}, v{RB+1}
s_mul_i32 s{sT0}, s{sSeg}, {32*2304}
buffer_store_dword v{RB}, v10, s[16:19], s{sT0} offen
v_xor_b32 v11, 8192, v11
v_xor_b32 v12, 8192, v12
s_mov_b32 s{sSeg}, s{sInc}
""")
    def nxt(d,src):
        A(f's_cmp_ge_u32 s{src}, {S0}\ns_cselect_b32 s{d}, 2, 1\ns_add_u32 s{d}, s{d}, s{src}')
    def src(sg): A(f's_lshl_b32 s{sSrc}, s{sg}, 18\ns_lshl_b32 s{sT0}, s{sW}, 16\ns_add_u32 s{sSrc}, s{sSrc}, s{sT0}\ns_add_u32 s{sSrc}, s{sSrc}, {WS_O}')
    def flg(d,sg): A(f's_lshl_b32 s{d}, s{sg}, 7\ns_add_u32 s{d}, s{d}, {F_O}')
    A(f'{seg}:')
    nxt(sInc,sSeg); flg(sFl,sSeg); flg(sF1,sInc); src(sSeg)
    A(f"""
s_mov_b32 s{sPoll}, 0
{lp}:
buffer_load_dword v14, v13, s[4:7], s{sFl} offen sc1
buffer_load_dword v15, v13, s[4:7], s{sF1} offen sc1
s_add_u32 s{sPoll}, s{sPoll}, 1
s_cmp_gt_u32 s{sPoll}, {POLLMAX}
s_cbranch_scc1 {fail}
v_cmp_eq_u32 vcc, 0, v14
s_cbranch_vccz {ok}
s_sleep 1
s_branch {lp}
{ok}:
""")
    for k in range(32): ld(k)
    prof=f's_cmp_lg_u32 s{sSeg}, {PROFSEG}\ns_cbranch_scc1 {go}_p\ns_memrealtime s[90:91]\ns_waitcnt lgkmcnt(0)\ns_mov_b32 s99, s90\n{go}_p:' if PROF else ''
    A(f"""
{go}:
{prof}
""")
    nxt(sInc,sSeg); nxt(sF2,sInc); flg(sF2,sF2); src(sInc)
    A(f"""
v_cmp_eq_u32 vcc, 0, v15
s_cmp_ge_u32 s{sInc}, 64
s_cbranch_scc1 {plain}
s_cbranch_vccnz {plain}
buffer_load_dword v15, v13, s[4:7], s{sF2} offen sc1
""")
    for k in range(32):
        for c in range(2): A(f'{M16} {q4(ACC+4*c)}, {q4(8*k+4*c,"a")}, {q4(OB+4*k)}, {"0" if k==0 else q4(ACC+4*c)}')
        ld(k)
    epi()
    A(f's_branch {go}\n{plain}:')
    for k in range(32):
        for c in range(2): A(f'{M16} {q4(ACC+4*c)}, {q4(8*k+4*c,"a")}, {q4(OB+4*k)}, {"0" if k==0 else q4(ACC+4*c)}')
    epi()
    A(f's_cmp_lt_u32 s{sSeg}, 64\ns_cbranch_scc1 {seg}\ns_branch {end}')

def emit_flaginit(A, end):
    A(f'''
s_load_dwordx2 s[4:5], s[0:1], {KA['ws']}
s_load_dwordx2 s[66:67], s[0:1], {KA['dbg']}
v_lshlrev_b32 v2, 4, v0
v_mov_b32 v4, 0
v_mov_b32 v5, 0
v_mov_b32 v6, 0
v_mov_b32 v7, 0
s_waitcnt lgkmcnt(0)
s_mov_b32 s6, {WS_BYTES}
s_mov_b32 s7, 0x20000
''')
    for i in range(FLAG_BYTES//4096): A(f's_mov_b32 s{sT0}, {WS_FLAGS+4096*i}\nbuffer_store_dwordx4 v[4:7], v2, s[4:7], s{sT0} offen sc1')
    A(f'''
s_waitcnt vmcnt(0)
s_barrier
s_cmp_lg_u32 s{sW}, 0
s_cbranch_scc1 {end}
v_mov_b32 v5, 1
s_mov_b64 exec, 1
global_store_dword v4, v5, s[66:67] offset:{D_INIT} sc1
s_branch {end}
''')
```

```python
import sys, os
sys.path.insert(0, os.path.dirname(__file__))
from asmgen import *
from common import *
import chain, workb
NAME='concat_heads__grouped_kv_mqa__memory_aug_recurrent_mem_tr__prompt'

def build(chain_kw=None, with_a=True, prof=False, XK=(), XV=(), warm=False, defer=False, pseg=63):
    A=Asm()
    workb.PROF=prof; workb.DEFER=defer; workb.PROFSEG=pseg
    sH,sW=12,13
    A(f'''
s_cmp_ge_u32 s2, 256
s_cbranch_scc1 L_exit
s_load_dwordx2 s[66:67], s[0:1], {KA['dbg']}
s_getreg_b32 s20, hwreg(HW_REG_XCC_ID)
s_and_b32 s20, s20, 7
v_lshrrev_b32 v1, 6, v0
v_readfirstlane_b32 s{sW}, v1
s_mov_b32 s{chain.sMode}, 0
''')
    if prof: A('s_memrealtime s[96:97]\ns_memtime s[100:101]')
    if warm:
        A(f'''
s_cmp_lt_u32 s20, 4
s_cbranch_scc1 L_nowarm
s_load_dwordx2 s[24:25], s[0:1], {KA['B_Wq']}
s_load_dwordx2 s[28:29], s[0:1], {KA['B_Wk']}
s_load_dwordx2 s[32:33], s[0:1], {KA['B_Wv']}
s_sub_u32 s21, s20, 4
s_lshl_b32 s21, s21, 5
s_lshr_b32 s22, s2, 3
s_add_u32 s21, s21, s22
s_lshl_b32 s21, s21, 2
s_add_u32 s21, s21, s{sW}
s_mul_i32 s21, s21, 9216
v_and_b32 v2, 63, v0
v_lshlrev_b32 v2, 6, v2
s_mov_b32 s26, {576*8192}
s_mov_b32 s27, 0x20000
s_mov_b32 s30, {576*8192}
s_mov_b32 s31, 0x20000
s_mov_b32 s34, {576*8192}
s_mov_b32 s35, 0x20000
s_add_u32 s22, s21, 4096
s_add_u32 s23, s21, 5120
s_waitcnt lgkmcnt(0)
''')
        for i,srd in enumerate(('s[24:27]','s[28:31]','s[32:35]')):
            for j,so in enumerate((21,22,23)): A(f'buffer_load_dword v{240+3*i+j}, v2, {srd}, s{so} offen')
        A('L_nowarm:')
    A(f'''
s_waitcnt lgkmcnt(0)
s_cmp_lg_u32 s{sW}, 0
s_cbranch_scc1 L_gotrole
s_mov_b64 exec, 1
s_lshl_b32 s21, s20, 2
v_mov_b32 v2, s21
v_mov_b32 v3, 1
global_atomic_add v4, v2, v3, s[66:67] sc0
v_readfirstlane_b32 s22, v4
s_cmp_lt_u32 s22, 32
s_cbranch_scc1 L_tk
v_mov_b32 v2, 0
global_atomic_add v4, v2, v3, s[66:67] offset:{D_OVF} sc0
v_readfirstlane_b32 s23, v4
s_mov_b32 s40, 0
L_ovf:
global_load_dwordx4 v[4:7], v2, s[66:67] sc1
global_load_dwordx4 v[8:11], v2, s[66:67] offset:16 sc1
s_add_u32 s40, s40, 1
s_cmp_gt_u32 s40, 400000
s_cbranch_scc1 L_exit
''')
    for i in range(8): A(f'v_readfirstlane_b32 s{24+i}, v{4+i}')
    A('s_mov_b32 s32, 0')
    for i in range(8): A(f's_add_u32 s32, s32, s{24+i}')
    A('s_cmp_lt_u32 s32, 256\ns_cbranch_scc1 L_ovf')
    for i in range(8):
        nx=f'L_ovf{i}'
        A(f'''
s_min_u32 s33, s{24+i}, 32
s_sub_u32 s34, 32, s33
s_cmp_ge_u32 s23, s34
s_cbranch_scc1 {nx}
s_mov_b32 s20, {i}
s_add_u32 s22, s33, s23
s_branch L_tk
{nx}:
s_sub_u32 s23, s23, s34
''')
    A(f'''
s_branch L_exit
L_tk:
s_lshl_b32 s20, s20, 5
s_add_u32 s20, s20, s22
v_mov_b32 v2, 0
v_mov_b32 v3, s20
ds_write_b32 v2, v3
s_mov_b64 exec, -1
s_waitcnt lgkmcnt(0)
L_gotrole:
s_barrier
v_mov_b32 v2, 0
ds_read_b32 v3, v2
v_readfirstlane_b32 s20, v3
s_barrier
s_mov_b32 s98, s20
s_and_b32 s{sH}, s20, 31
s_cmp_lt_u32 s20, 32
s_cbranch_scc1 L_chain
s_cmp_lt_u32 s20, 64
s_cbranch_scc1 L_k
s_cmp_lt_u32 s20, 96
s_cbranch_scc1 L_v
s_cmp_lt_u32 s20, 128
s_cbranch_scc1 L_q
''')
    A(f'''
s_sub_u32 s{sH}, s20, 128
s_cmp_lt_u32 s20, 164
s_cbranch_scc1 L_op
s_sub_u32 s{sH}, s20, 164
s_cmp_lt_u32 s20, 228
s_cbranch_scc1 L_a
s_cmp_eq_u32 s20, 228
s_cbranch_scc1 L_fi
s_branch L_end
''')
    A('L_fi:'); workb.emit_flaginit(A,'L_end')
    A('L_k:'); workb.emit_proj(A,'K','L_fail','L_end',XK)
    A('L_v:'); workb.emit_proj(A,'V','L_fail','L_end',XV)
    A('L_q:'); workb.emit_proj(A,'Q','L_fail','L_end')
    A('L_op:'); workb.emit_outproj(A,'L_fail','L_end')
    A('L_a:')
    if with_a:
        import worka
        worka.emit_a(A,'L_fail','L_end')
    else: A('s_branch L_end')
    A('L_chain:')
    kw=dict(modes=('','sc1'),X=('rdy',) if prof else ()); kw.update(chain_kw or {})
    chain.emit_chain(A,'L_fail','L_end',**kw)
    A('L_fail:\nL_end:')
    if prof:
        A(f'''
s_memrealtime s[94:95]
s_memtime s[92:93]
s_load_dwordx2 s[4:5], s[0:1], {KA['ws']}
s_mov_b64 exec, 1
s_waitcnt lgkmcnt(0)
s_lshl_b32 s98, s98, 2
s_add_u32 s98, s98, s{sW}
s_lshl_b32 s98, s98, 4
s_sub_u32 s92, s92, s100
s_add_u32 s98, s98, 0x8000000
v_mov_b32 v0, s98
v_mov_b32 v2, s96
v_mov_b32 v3, s94
v_mov_b32 v4, s92
v_mov_b32 v5, s99
global_store_dwordx4 v0, v[2:5], s[4:5]
''')
    A('L_exit:\ns_endpgm')
    body=A.finalize()
    hdr=open(os.path.join(os.path.dirname(__file__),'..','cdna_kernels',NAME+'.s.ref')).read().split('; Override launch')[0]
    txt=hdr+f'''; One persistent launch: 256 workgroups, one per CU, roles chosen at run time (see gen/ comments in the body).
; @launch grid=(256,1,1) block=(256,1,1) lds=163840
.amdgcn_target "amdgcn-amd-amdhsa--gfx950"
.text
.globl {NAME}_kernel
.p2align 8
.type {NAME}_kernel,@function
{NAME}_kernel:
{body}
.section .rodata,"a"
.p2align 6
.amdhsa_kernel {NAME}_kernel
  .amdhsa_next_free_vgpr 512
  .amdhsa_next_free_sgpr 102
  .amdhsa_accum_offset 256
  .amdhsa_group_segment_fixed_size 0
  .amdhsa_kernarg_size 120
  .amdhsa_user_sgpr_count 2
  .amdhsa_user_sgpr_kernarg_segment_ptr 1
  .amdhsa_system_sgpr_workgroup_id_x 1
.end_amdhsa_kernel
'''
    return txt, A.stats

if __name__=='__main__':
    txt,st=build(with_a=os.path.exists(os.path.join(os.path.dirname(__file__),'worka.py')))
    out=sys.argv[1] if len(sys.argv)>1 else os.path.join(os.path.dirname(__file__),'..','cdna_kernels',NAME+'.s')
    open(out,'w').write(txt); print(st, len(txt))
```

```python
from asmgen import *
from common import *
import math, struct

L_M  = 0
L_O  = 8192
L_QK = 10240
L_MX = L_QK+4096
L_C  = L_MX+1024
L_W  = L_C+64
WREG = 36864
assert L_W+4*WREG<=163840

vL16,vIdx,vS16,vS16b,vWl,vYw,vOw,vOr,vMw,vH1st,vH1s1,vH2st,vKx,vMl_,vSel,vCon = range(16)
KX = 16
VX = 24
T = lambda i: 32+i
sH,sW,sStep,sU = 12,13,14,15
sTag,sH1ld,sKVc = 16,17,18
sH2c,sH2n,sH2p = 19,20,21
sKn,sKMo,sVMo = 24,25,26
sScale = 27
sMask = 28
sT0,sT1,sT2,sT3 = 36,37,38,39
sPoll = 40
sH2ld = 41
sFlagM = 42
sFlagKV = 43
sKVok = 44
sH2pz = 45
sHi = 46
sW3k = 48
s32k = 49
sMode = 50
sW256 = 52
sStep1 = 53
sPrb = 54
sFlg = 55
sLate = 22
sSc2 = 70
sLo20 = 69
sHi20 = 23
sPf = 27
sFlagKVd = 68
sPfK = 42
sFlagM2 = 8
sFlagMw = 51
sTr = 56
sSt = 80
POLLMAX=200000

TORD=[0,2,4,6,8,1,3,5,7]
QKPOS=[1,3,7,11,14,18,22,25,28,32]
QKBUF=[0,1,0,1,0,1,0,1,0,1]
def operand_map():
    qk_order=[]
    for t in TORD:
        qk_order += [('q',t,0),('q',t,1),('k',t,0),('k',t,1)]
    lds_qk = [qk_order[n] for n in QKPOS]
    lds_o = [('o',0,2),('o',0,3),('o',2,0),('o',3,0),('o',3,1),('o',1,2),('o',1,3),('o',3,3)]
    m={}
    li=0
    for op in lds_o+lds_qk:
        m[op]=('l',li); li+=1
    rest=[op for op in qk_order if op not in m]
    rest+=[('v',t,c) for t in range(9) for c in range(2)]
    rest+=[('o',k,P) for k in range(4) for P in range(4) if ('o',k,P) not in m]
    rest+=[('s',0),('s',1)]
    regs=[('v',80+8*i) for i in range(22)]+[('a',8*i) for i in range(32)]
    assert len(rest)==len(regs)==54
    for op,r in zip(rest,regs): m[op]=r
    return m, qk_order, lds_qk, lds_o

def R(loc,off=0,n=8):
    return vr(loc[1]+off,n,loc[0])
def q4(b): return f'v[{b}:{b+3}]'

def status_loads(A):
    A(f"""
v_mov_b32 v{VX}, 0
global_load_dwordx4 v[64:67], v{VX}, s[66:67] offset:{D_TICK} sc1
global_load_dwordx4 v[68:71], v{VX}, s[66:67] offset:{D_TICK+16} sc1
global_load_dword v{VX+1}, v{VX}, s[66:67] offset:{D_INIT} sc1
buffer_load_dword v{VX+2}, v{VX}, s[4:7], s{sFlagKV} offen sc1
buffer_load_dword v{VX+3}, v{VX}, s[4:7], s{sFlagKV} offen offset:256 sc1
""")

def emit_chain_init(A, m, X=()):
    l,n,g,n7,n8,g1,g2,r4,cc=['v%d'%i for i in range(32,41)]
    t0,t1,t2='v41','v42','v43'
    A(f"""
s_load_dwordx2 s[4:5], s[0:1], {KA['ws']}
s_load_dwordx2 s[56:57], s[0:1], {KA['B_Wq']}
s_load_dwordx2 s[58:59], s[0:1], {KA['B_Wk']}
s_load_dwordx2 s[60:61], s[0:1], {KA['B_Wv']}
s_load_dwordx2 s[62:63], s[0:1], {KA['B_Wo']}
s_load_dwordx2 s[64:65], s[0:1], {KA['B_mem0']}
s_load_dwordx2 s[66:67], s[0:1], {KA['dbg']}
v_and_b32 {l}, 63, v0
v_and_b32 {n}, 15, {l}
v_lshrrev_b32 {g}, 4, {l}
v_lshlrev_b32 v{vL16}, 4, {l}
v_and_b32 {n7}, 7, {n}
v_lshrrev_b32 {n8}, 3, {n}
v_and_b32 {g1}, 1, {g}
v_lshrrev_b32 {g2}, 1, {g}
v_lshrrev_b32 {r4}, 2, {n}
v_and_b32 {cc}, 3, {n}
v_mov_b32 {t0}, 0x4444
v_mov_b32 {t1}, 0xeeee
v_cmp_eq_u32 s[{sHi}:{sHi+1}], 1, {n8}
v_cndmask_b32 v{vIdx}, {t0}, {t1}, s[{sHi}:{sHi+1}]
s_mul_i32 s{sT0}, s{sW}, {WREG}
s_add_u32 s{sT0}, s{sT0}, {L_W}
v_add_u32 v{vWl}, s{sT0}, v{vL16}
s_lshl_b32 s{sT1}, s{sW}, 10
v_add_u32 v{vYw}, s{sT1}, v{vL16}
v_lshlrev_b32 {t0}, 7, {g}
v_lshl_add_u32 {t0}, {n7}, 4, {t0}
v_and_b32 v{vOr}, 255, {t0}
s_lshl_b32 s{sT1}, s{sW}, 9
v_add_u32 v{vOw}, s{sT1}, {t0}
s_lshl_b32 s{sW256}, s{sW}, 8
s_lshl_b32 s{sW3k}, s{sW}, 10
s_cmp_eq_u32 s{sW}, 2
s_cselect_b32 s{sW3k}, 6144, s{sW3k}
s_cmp_eq_u32 s{sW}, 3
s_cselect_b32 s{sW3k}, 4096, s{sW3k}
v_add_u32 v{vMw}, s{sW3k}, v{vL16}
; vH1st = (16w + l/8)*4096 + h*128 + (l%8)*16
v_lshrrev_b32 {t0}, 3, {l}
v_lshlrev_b32 {t0}, 12, {t0}
v_lshl_add_u32 {t0}, {n7}, 4, {t0}
s_lshl_b32 s{sT1}, s{sW}, 16
s_lshl_b32 s{sT2}, s{sH}, 7
s_add_u32 s{sT1}, s{sT1}, s{sT2}
v_add_u32 v{vH1st}, s{sT1}, {t0}
; vH1s1 = (64 + 2w + n8)*4096 + h*128 + n7*16 + g1*8
v_lshlrev_b32 {t0}, 12, {n8}
v_lshl_add_u32 {t0}, {n7}, 4, {t0}
v_lshl_add_u32 {t0}, {g1}, 3, {t0}
s_lshl_b32 s{sT1}, s{sW}, 13
s_add_u32 s{sT1}, s{sT1}, s{sT2}
s_add_u32 s{sT1}, s{sT1}, {64*4096}
v_add_u32 v{vH1s1}, s{sT1}, {t0}
s_lshr_b32 s{sU}, s{sH}, 3
s_lshl_b32 s{sU}, s{sU}, 4
s_and_b32 s{sT1}, s{sH}, 7
s_add_u32 s{sU}, s{sU}, s{sT1}
s_lshl_b32 s{sT1}, s{sW}, 3
s_add_u32 s{sU}, s{sU}, s{sT1}
s_add_u32 s{sT1}, s{sH}, 64
s_cmp_eq_u32 s{sW}, 2
s_cselect_b32 s{sU}, s{sT1}, s{sU}
s_cmp_eq_u32 s{sW}, 3
s_cselect_b32 s{sU}, 72, s{sU}
v_lshlrev_b32 {t0}, 4, {n7}
v_lshl_add_u32 {t0}, {g1}, 3, {t0}
v_lshl_add_u32 {t0}, {g2}, 2, {t0}
s_lshl_b32 s{sT1}, s{sU}, 7
v_add_u32 v{vH2st}, s{sT1}, {t0}
s_lshr_b32 s{sT1}, s{sH}, 2
s_add_u32 s{sT1}, s{sT1}, 64
s_lshl_b32 s{sT1}, s{sT1}, 7
s_and_b32 s{sT2}, s{sH}, 3
s_lshl_b32 s{sT2}, s{sT2}, 2
s_add_u32 s{sT1}, s{sT1}, s{sT2}
v_lshlrev_b32 {t0}, 4, {n7}
v_add_u32 {t0}, s{sT1}, {t0}
s_cmp_eq_u32 s{sW}, 2
s_cselect_b64 vcc, -1, 0
v_cndmask_b32 v{vH2st}, v{vH2st}, {t0}, vcc
s_lshl_b32 s{sT1}, s{sW}, 11
v_lshlrev_b32 {t0}, 9, {g}
v_add_u32 {t0}, s{sT1}, {t0}
v_lshl_add_u32 {t1}, {n}, 4, {t0}
v_mov_b32 v{vKx}, {t1}
v_add_u32 v{vMl_}, s{sT1}, v{vL16}
v_mov_b32 {t0}, 0x3f80
v_mov_b32 {t1}, 0x3f800000
v_and_b32 {t2}, 1, {n}
v_cmp_eq_u32 vcc, 0, {t2}
v_cndmask_b32 v{vSel}, {t1}, {t0}, vcc
v_lshrrev_b32 {t2}, 1, {n7}
v_cmp_eq_u32 s[{sMask}:{sMask+1}], 0, {t2}
v_cmp_eq_u32 s[{sMask+2}:{sMask+3}], 1, {t2}
v_cmp_eq_u32 s[{sMask+4}:{sMask+5}], 2, {t2}
v_cmp_eq_u32 s[{sMask+6}:{sMask+7}], 3, {t2}
v_mov_b32 v{vCon}, {L_C}
v_lshlrev_b32 {t0}, 1, {g1}
v_cmp_eq_u32 vcc, {t0}, {t2}
v_cndmask_b32 v{vS16}, 0, v{vSel}, vcc
v_add_u32 {t0}, 1, {t0}
v_cmp_eq_u32 vcc, {t0}, {t2}
v_cndmask_b32 v{vS16b}, 0, v{vSel}, vcc
; init-only address regs: v16 dma voffset qkv ; v17..v19 tr bases ; v20,v21 mem0 ; v71..v79 Wo dma voffsets
v_lshlrev_b32 {t0}, 1, {g1}
v_xor_b32 {t0}, {t0}, {n}
v_lshlrev_b32 {t0}, 4, {t0}
v_lshl_add_u32 {t0}, {g}, 13, {t0}
s_lshl_b32 s{sT1}, s{sH}, 8
v_add_u32 v16, s{sT1}, {t0}
v_xor_b32 v28, 64, v16
v_xor_b32 v29, 128, v16
v_xor_b32 v30, 192, v16
v_lshrrev_b32 {t1}, 1, {r4}
v_and_b32 {t2}, 1, {r4}
v_lshlrev_b32 {t0}, 2, {g1}
v_lshl_add_u32 {t0}, {t1}, 3, {t0}
v_add_u32 {t0}, {t0}, {t2}
v_lshlrev_b32 {t0}, 8, {t0}
v_lshl_add_u32 {t0}, {cc}, 3, {t0}
v_lshl_add_u32 v17, {g1}, 1, {t2}
v_lshl_add_u32 v17, {t1}, 2, v17
s_lshl_b32 s{sT1}, s{sW}, 1
v_xor_b32 v17, s{sT1}, v17
v_lshl_add_u32 {t0}, v17, 5, {t0}
v_xor_b32 v23, 32, {t0}
v_mul_u32_u24 v22, {WREG}, {g2}
v_add_u32 v22, {L_W}, v22
v_add_u32 v17, {t0}, v22
v_add_u32 v23, v23, v22
v_add_u32 v22, {2*WREG}, v17
v_add_u32 v31, {2*WREG}, v23
v_lshlrev_b32 {t0}, 4, {g1}
v_lshl_add_u32 {t0}, {g2}, 2, {t0}
v_add_u32 {t0}, {t0}, {t2}
v_mul_u32_u24 {t0}, 288, {t0}
v_lshl_add_u32 {t0}, {t1}, 6, {t0}
v_lshl_add_u32 {t0}, {cc}, 3, {t0}
v_add_u32 v18, s{sT0}, {t0}
v_lshl_add_u32 {t0}, {g}, 2, {r4}
v_mul_u32_u24 {t0}, 288, {t0}
v_lshl_add_u32 {t0}, {cc}, 3, {t0}
v_add_u32 {t0}, 256, {t0}
v_add_u32 v19, s{sT0}, {t0}
""")
    for ii in range(9):
        A(f"""
v_add_u32 {t0}, {64*ii}, {l}
v_mul_u32_u24 {t1}, 3641, {t0}
v_lshrrev_b32 {t1}, 16, {t1}
v_mul_u32_u24 {t2}, 18, {t1}
v_sub_u32 {t2}, {t0}, {t2}
v_mul_u32_u24 {t1}, 1152, {t1}
v_lshl_add_u32 v{71+ii}, {t2}, 4, {t1}""")
    A(f"""
v_mul_u32_u24 {t0}, 1152, {n7}
v_lshl_add_u32 {t0}, {n8}, 4, {t0}
v_lshl_add_u32 v20, {g}, 5, {t0}
v_mul_u32_u24 {t1}, 288, {g}
v_add_u32 v21, {t0}, {t1}
s_waitcnt lgkmcnt(0)
s_mov_b32 s6, {WS_BYTES}
s_mov_b32 s7, 0x20000
s_mov_b32 s10, {0 if 'nodata' in X else 576*8192}
s_mov_b32 s11, 0x20000
s_mov_b32 s68, s{sT0}
s_lshl_b32 s{sH1ld}, s{sU}, 12
s_cmp_lt_u32 s{sU}, 72
s_cselect_b32 s{sH1ld}, s{sH1ld}, {WS_BYTES}
s_cmp_lt_u32 s{sW}, 3
s_cselect_b32 s{sH2pz}, 0, {WS_BYTES}
v_mov_b32 v44, 0
v_mov_b32 v45, 0
v_mov_b32 v46, 0
v_mov_b32 v47, 0
v_mov_b32 v48, 0x3f803f80
v_mov_b32 v49, 0x3f803f80
v_mov_b32 v50, 0x3f803f80
v_mov_b32 v51, 0x3f803f80
v_mov_b32 v52, 0x3f003f00
v_mov_b32 v53, 0x3f003f00
v_mov_b32 v54, -1
""")
    lab=A.label('CI')
    A(f"""
ds_write_b128 v{vCon}, v[44:47]
ds_write_b128 v{vCon}, v[48:51] offset:16
ds_write_b64 v{vCon}, v[52:53] offset:32
""")
    HELP='help' in X
    HL=([x[1] for x in X if isinstance(x,tuple) and x[0]=='hl'] or [5])[0]
    if HELP:
        A(f"""
s_and_b32 s{sT1}, s{sH}, 3
s_add_u32 s{sT2}, s{sT1}, -1
s_cselect_b32 s{sT2}, s{sT2}, 0
s_lshl_b32 s{sT2}, s{sT2}, 2
s_add_u32 s{sT2}, s{sT2}, s{sW}
s_mul_i32 s{sT2}, s{sT2}, 11
s_cmp_eq_u32 s{sT1}, 1
s_cselect_b32 s{sT2}, 128, s{sT2}
v_lshrrev_b32 v60, 4, v{vL16}
v_add_u32 v61, s{sT2}, v60
v_lshrrev_b32 v62, 1, v61
v_lshlrev_b32 v62, 13, v62
v_and_b32 v63, 1, v61
v_lshl_add_u32 v62, v63, 7, v62
s_and_b32 s{sT2}, s{sH}, 28
s_add_u32 s{sT2}, s{sT2}, 1
s_lshl_b32 s{sT2}, s{sT2}, 8
v_add_u32 v62, s{sT2}, v62
v_cmp_gt_u32 s[{sT2-sT2%2}:{sT2-sT2%2+1}], {HL}, v60
v_cmp_gt_u32 vcc, 128, v61
s_and_b64 vcc, vcc, s[{sT2-sT2%2}:{sT2-sT2%2+1}]
v_mov_b32 v63, 0x10000000
v_cndmask_b32 v62, v63, v62, vcc
""")
    sRow,sRow8=sTag,sKVc
    A(f's_mul_i32 s{sRow}, s{sW}, {16*8192}\ns_mul_i32 s{sRow8}, s{sW}, {144*8192}')
    chunks=[]
    def qkv_chunk(mat,t):
        return dict(kind='w',mat=mat,t=t,size=4096,n=4+(1 if HELP and t<8 else 0))
    qk=[qkv_chunk(mm,t) for t in range(9) for mm in 'qk']
    oc=[dict(kind='o',k=k,size=9216,n=9) for k in range(4)]
    for grp in ([x[1] for x in X if isinstance(x,tuple) and x[0]=='ord'] or ['qoqqoqoqoq'])[0]:
        if grp=='q': chunks+= [qk.pop(0) for _ in range(3)]
        else: chunks.append(oc.pop(0))
    for t in range(9): chunks.append(qkv_chunk('v',t))
    ptr={'q':56,'k':58,'v':60,'o':62}
    cur_srd=[None]
    def set_srd(mat):
        if cur_srd[0]!=mat:
            A(f's_mov_b32 s8, s{ptr[mat]}\ns_mov_b32 s9, s{ptr[mat]+1}')
            cur_srd[0]=mat
    def issue(c):
        if c['kind']=='w':
            set_srd(c['mat']); t=c['t']
            d = (144*(t//2)+64*(t%2)) if t<8 else 128
            A(f's_add_u32 m0, s68, {c["addr"]}')
            if HELP and t<8: A(f's_mov_b32 s{sT1}, {d*8192}\nbuffer_load_dword v63, v62, s[8:11], s{sT1} offen')
            for ii in range(4):
                A(f's_add_u32 s{sT1}, s{sRow8 if t==8 else sRow}, {d*8192+ii*(4*8192-1024)}')
                A(f'buffer_load_dwordx4 v{(16,28,29,30)[ii]}, s[8:11], s{sT1} offen offset:{1024*ii} lds')
        else:
            set_srd('o'); k=c['k']
            A(f's_xor_b32 s{sT1}, s{sW}, {k}\ns_lshl_b32 s{sT1}, s{sT1}, 5\ns_lshl_b32 s{sT2}, s{sH}, 7\ns_add_u32 s{sT1}, s{sT1}, s{sT2}\ns_mul_i32 s{sT1}, s{sT1}, 1152\ns_mul_i32 s{sT2}, s{sW}, 288\ns_add_u32 s{sT1}, s{sT1}, s{sT2}')
            for ii in range(9):
                A(f's_add_u32 m0, s68, {c["addr"]+1024*ii}')
                A(f'buffer_load_dwordx4 v{71+ii}, s[8:11], s{sT1} offen {"nt" if "nt" in X else ""} lds')
    def ops_of(c):
        if c['kind']=='w': return [(c['mat'],c['t'],0),(c['mat'],c['t'],1)]
        return [('o',c['k'],P) for P in range(4)]+[('sx',c['k'])]
    def tr_reads(c,op,loc):
        f,b=loc
        if 'notr' in X: return
        if c['kind']=='w':
            for jh in range(2):
                for jl in (0,2):
                    off=c['addr']+jl*256
                    A(f'ds_read_b64_tr_b16 {vr(b+4*jh+jl,2,f)}, v{((17,22),(23,31))[op[2]][jh]} offset:{off}')
        elif op[0]=='o':
            P=op[2]; PP,q=P//2,P%2
            for jh in range(2):
                for jl in (0,2):
                    off=c['addr']+(8*jh+jl)*288+(64*PP+16*q)*2
                    A(f'ds_read_b64_tr_b16 {vr(b+4*jh+jl,2,f)}, v18 offset:{off}')
        else:
            for a in range(2):
                A(f'ds_read_b64_tr_b16 {vr(b+2*a,2,f)}, v19 offset:{c["addr"]+16*a*288}')
    parkregs=[('v',32),('v',40)]+[m[('v',t,c)] for t in range(1,9) for c in range(2)]
    parked={}
    live=[]; nissued=0; nslot=[0]
    def alloc(c):
        a = (nslot[0]%9)*4096
        if any(not (x['addr']+x['size']<=a or x['addr']>=a+c['size']) for x in live): return None
        nslot[0]+= 3 if c['kind']=='o' else 1
        return a
    def flush(loc,addr):
        op=parked.pop(loc); m[op]=('l',addr//2048)
        for j in range(2): A(f'ds_write_b128 v{vWl}, {R(loc,4*j,4)} offset:{addr+1024*j}')
    def early():
        A(f's_mov_b32 s8, s64\ns_mov_b32 s9, s65\ns_mov_b32 s10, 9216')
        for j in range(3):
            A(f"""
s_mul_i32 s{sT1}, s{sW}, 3
s_add_u32 s{sT1}, s{sT1}, {j}
s_lshr_b32 s{sT2}, s{sT1}, 1
s_mul_i32 s{sT2}, s{sT2}, 288
s_and_b32 s{sT3}, s{sT1}, 1
s_lshl_b32 s{sT3}, s{sT3}, 7
s_add_u32 s{sT2}, s{sT2}, s{sT3}
""")
            if j==2:
                A(f"""
s_cmp_eq_u32 s{sT1}, 8
s_cselect_b32 s{sT2}, 256, s{sT2}
s_cselect_b64 vcc, -1, 0
v_cndmask_b32 v20, v20, v21, vcc
""")
            A(f'buffer_load_dwordx4 v[{T(16)+4*j}:{T(19)+4*j}], v20, s[8:11], s{sT2} offen')
        A(f's_lshl_b32 s{sT1}, s{sH}, 9\ns_add_u32 s{sFlagKV}, s{sT1}, {F_KV}')
        A(f'v_readfirstlane_b32 s{sStep1}, v61')
        status_loads(A)
        return 3+5
    pending_reads=False; extra=0
    def its(k):
        if 'itrace' in X: A(f's_memtime s[{sSt+2}:{sSt+3}]\ns_waitcnt lgkmcnt(0)\ns_sub_u32 s{sSt+4+k}, s{sSt+2}, s72')
    its(0)
    def issue_more():
        nonlocal nissued
        while nissued<len(chunks):
            nc=chunks[nissued]
            if sum(x['n'] for x in live)+nc['n']>52: break
            a=alloc(nc)
            if a is None: break
            nc['addr']=a
            issue(nc); live.append(nc); nissued+=1
    issue_more(); its(1)
    prev=None
    for ci,c in enumerate(chunks):
        assert c in live
        if ci==10: A(f'v_mov_b32 v60, 0\nglobal_load_dword v61, v60, s[66:67] offset:{D_INIT} sc1')
        younger=sum(x['n'] for x in live if x is not c and x is not prev)+extra
        A(f's_waitcnt vmcnt({younger}) lgkmcnt(0)')
        if 'nobar' not in X: A('s_barrier')
        if ci in (8,16,22): its((0,0,8,16,22).index(ci,2))
        if ci==30: its(5)
        if prev is not None:
            live.remove(prev)
            issue_more()
            if nissued==len(chunks) and not extra: extra=early()
            if prev['kind']=='w' and prev['mat']=='v':
                for j in range(2): flush(m[('v',c['t'],j)],prev['addr']+2048*j)
        for op in ops_of(c):
            if op[0]=='sx':
                k=op[1]; loc=m[('s',k//2)]; tr_reads(c,op,(loc[0],loc[1]+4*(k%2)))
            elif m[op][0]!='l':
                assert m[op] not in parked
                tr_reads(c,op,m[op])
            else:
                loc=parkregs.pop(0); parked[loc]=op
                tr_reads(c,op,loc)
        prev=c
    A('s_waitcnt lgkmcnt(0)\ns_barrier')
    for j,loc in enumerate([('v',32),('v',40)]): flush(loc,prev['addr']+2048*j)
    assert not parked and not parkregs
    if 'rdy0' in X: A('s_memrealtime s[90:91]\ns_waitcnt lgkmcnt(0)\ns_mov_b32 s99, s90')
    c = math.log2(math.e)/math.sqrt(128.0)
    cb = struct.unpack('<I',struct.pack('<f',c))[0]
    A(f"""
s_mov_b32 s{sSc2}, {cb:#x}
s_mov_b32 s{sSc2+1}, {cb:#x}
s_mov_b32 s{sLo20}, 0x35800000
s_mov_b32 s{sHi20}, 0x49800000
s_mov_b32 s{sStep}, 0
s_mov_b32 s{sTag}, 1
s_mov_b32 s{s32k}, 32768
s_lshl_b32 s{sLate}, s{sW}, 11
s_add_u32 s{sLate}, s{sLate}, 1024
s_mov_b32 s{sH2c}, {WS_H2}
s_mov_b32 s{sH2n}, {WS_H2+H2SZ}
s_mov_b32 s{sH2p}, {WS_H2+2*H2SZ}
s_lshl_b32 s{sT1}, s{sH}, 14
s_add_u32 s{sKVc}, s{sT1}, {WS_KV}
s_add_u32 s{sKn}, s{sKVc}, {32*16384}
s_lshl_b32 s{sT2}, s{sW}, 11
s_add_u32 s{sPf}, s{sKn}, s{sT2}
s_add_u32 s{sPf}, s{sPf}, 8192
s_mov_b32 m0, {L_W+4*WREG}
s_lshl_b32 s{sT1}, s{sH}, 11
s_add_u32 s{sKMo}, s{sT1}, {WS_KM}
s_lshl_b32 s{sT1}, s{sH}, 12
s_add_u32 s{sVMo}, s{sT1}, {WS_VM}
s_lshl_b32 s{sT1}, s{sW}, 10
s_add_u32 s{sVMo}, s{sVMo}, s{sT1}
s_lshl_b32 s{sT1}, s{sH}, 7
s_add_u32 s{sFlagM}, s{sT1}, {F_M}
s_lshr_b32 s{sT1}, s{sH}, 2
s_add_u32 s{sT1}, s{sT1}, 64
s_lshl_b32 s{sT1}, s{sT1}, 12
s_and_b32 s{sT2}, s{sH}, 3
s_lshl_b32 s{sT2}, s{sT2}, 5
s_add_u32 s{sT1}, s{sT1}, s{sT2}
s_cmp_eq_u32 s{sW}, 2
s_cselect_b32 s{sH1ld}, s{sT1}, s{sH1ld}
s_sub_u32 s{sFlagMw}, s{sFlagM}, {L_C}
s_mov_b32 s{sT1}, {WS_BYTES}
s_cmp_eq_u32 s{sW}, 3
s_cselect_b32 s{sFlagMw}, s{sFlagMw}, s{sT1}
s_add_u32 s{sPrb}, s{sH}, s{sW}
s_and_b32 s{sPrb}, s{sPrb}, 3
s_lshl_b32 s{sPrb}, s{sPrb}, 8
s_add_u32 s{sPrb}, s{sPrb}, {WS_F1}
s_lshl_b32 s{sFlg}, s{sH}, 2
s_add_u32 s{sFlg}, s{sFlg}, {WS_F1}
s_cmp_eq_u32 s{sW}, 3
s_cselect_b32 s{sPrb}, s{sPrb}, s{sT1}
s_cmp_eq_u32 s{sW}, 1
s_cselect_b32 s{sFlg}, s{sFlg}, s{sT1}
""")

def emit_wait_kv(A, need_sreg, fail, tmp):
    lp=A.label('KVW'); ok=A.label('KVOK')
    A(f"""
s_cmp_ge_u32 s{sKVok}, s{need_sreg}
s_cbranch_scc1 {ok}
s_mov_b32 s{sPoll}, 0
{lp}:
v_mov_b32 v{tmp}, 0
buffer_load_dword v{tmp+1}, v{tmp}, s[4:7], s{sFlagKV} offen offset:256 sc1
buffer_load_dword v{tmp}, v{tmp}, s[4:7], s{sFlagKV} offen sc1
s_add_u32 s{sPoll}, s{sPoll}, 1
s_cmp_gt_u32 s{sPoll}, {POLLMAX}
s_cbranch_scc1 {fail}
v_min_u32 v{tmp}, v{tmp}, v{tmp+1}
v_readfirstlane_b32 s{sKVok}, v{tmp}
s_cmp_lt_u32 s{sKVok}, s{need_sreg}
s_cbranch_scc1 {lp}
{ok}:
""")

def emit_chain_loop(A, m, qk_order, lds_qk, lds_o, st, tag, fail, done, D1=0, D2=2, stamps=(), X=()):
    def stamp(i):
        if ('tr',i) in X:
            k=[x for x in X if isinstance(x,tuple) and x[0]=='tr'].index(('tr',i))
            sk=A.label('TR')
            A(f's_cmp_gt_u32 s{sStep}, {31 if i in (8,7,13) or (i==0 and k>0) else 30}\ns_cbranch_scc1 {sk}\ns_memtime s[{sTr+2*k}:{sTr+2*k+1}]\n{sk}:')
        if i in stamps:
            k=stamps.index(i)
            A(f's_memtime s[{sSt+2}:{sSt+3}]\ns_waitcnt lgkmcnt(0)')
            if k==0: A(f's_mov_b32 s{sSt}, s{sSt+2}')
            else: A(f's_sub_u32 s{sSt+3}, s{sSt+2}, s{sSt}\ns_add_u32 s{sSt+4+k}, s{sSt+4+k}, s{sSt+3}')
    def delay(n):
        while n>0:
            c=min(n,16); A(f's_nop {c-1}'); n-=c
    Dl=dict(a1=0,a2=30,g=28,al=25,b1=40,b2=80,c1=4,c2=35,d1=105,nl=10,fl=3,vl=16,v4=1,fm=23,pk=0,pf=20,z0=0,z1=0,pr=(6,9,12,14),sp=2); Dl.update(D1 if isinstance(D1,dict) else {})
    SM='v_smfmac_f32_16x16x64_bf16'
    M32='v_mfma_f32_16x16x32_bf16'; M16='v_mfma_f32_16x16x16_bf16'
    accq=[T(0),T(4)]; acck=[T(8),T(12)]; ring=[T(16),T(20),T(24)]; stg=[T(28),T(36),VX]
    def ldsop(op,buf):
        A(f'ds_read_b128 {q4(buf)}, v{vWl} offset:{m[op][1]*2048}')
        A(f'ds_read_b128 {q4(buf+4)}, v{vWl} offset:{m[op][1]*2048+1024}')
    def zero(b): A(f'ds_read_b128 {q4(b)}, v{vCon}')
    Q=[]
    def qop(op,buf):
        Q.append(f'ds_read_b128 {q4(buf)}, v{vWl} offset:{m[op][1]*2048}')
        Q.append(f'ds_read_b128 {q4(buf+4)}, v{vWl} offset:{m[op][1]*2048+1024}')
    def pop(k=1):
        for _ in range(k):
            if Q: A(Q.pop(0))
    top=f'CSTEP_{tag}'; p2=f'CP2_{tag}'; barA=f'CBA_{tag}'
    late=T(44); vMl=vMl_; lateL=A.label('LATE')
    A(f'{top}_prep:')
    for i in range(16): A(f'v_mov_b32 v{T(i)}, 0')
    for j in range(2): ldsop(lds_qk[j],stg[j])
    pw=A.label('PW')
    A(f's_cmp_eq_u32 s{sW}, 3\ns_cbranch_scc1 {pw}')
    A(f's_mul_i32 s{sT1}, s{sW}, 3072\nv_add_u32 v{T(45)}, s{sT1}, v{vL16}')
    for j in range(3): A(f'ds_write_b128 v{T(45)}, {q4(T(16)+4*j)} offset:{L_M+1024*j}')
    A(f'{pw}:')
    A('s_waitcnt lgkmcnt(0)\ns_barrier')
    A(f'ds_read_b128 {q4(late)}, v{vMl} offset:{L_M+1024}')
    A('.p2align 6')
    A(f'{barA}:')
    A('s_waitcnt lgkmcnt(0)\ns_barrier')
    stamp(0)
    if 'hist' in X:
        A(f's_memtime s[{sSt+2}:{sSt+3}]\ns_waitcnt lgkmcnt(0)\ns_sub_u32 s{sSt+3}, s{sSt+2}, s{sSt}\ns_mov_b32 s{sSt}, s{sSt+2}')
        for i,th in enumerate((4000,4100,4200,4300,4450,4700)):
            A(f's_cmp_lt_u32 s{sSt+3}, {th}\ns_addc_u32 s{sSt+4+i}, s{sSt+4+i}, 0')
    for x in X:
        if isinstance(x,tuple) and x[0]=='at':
            sk=A.label('AT'); A(f's_cmp_lg_u32 s{sStep}, {x[1]}\ns_cbranch_scc1 {sk}\ns_memrealtime s[90:91]\ns_waitcnt lgkmcnt(0)\ns_mov_b32 s99, s90\ns_mov_b32 s90, 0\ns_mov_b32 s91, 0\n{sk}:')
    def mtxt(pos): return f'ds_read_b128 {q4(ring[pos%3])}, v{vL16} offset:{L_M+1024*(TORD[pos%9])}'
    def mread(pos): A(mtxt(pos))
    mread(0); mread(1); Q.append(mtxt(2))
    accv=[T(44),T(28)]
    li=0
    cold=[]
    NL=Dl['nl']
    for n,op in enumerate(qk_order):
        pos=n//4; acc=(accq if op[0]=='q' else acck)[op[2]]
        if m[op][0]=='l':
            b=stg[QKBUF[li]]; B=f'v[{b}:{b+7}]'
        else: B=R(m[op])
        A(f'{SM} {q4(acc)}, {q4(ring[pos%3])}, {B}, v{vIdx}')
        if m[op][0]=='l':
            nx=[j for j in range(li+1,len(lds_qk)) if QKBUF[j]==QKBUF[li]]
            if nx: qop(lds_qk[nx[0]],b)
            li+=1
        if n==NL:
            ck=late; ok=A.label('LOK')
            A(f'ds_write_b128 v{vMl}, {q4(late)} offset:{L_M+1024}'); wpos=len(A.items)
        if n==NL+1: A(f'v_max3_u32 v{ck}, v{late}, v{late+1}, v{late+2}')
        if n==NL+2: A(f'v_max_u32 v{ck}, v{ck}, v{late+3}')
        if n==NL+3:
            A(f'v_cmp_eq_u32 vcc, -1, v{ck}\ns_cbranch_vccnz {lateL}\n{ok}:')
            def c(ok=ok,ck=ck):
                A(f'{lateL}:')
                A(f'buffer_load_dwordx4 {q4(late)}, v{vL16}, s[4:7], s{sT3} offen sc1')
                A(f's_add_u32 s{sPoll}, s{sPoll}, 1\ns_add_u32 s{sSt+12}, s{sSt+12}, 1\ns_cmp_gt_u32 s{sPoll}, {POLLMAX}\ns_cbranch_scc1 {fail}')
                A(f'ds_write_b128 v{vMl}, {q4(late)} offset:{L_M+1024}')
                A(f's_nop 1\nv_max3_u32 v{ck}, v{late}, v{late+1}, v{late+2}\nv_max_u32 v{ck}, v{ck}, v{late+3}')
                A(f'v_cmp_eq_u32 vcc, -1, v{ck}\ns_cbranch_vccnz {lateL}\ns_waitcnt lgkmcnt(0)\ns_branch {ok}')
            cold.append(c)
        if n%4==3:
            if pos<2: Q.insert(0,mtxt(pos+3))
            elif pos==3:
                A('LGKM_A2\ns_barrier'.replace('LGKM_A2',f's_waitcnt lgkmcnt({sum(1 for it in A.items[wpos:] if isinstance(it,Ins) and it.kind=="ds")})'))
                Q.insert(0,mtxt(5)); Q.insert(1,mtxt(6))
            elif pos>3: Q.insert(0,mtxt(pos+3))
        if n!=NL: pop()
        if n==Dl['vl'] and 'nov' not in X: A(f'buffer_load_dwordx4 {q4(VX)}, v{vKx}, s[4:7], s{sKVc} offen sc1')
        if n==Dl['vl']+1 and 'nov' not in X: A(f'buffer_load_dwordx4 {q4(VX+4)}, v{vKx}, s[4:7], s{sKVc} offen offset:256 sc1')
        if n==Dl['fm']-1: A(f'v_mov_b32 v{T(45)}, s{sStep}')
        if n==Dl['fm']: A(f'buffer_store_dword v{T(45)}, v{vCon}, s[4:7], s{sFlagMw} offen sc1')
        if n==24:
            kf_=A.label('KVF'); kb_=A.label('KVB')
            A(f's_add_u32 s{sT1}, s{sStep}, 8\ns_lshr_b32 s{sT1}, s{sT1}, 2\ns_min_u32 s{sT1}, s{sT1}, 16\ns_cmp_lt_u32 s{sKVok}, s{sT1}\ns_cbranch_scc1 {kf_}\n{kb_}:')
            def c(kf_=kf_,kb_=kb_):
                A(f'{kf_}:\nbuffer_load_dword v{vCon}, s[4:7], s{sFlagKVd} offen offset:256 sc1 lds\nbuffer_load_dword v{vCon}, s[4:7], s{sFlagKVd} offen offset:512 sc1 lds\ns_branch {kb_}')
            cold.append(c)
        if n==18: A(f'v_mov_b32 v{T(44)}, -1')
        if n==16: A(f'v_lshlrev_b32 v{T(46)}, 3, v{vL16}')
        if n==17 and Dl['pk']: A(f'v_lshrrev_b32 v{T(47)}, 8, v{vL16}')
        if n==19 and Dl['pk']: A(f'v_mad_u32_u24 v{T(46)}, v{T(47)}, s{sPfK}, v{T(46)}')
        if n==Dl['pf'] and 'nopf' not in X: A(f's_mov_b64 exec, {"0xffffffff" if Dl["pk"] else "0xffff"}\nbuffer_load_dword v{T(46)}, s[4:7], s{sPf} offen sc1 lds\ns_mov_b64 exec, -1')
        if n==19: A(f's_add_u32 s{sT1}, s{sH2p}, s{sH2pz}\nbuffer_store_dword v{T(44)}, v{vH2st}, s[4:7], s{sT1} offen {st}')
        if 25<=n<29: A(f'v_mov_b32 v{accv[0]+n-25}, 0')
        if 30<=n<34: A(f'v_mov_b32 v{accv[1]+n-30}, 0')
    stamp(1)
    def vstep(p):
        for c in range(2):
            A(f'{SM} {q4(accv[c])}, {q4(ring[p%3])}, {R(m[("v",TORD[p],c)])}, v{vIdx}')
            if c==1 and p+3<9: Q.insert(0,mtxt(p+3))
            pop()
    def cv(d,a): A(f'v_cvt_pk_bf16_f32 v{d}, v{a}, v{a+1}')
    vstep(0)
    for a in accq: cv(a,a); cv(a+1,a+2)
    tq=[T(32),T(36)]; tk=[T(0),T(4)]
    A(f'{M16} {q4(tq[0])}, v[{accq[0]}:{accq[0]+1}], v[{vS16}:{vS16+1}], 0')
    cv(acck[0],acck[0]); cv(acck[0]+1,acck[0]+2)
    A(f'{M16} {q4(tq[1])}, v[{accq[1]}:{accq[1]+1}], v[{vS16}:{vS16+1}], 0')
    cv(acck[1],acck[1]); cv(acck[1]+1,acck[1]+2)
    A(f'{M16} {q4(tk[0])}, v[{acck[0]}:{acck[0]+1}], v[{vS16}:{vS16+1}], 0')
    A(f'{M16} {q4(tk[1])}, v[{acck[1]}:{acck[1]+1}], v[{vS16}:{vS16+1}], 0')
    qf,kf=T(32),T(8)
    A(f'v_add_u32 v{T(40)}, s{sW256}, v{vOr}')
    cv(qf,tq[0]); cv(qf+1,tq[0]+2); cv(qf+2,tq[1]); cv(qf+3,tq[1]+2)
    X0,X1,Mm=T(4),T(12),T(0)
    cv(kf,tk[0]); cv(kf+1,tk[0]+2)
    A(f'{M32} {q4(X1)}, {q4(KX+4)}, {q4(qf)}, 0')
    cv(kf+2,tk[1]); cv(kf+3,tk[1]+2)
    A(f'{M32} {q4(X0)}, {q4(KX)}, {q4(qf)}, 0')
    A(f'{M32} {q4(Mm)}, {q4(kf)}, {q4(qf)}, 0')
    vstep(1)
    if 'nok' not in X: A(f'buffer_load_dwordx4 {q4(KX)}, v{vKx}, s[4:7], s{sKn} offen sc1')
    if 'nokm' not in X: A(f'buffer_store_dwordx4 {q4(kf)}, v{vOw}, s[4:7], s{sKMo} offen sc1')
    for r in range(4): A(f'v_cndmask_b32 v{X0+r}, v{X0+r}, v{X1+r}, s[{sHi}:{sHi+1}]')
    A(f'ds_write_b128 v{vYw}, {q4(X0)} offset:{L_QK}')
    if 'nok' not in X: A(f'buffer_load_dwordx4 {q4(KX+4)}, v{vKx}, s[4:7], s{sKn} offen offset:256 sc1')
    A(f'ds_write_b128 v{T(40)}, {q4(Mm)} offset:{L_MX}')
    wp=len(A.items)
    vstep(2); vstep(3)
    if Dl['v4']: vstep(4)
    A(f's_waitcnt lgkmcnt({sum(1 for it in A.items[wp:] if isinstance(it,Ins) and it.kind=="ds")})\ns_barrier')
    stamp(2)
    Y=[T(0),T(4),T(8),T(12)]; Mp=[T(32),T(36),T(40),T(16)]
    A(f'ds_read_b128 {q4(Y[0])}, v{vL16} offset:{L_QK}')
    for j in range(1,4): Q.append(f'ds_read_b128 {q4(Y[j])}, v{vL16} offset:{L_QK+1024*j}')
    for j in range(3): Q.append(f'ds_read_b128 {q4(Mp[j])}, v{vOr} offset:{L_MX+256*j}')
    if not Dl['v4']: vstep(4)
    vstep(5); vstep(6)
    Q.append(f'ds_read_b128 {q4(Mp[3])}, v{vOr} offset:{L_MX+256*3}')
    vstep(7); vstep(8)
    pop(len(Q))
    def padd(a,b):
        A(f'v_pk_add_f32 v[{a}:{a+1}], v[{a}:{a+1}], v[{b}:{b+1}]\nv_pk_add_f32 v[{a+2}:{a+3}], v[{a+2}:{a+3}], v[{b+2}:{b+3}]')
    def pmul(a):
        for o in (0,2): A(f'v_pk_mul_f32 v[{a+o}:{a+o+1}], v[{a+o}:{a+o+1}], s[{sSc2}:{sSc2+1}]')
    Ys,Ms=Y[0],Mp[0]
    vm=T(20); P=T(12); ones,half=T(4),T(8)
    accO=[T(16),T(20),T(24),T(28)]; accS=T(44)
    O0,O1,Lr=T(0),T(40),T(44)
    def softpv(fast):
        for r in range(4): A(f'v_exp_f32 v{Ys+r}, v{Ys+r}')
        if fast:
            padd(Mp[0],Mp[1]); padd(Mp[2],Mp[3])
        A(f'v_cvt_pk_bf16_f32 v{P}, v{Ys}, v{Ys+1}\nv_cvt_pk_bf16_f32 v{P+2}, v{Ys}, v{Ys+1}')
        A(f'v_cvt_pk_bf16_f32 v{P+1}, v{Ys+2}, v{Ys+3}\nv_cvt_pk_bf16_f32 v{P+3}, v{Ys+2}, v{Ys+3}')
        if fast:
            padd(Mp[0],Mp[2])
        A(f'v_mov_b32_dpp v{P}, v{P+2} row_ror:8 row_mask:0xf bank_mask:0xc')
        A(f'v_mov_b32_dpp v{P+1}, v{P+3} row_ror:8 row_mask:0xf bank_mask:0xc')
        A(f'v_mov_b32_dpp v{P+2}, v{P+2} row_ror:8 row_mask:0xf bank_mask:0x3')
        A(f'v_mov_b32_dpp v{P+3}, v{P+3} row_ror:8 row_mask:0xf bank_mask:0x3')
        if fast:
            pmul(Ms)
        A(f'{M32} {q4(Lr)}, {q4(ones)}, {q4(P)}, 0')
        A(f'v_exp_f32 v{Ms}, v{Ms}')
        A(f'{M32} {q4(O0)}, {q4(VX)}, {q4(P)}, 0')
        A(f'v_exp_f32 v{Ms+1}, v{Ms+1}')
        A(f'{M32} {q4(O1)}, {q4(VX+4)}, {q4(P)}, 0')
        A(f'v_exp_f32 v{Ms+2}, v{Ms+2}\nv_exp_f32 v{Ms+3}, v{Ms+3}')
        A(f'v_cvt_pk_bf16_f32 v{Ms}, v{Ms}, v{Ms+1}')
        A(f'v_cvt_pk_bf16_f32 v{Ms+1}, v{Ms+2}, v{Ms+3}')
        z=lambda b,lo,hi: [A(f'v_mov_b32 v{b+i}, 0') for i in range(lo,hi)]
        z(accO[0],0,2)
        A(f'{M16} {q4(Lr)}, v[{half}:{half+1}], v[{Ms}:{Ms+1}], {q4(Lr)}')
        z(accO[0],2,4)
        A(f'{M16} {q4(O0)}, v[{vm}:{vm+1}], v[{Ms}:{Ms+1}], {q4(O0)}')
        zero(accO[2])
        A(f'{M16} {q4(O1)}, v[{vm+2}:{vm+3}], v[{Ms}:{Ms+1}], {q4(O1)}')
        zero(accO[3])
    padd(Y[0],Y[1]); padd(Y[2],Y[3]); padd(Y[0],Y[2])
    A(f'ds_read_b128 {q4(ones)}, v{vCon} offset:16\nds_read_b64 v[{half}:{half+1}], v{vCon} offset:32')
    pmul(Ys)
    for c in range(2): cv(vm+2*c,accv[c]); cv(vm+2*c+1,accv[c]+2)
    if 'nokm' not in X: A(f'buffer_store_dwordx4 {q4(vm)}, v{vL16}, s[4:7], s{sVMo} offen sc1')
    A(f's_cmp_eq_u32 s{sStep}, 63\ns_cbranch_scc1 {done}')
    stamp(3)
    softpv(True)
    ostg=[VX,T(36)]
    ra=[T(33),T(34),T(35)]
    rl=T(32); m1,m2=T(10),T(11)
    sm_slow=A.label('SMX'); sm_ok=A.label('SMK')
    A(f'v_xor_b32 v{ra[1]}, 1024, v{vOw}\nv_xor_b32 v{ra[2]}, 1536, v{vOw}')
    A(f'v_mov_b32 v{m2}, s{sHi20}\nv_med3_f32 v{m1}, v{Lr}, s{sLo20}, v{m2}\nv_rcp_f32 v{rl}, v{Lr}')
    A(f'v_cmp_neq_f32 vcc, v{m1}, v{Lr}')
    if 'forceslow' in X: A(f's_branch {sm_slow}')
    else: A(f's_cbranch_vccnz {sm_slow}')
    A(f'{sm_ok}:')
    def c():
        A(f'{sm_slow}:')
        tm=[T(16),T(36),T(24),T(28)]
        for j in range(4): A(f'ds_read_b128 {q4(tm[j])}, v{vL16} offset:{L_QK+1024*j}')
        padd(tm[0],tm[1]); padd(tm[2],tm[3]); padd(tm[0],tm[2])
        for r in range(4): A(f'v_mov_b32 v{Ys+r}, v{T(16)+r}')
        for j in range(4): A(f'ds_read_b128 {q4(tm[j])}, v{vOr} offset:{L_MX+256*j}')
        padd(tm[0],tm[1]); padd(tm[2],tm[3]); padd(tm[0],tm[2])
        for r in range(4): A(f'v_mov_b32 v{Ms+r}, v{T(16)+r}')
        pmul(Ys); pmul(Ms)
        A(f"""
v_max3_f32 v{m1}, v{Ys}, v{Ys+1}, v{Ys+2}
v_max3_f32 v{m2}, v{Ms}, v{Ms+1}, v{Ys+3}
v_max3_f32 v{m1}, v{m1}, v{Ms+2}, v{Ms+3}
v_max_f32 v{m1}, v{m1}, v{m2}
v_max_f32_dpp v{m1}, v{m1}, v{m1} row_ror:8 row_mask:0xf bank_mask:0xf
v_mov_b32 v{m2}, v{m1}
v_permlane32_swap_b32 v{m1}, v{m2}
v_max_f32 v{m1}, v{m1}, v{m2}
v_mov_b32 v{m2}, v{m1}
v_permlane16_swap_b32 v{m1}, v{m2}
v_max_f32 v{m1}, v{m1}, v{m2}
""")
        for r in range(4): A(f'v_sub_f32 v{Ys+r}, v{Ys+r}, v{m1}\nv_sub_f32 v{Ms+r}, v{Ms+r}, v{m1}')
        softpv(False)
        A(f'v_xor_b32 v{ra[1]}, 1024, v{vOw}\nv_xor_b32 v{ra[2]}, 1536, v{vOw}\nv_rcp_f32 v{rl}, v{Lr}\ns_branch {sm_ok}')
    cold.append(c)
    vmpos=len(A.items)
    zero(accO[1])
    Q.clear(); qop(lds_o[0],ostg[0]); qop(lds_o[1],ostg[1])
    A(f'v_xor_b32 v{ra[0]}, 512, v{vOw}')
    own=T(12)
    for i,b in enumerate((O0,O0+2,O1,O1+2)):
        A(f'v_pk_mul_f32 v[{b}:{b+1}], v[{b}:{b+1}], v[{rl}:{rl+1}] op_sel_hi:[1,0]')
    for i,b in enumerate((O0,O0+2,O1,O1+2)):
        A(f'v_cvt_pk_bf16_f32 v{own+i}, v{b}, v{b+1}')
    A(f'ds_write_b128 v{vOw}, {q4(own)} offset:{L_O}')
    wp=len(A.items); pop()
    vP,vPa,vFa,vFd=T(32),T(33),T(34),T(35)
    def flag(): A(f'buffer_store_dword v{vFd}, v{vFa}, s[4:7], s{sFlg} offen {st}')
    def probe(): A(f'buffer_load_dword v{vP}, v{vPa}, s[4:7], s{sPrb} offen sc1 ;nw')
    stamp(4)
    fr=[own,T(0),T(4),T(8)]
    def osm(k,P):
        op=('o',k,P)
        if m[op][0]=='l':
            i=lds_o.index(op); b=ostg[i%2]; B=f'v[{b}:{b+7}]'
        else: B=R(m[op])
        A(f'{SM} {q4(accO[P])}, {q4(fr[k])}, {B}, v{vIdx}')
        if m[op][0]=='l' and i+2<len(lds_o): qop(lds_o[i+2],ostg[i%2])
        pop()
    def osg(k):
        loc=m[('s',k//2)]
        A(f'{M32} {q4(accS)}, {q4(fr[k])}, {R(loc,4*(k%2),4)}, {"0" if k==0 else q4(accS)}')
        pop()
    osg(0); osm(0,0); osm(0,1)
    A(f's_waitcnt lgkmcnt({sum(1 for it in A.items[wp:] if isinstance(it,Ins) and it.kind=="ds")})\ns_barrier')
    for k in range(1,4): A(f'ds_read_b128 {q4(fr[k])}, v{ra[k-1]} offset:{L_O}')
    osm(0,2); osm(0,3)
    stamp(5)
    def tagit(r): A(f'v_and_or_b32 v{r}, v{r}, -2, s{sTag}')
    def pack(x,y,so):
        A(f'v_cvt_pk_bf16_f32 v{x}, v{x}, v{x+1}\nv_cvt_pk_bf16_f32 v{x+1}, v{x+2}, v{x+3}')
        A(f'v_cvt_pk_bf16_f32 v{x+3}, v{y+2}, v{y+3}\nv_cvt_pk_bf16_f32 v{x+2}, v{y}, v{y+1}')
        tagit(x+2); tagit(x)
        A(f'v_permlane16_swap_b32 v{x+1}, v{x+3}\nv_permlane16_swap_b32 v{x}, v{x+2}')
        A(f'buffer_store_dwordx4 {q4(x)}, v{vH1st}, s[4:7], {so} offen {st}')
    A(f's_add_u32 s{sStep1}, s{sStep}, 1\nv_bfe_u32 v{vFa}, v{vL16}, 0, 6\nv_mov_b32 v{vFd}, s{sStep1}\nv_lshlrev_b32 v{vFa}, 4, v{vFa}')
    if Dl['fl']<0: flag()
    A(f'v_bfe_u32 v{vPa}, v{vL16}, 2, 7\nv_mov_b32 v{vP}, 0')
    cnt=[0]
    def tick():
        if cnt[0]==Dl['fl']: flag()
        if cnt[0] in Dl['pr']: probe()
        cnt[0]+=1
    for k in range(1,4): osg(k); tick()
    for k in range(1,4): osm(k,0); tick()
    for k in range(1,4): osm(k,1); tick()
    A(f'v_cvt_pk_bf16_f32 v{accS}, v{accS}, v{accS+1}\nv_cvt_pk_bf16_f32 v{accS+1}, v{accS+2}, v{accS+3}')
    tagit(accS)
    A(f's_mov_b64 exec, 0xffffffff\nbuffer_store_dwordx2 v[{accS}:{accS+1}], v{vH1s1}, s[4:7], 0 offen {st}\ns_mov_b64 exec, -1')
    pack(accO[0],accO[1],'0')
    sel=T(44); D=T(16)
    for j in range(4): A(f'v_cndmask_b32 v{sel+j}, 0, v{vSel}, s[{sMask+2*j}:{sMask+2*j+1}]')
    for k in range(1,4): osm(k,2); tick()
    for k in range(1,4): osm(k,3); tick()
    pack(accO[2],accO[3],f's{s32k}')
    stamp(6)
    nyoung=sum(1 for it in A.items[vmpos:] if isinstance(it,Ins) and it.vm)
    f1=sum((((a^c)|(b^c))<<(a*4+b*2+c)) for a in (0,1) for b in (0,1) for c in (0,1))
    f2=sum(((a|(b^c))<<(a*4+b*2+c)) for a in (0,1) for b in (0,1) for c in (0,1))
    def zacc(lo=0,hi=16):
        for i in range(lo,hi): A(f'v_mov_b32 v{T(i)}, 0 ;nw')
    def h1loads(hd):
        for j in range(4): A(f'buffer_load_dwordx4 {q4(hd+4*j)}, v{vL16}, s[4:7], s{sH1ld} offen offset:{1024*j} sc1')
    def rbody(hd):
        ck=T(20)
        for j in range(4):
            A(f'{M32} {q4(D)}, {q4(hd+4*j)}, {q4(sel)}, {q4(D) if j else "0"}')
            if j==0: A(f'v_bitop3_b32 v{ck}, v{hd}, v{hd+2}, s{sTag} bitop3:{f1:#x}')
            else:
                A(f'v_bitop3_b32 v{ck}, v{ck}, v{hd+4*j}, s{sTag} bitop3:{f2:#x}')
                A(f'v_bitop3_b32 v{ck}, v{ck}, v{hd+4*j+2}, s{sTag} bitop3:{f2:#x}')
        A(f'v_and_b32 v{ck}, 1, v{ck}\nv_cmp_ne_u32 vcc, 0, v{ck}')
    def reduce(between=None):
        p1=A.label('P1'); ok=A.label('P1K')
        hd=T(28)
        stamp(10)
        h1loads(hd)
        if between: between()
        rbody(hd); A(f's_cbranch_vccnz {p1}')
        A(f'{ok}:')
        A(f'v_permlane32_swap_b32 v{D}, v{D+2}\nv_permlane32_swap_b32 v{D+1}, v{D+3}')
        A(f'v_pk_add_f32 v[{D}:{D+1}], v[{D}:{D+1}], v[{D+2}:{D+3}]\nv_cvt_pk_bf16_f32 v{D}, v{D}, v{D+1}')
        A(f'buffer_store_dword v{D}, v{vH2st}, s[4:7], s{sH2c} offen {st}')
        stamp(11)
        def c():
            A(f'{p1}:')
            h1loads(hd)
            A(f's_add_u32 s{sPoll}, s{sPoll}, 1\ns_add_u32 s{sSt+13}, s{sSt+13}, 1\ns_cmp_gt_u32 s{sPoll}, {POLLMAX}\ns_cbranch_scc1 {fail}')
            rbody(hd); A(f's_cbranch_vccz {ok}\ns_branch {p1}')
        cold.append(c)
    def book():
        for j in range(2): ldsop(lds_qk[j],stg[j])
        A(f"""
s_add_u32 s{sH2ld}, s{sH2c}, s{sW3k}
s_add_u32 s{sT3}, s{sH2c}, s{sLate}
s_xor_b32 s{sTag}, s{sTag}, 1
s_mov_b32 s{sT1}, s{sH2p}
s_mov_b32 s{sH2p}, s{sH2n}
s_mov_b32 s{sH2n}, s{sH2c}
s_mov_b32 s{sH2c}, s{sT1}
s_add_u32 s{sKVc}, s{sKn}, 8192
s_add_u32 s{sKn}, s{sKn}, {0 if 'samekv' in X else 32*16384}
s_add_u32 s{sPf}, s{sPf}, {32*16384}
s_add_u32 s{sKMo}, s{sKMo}, {32*2048}
s_add_u32 s{sVMo}, s{sVMo}, {32*4096}
s_add_u32 s{sStep}, s{sStep}, 1
s_mov_b32 s{sPoll}, 0
""")
    def l_load(): A(f'buffer_load_dwordx4 {q4(late)}, v{vL16}, s[4:7], s{sT3} offen sc1')
    def gather(ne,g,dl):
        p2=A.label('P2'); sec=A.label('P2S')
        regs=[VX,VX+4][:ne]; ck=T(16)
        def e_loads():
            for j in range(ne): A(f'buffer_load_dwordx4 {q4(regs[j])}, v{vL16}, s[4:7], s{sH2ld} offen offset:{2048*j} sc1')
        def body(tgt,nw):
            x=' ;nw' if nw is not None else ''
            for j,r in enumerate(regs):
                if nw is not None: A(f's_waitcnt vmcnt({nw+ne-1-j})')
                if j==0: A(f'v_max3_u32 v{ck}, v{r}, v{r+1}, v{r+2}{x}\nv_max_u32 v{ck}, v{ck}, v{r+3}{x}')
                else: A(f'v_max3_u32 v{ck}, v{ck}, v{r}, v{r+1}{x}\nv_max3_u32 v{ck}, v{ck}, v{r+2}, v{r+3}{x}')
                if j<ne-1: A(f'ds_write_b128 v{vMw}, {q4(r)} offset:{L_M+2048*j}{x}')
            A(f'v_cmp_eq_u32 vcc, -1, v{ck}\ns_cbranch_vccnz {tgt}')
            A(f'ds_write_b128 v{vMw}, {q4(regs[ne-1])} offset:{L_M+2048*(ne-1)}{x}')
            stamp(8)
            A(f's_branch {barA}')
        e_loads(); delay(g); e_loads(); delay(dl); l_load(); body(sec,ne+1)
        def c():
            A(f'{sec}:\ns_add_u32 s{sSt+9}, s{sSt+9}, 1'); body(p2,1)
            A(f'{p2}:')
            e_loads(); l_load()
            A(f's_add_u32 s{sPoll}, s{sPoll}, 1\ns_add_u32 s{sSt+14}, s{sSt+14}, 1\ns_cmp_gt_u32 s{sPoll}, {POLLMAX}\ns_cbranch_scc1 {fail}')
            body(p2,None)
        cold.append(c)
    W1,W2,W3,W2n=[A.label(x) for x in ('W1','W2','W3','W2X')]
    def setml(): A(f's_mov_b32 s{sPoll}, 0')
    A(f's_cmp_lg_u32 s{sW}, 0\ns_cbranch_scc1 {W3}')
    A('s_barrier'); delay(Dl['a1']); reduce(lambda: (zacc(),setml())); book(); delay(Dl['a2']); gather(2,Dl['g'],Dl['al'])
    A(f'{W3}:\ns_cmp_lg_u32 s{sW}, 3\ns_cbranch_scc1 {W2}')
    sp=A.label('SPIN'); go=A.label('GO')
    A(f'v_cmp_gt_u32 vcc, s{sStep1}, v{vP} ;nw\ns_cbranch_vccnz {sp}')
    delay(Dl['z0'])
    A(f'{go}:\ns_barrier'); stamp(9)
    def c():
        A(f'{sp}:\ns_mov_b32 s{sPoll}, 0\n{sp}_l:')
        for i in range(4):
            probe(); A(f's_add_u32 s{sSt+11}, s{sSt+11}, 1'); delay(Dl['sp'])
            A(f'v_cmp_gt_u32 vcc, s{sStep1}, v{vP} ;nw\ns_cbranch_vccz {sp}_d')
        A(f's_add_u32 s{sPoll}, s{sPoll}, 1\ns_cmp_lt_u32 s{sPoll}, 32\ns_cbranch_scc1 {sp}_l\n{sp}_d:')
        delay(Dl['z1'])
        A(f's_branch {go}')
    cold.append(c)
    zacc(); setml()
    A(f's_add_u32 s{sT1}, s{sStep}, 3\ns_lshr_b32 s{sT1}, s{sT1}, 2\ns_add_u32 s{sT1}, s{sT1}, 1\ns_min_u32 s{sT1}, s{sT1}, 16')
    A(f'v_mov_b32 v{T(20)}, {L_W+4*WREG}\nds_read2_b32 v[{T(20)}:{T(21)}], v{T(20)} offset0:64 offset1:128')
    A(f'v_min_u32 v{T(20)}, v{T(20)}, v{T(21)}\nv_readfirstlane_b32 s{sT2}, v{T(20)}\ns_max_u32 s{sKVok}, s{sKVok}, s{sT2}')
    emit_wait_kv(A,sT1,fail,T(26))
    delay(Dl['d1']); book(); gather(1,Dl['g'],Dl['al'])
    A(f'{W2}:\ns_cmp_lg_u32 s{sW}, 2\ns_cbranch_scc1 {W1}')
    ad=T(21); hq=T(28); cq=T(20); p1=A.label('Q1'); okq=A.label('Q1K')
    A(f'v_lshrrev_b32 v{ad}, 5, v{vL16}\nv_lshlrev_b32 v{ad}, 7, v{ad}\nv_and_or_b32 v{ad}, v{vL16}, 16, v{ad}')
    def q1body():
        A(f'{M32} {q4(D)}, {q4(hq)}, {q4(sel)}, 0')
        A(f'v_bitop3_b32 v{cq}, v{hq}, v{hq+2}, s{sTag} bitop3:{f1:#x}\nv_and_b32 v{cq}, 1, v{cq}\nv_cmp_ne_u32 vcc, 0, v{cq}')
    q1ld=f'buffer_load_dwordx4 {q4(hq)}, v{ad}, s[4:7], s{sH1ld} offen sc1'
    A('s_barrier'); delay(Dl['c1']); A(q1ld); zacc(); setml(); q1body()
    A(f's_cbranch_vccnz {p1}\n{okq}:')
    A(f"""
v_pk_add_f32 v[{D}:{D+1}], v[{D}:{D+1}], v[{D+2}:{D+3}]
v_permlane32_swap_b32 v{D}, v{D+1}
v_add_f32 v{D}, v{D}, v{D+1}
v_mov_b32 v{D+1}, v{D}
v_permlane16_swap_b32 v{D}, v{D+1}
v_add_f32 v{D}, v{D}, v{D+1}
v_mov_b32 v{D+1}, v{D}
v_permlane32_swap_b32 v{D}, v{D+1}
v_cvt_pk_bf16_f32 v{D}, v{D}, v{D+1}
buffer_store_dword v{D}, v{vH2st}, s[4:7], s{sH2c} offen {st}
""")
    stamp(11)
    def c():
        A(f'{p1}:\n{q1ld}')
        A(f's_add_u32 s{sPoll}, s{sPoll}, 1\ns_add_u32 s{sSt+13}, s{sSt+13}, 1\ns_cmp_gt_u32 s{sPoll}, {POLLMAX}\ns_cbranch_scc1 {fail}')
        q1body(); A(f's_cbranch_vccz {okq}\ns_branch {p1}')
    cold.append(c)
    book(); delay(Dl['c2']); gather(2,Dl['g'],Dl['al'])
    A(f'{W1}:')
    zacc(); setml(); A('s_barrier'); delay(Dl['b1']); reduce(); book(); delay(Dl['b2']); l_load(); stamp(8); A(f's_branch {barA}')
    for c in cold: c()

def emit_chain(A, fail, end, D1=0, D2=2, stamps=(), modes=('',), X=()):
    m, qk_order, lds_qk, lds_o = operand_map()
    emit_chain_init(A, m, X)
    lp=A.label('CB'); ck=A.label('CBC')
    A(f's_mov_b32 s{sPoll}, 0\ns_branch {ck}\n{lp}:')
    status_loads(A)
    A(f"""
s_add_u32 s{sPoll}, s{sPoll}, 1
s_cmp_gt_u32 s{sPoll}, {POLLMAX}
s_cbranch_scc1 {fail}
{ck}:
v_add3_u32 v65, v65, v66, v67
v_add3_u32 v68, v68, v69, v70
v_add3_u32 v65, v65, v68, v71
v_add_u32 v65, v65, v64
v_min_u32 v{VX+2}, v{VX+2}, v{VX+3}
v_readfirstlane_b32 s{sT1}, v{VX+1}
v_readfirstlane_b32 s{sT2}, v64
v_readfirstlane_b32 s{sT3}, v65
v_readfirstlane_b32 s{sKVok}, v{VX+2}
s_cmp_lt_u32 s{sT1}, 8
s_cbranch_scc1 {lp}
s_cmp_lt_u32 s{sT2}, 32
s_cselect_b32 s{sMode}, 1, 0
s_cselect_b32 s{sT3}, s{sT3}, 256
s_cmp_lt_u32 s{sT3}, 256
s_cbranch_scc1 {lp}
s_cmp_ge_u32 s{sStep1}, 8
s_cselect_b32 s{sKVok}, s{sKVok}, 0
s_mov_b32 s{sT1}, 1
""")
    emit_wait_kv(A,sT1,fail,VX)
    A(f'buffer_load_dwordx4 {q4(KX)}, v{vKx}, s[4:7], s{sKVc} offen sc1')
    A(f'buffer_load_dwordx4 {q4(KX+4)}, v{vKx}, s[4:7], s{sKVc} offen offset:256 sc1')
    A(f's_add_u32 s{sKVc}, s{sKVc}, 8192')
    A(f's_mov_b32 s{sFlagM2}, s{sFlagM}\ns_mov_b32 s{sPfK}, {32*16384-8192-2048}')
    A(f's_sub_u32 s{sFlagKVd}, s{sFlagKV}, {L_C+256}\ns_cmp_eq_u32 s{sW}, 3\ns_cselect_b32 s{sKVok}, s{sKVok}, 16')
    A(f'v_mov_b32 v{VX}, {L_W+4*WREG}\nv_mov_b32 v{VX+1}, 0\nds_write2_b32 v{VX}, v{VX+1}, v{VX+1} offset0:64 offset1:128')
    for i in range(16):
        if not ('itrace' in X and 4<=i<10): A(f's_mov_b32 s{sSt+i}, 0')
    if 'rdy' in X: A('s_memrealtime s[90:91]\ns_waitcnt lgkmcnt(0)\ns_mov_b32 s99, s90\ns_mov_b32 s90, 0\ns_mov_b32 s91, 0')
    if 'initstamp' in X: A(f's_memtime s[{sSt+10}:{sSt+11}]\ns_waitcnt lgkmcnt(0)\ns_sub_u32 s{sSt+10}, s{sSt+10}, s72\ns_mov_b32 s{sSt+11}, 0')
    done=A.label('CDONE')
    trcopy='\n'.join(f's_mov_b32 s{sSt+4+i}, s{sTr+2*i}' for i in range(6))+'\n' if any(isinstance(x,tuple) and x[0]=='tr' for x in X) else ''
    if len(modes)==2:
        A(f's_cmp_lg_u32 s{sMode}, 0\ns_cbranch_scc1 CSTEP_1_prep')
    for i,st in enumerate(modes):
        emit_chain_loop(A, m, qk_order, lds_qk, lds_o, st, i, fail, done, D1, D2, list(stamps), X)
    A(f"""
{done}:
s_waitcnt lgkmcnt(0)
{trcopy}s_waitcnt vmcnt(0)
s_barrier
s_cmp_lg_u32 s{sW}, 3
s_cbranch_scc1 {end}
v_mov_b32 v{T(0)}, 0
v_mov_b32 v{T(1)}, 64
buffer_store_dword v{T(1)}, v{T(0)}, s[4:7], s{sFlagM2} offen sc1
s_branch {end}
""")
```

```python
from asmgen import *
from common import *
import math, struct

POLLMAX=400000
PROF=False
DEFER=True
PROFSEG=63
M32='v_mfma_f32_32x32x16_bf16'
def q4(b,f='v'): return f'{f}[{b}:{b+3}]'
def q16(b,f='v'): return f'{f}[{b}:{b+15}]'
def fbits(x): return struct.unpack('<I',struct.pack('<f',x))[0]

sH,sW = 12,13
sT0,sT1,sT2,sT3=36,37,38,39
sPoll=40

def lane_setup(A):
    A('''
v_and_b32 v1, 63, v0
v_lshlrev_b32 v2, 4, v1
v_and_b32 v3, 31, v1
v_lshrrev_b32 v4, 5, v1
v_bfe_u32 v5, v1, 4, 1
v_bfe_u32 v6, v1, 2, 2
v_and_b32 v7, 3, v1
''')

def wait_init(A, fail, dbg='s[66:67]'):
    lp=A.label('WI')
    A(f'''
s_mov_b32 s{sPoll}, 0
v_mov_b32 v8, 0
{lp}:
global_load_dword v9, v8, {dbg} offset:{D_INIT} sc1
s_add_u32 s{sPoll}, s{sPoll}, 1
s_cmp_gt_u32 s{sPoll}, {POLLMAX}
s_cbranch_scc1 {fail}
v_readfirstlane_b32 s{sT1}, v9
s_cmp_lt_u32 s{sT1}, 8
s_cbranch_scc1 {lp}
''')

def poll_ge(A, fail, soff, need, offs, tmp, cache=None, sleep=4):
    lp=A.label('PG'); ok=A.label('PK')
    if cache is not None: A(f's_cmp_ge_u32 s{cache}, s{need}\ns_cbranch_scc1 {ok}')
    res=cache if cache is not None else sT3
    A(f's_mov_b32 s{sPoll}, 0\nv_mov_b32 v{tmp}, 0\n{lp}:')
    for i,o in enumerate(offs): A(f'buffer_load_dword v{tmp+1+i}, v{tmp}, s[4:7], s{soff} offen offset:{o} sc1')
    A(f's_add_u32 s{sPoll}, s{sPoll}, 1\ns_cmp_gt_u32 s{sPoll}, {POLLMAX}\ns_cbranch_scc1 {fail}')
    for i in range(1,len(offs)): A(f'v_min_u32 v{tmp+1}, v{tmp+1}, v{tmp+1+i}')
    A(f'v_readfirstlane_b32 s{res}, v{tmp+1}\ns_cmp_ge_u32 s{res}, s{need}\ns_cbranch_scc1 {ok}\ns_sleep {sleep}\ns_branch {lp}\n{ok}:')

def emit_proj(A, kind, fail, end, X=()):
    wname={'K':'B_Wk','V':'B_Wv','Q':'B_Wq'}[kind]
    A(f'''
s_load_dwordx2 s[4:5], s[0:1], {KA['ws']}
s_load_dwordx2 s[8:9], s[0:1], {KA[wname]}
s_load_dwordx2 s[16:17], s[0:1], {KA['B_x']}
s_load_dwordx2 s[66:67], s[0:1], {KA['dbg']}
''')
    lane_setup(A)
    vA=10
    vX=14; vX2=250; vR=244; sXs=34
    XB=[16,32]
    WB=48
    ACC=0
    A(f'''
v_lshrrev_b32 v8, 4, v1
v_and_b32 v9, 15, v1
v_lshlrev_b32 v15, 2, v8
v_xor_b32 v9, v9, v15
v_lshlrev_b32 v9, 4, v9
v_lshl_add_u32 v9, v8, 13, v9
s_lshl_b32 s{sT0}, s{sH}, 8
v_add_u32 v9, s{sT0}, v9
v_lshl_add_u32 v8, v4, 5, v6
v_lshlrev_b32 v8, 8, v8
v_lshl_add_u32 v8, v5, 5, v8
v_lshl_add_u32 v8, v7, 3, v8
''')
    for E in range(4): A(f'v_xor_b32 v15, {E}, v6\nv_lshl_add_u32 v{vA+E}, v15, 6, v8')
    A(f'''
v_lshrrev_b32 v15, 3, v1
v_mul_u32_u24 v{vX}, 1152, v15
v_lshrrev_b32 v15, 4, v1
v_and_b32 v{vX2}, 7, v1
v_xor_b32 v15, v15, v{vX2}
v_xor_b32 v{vX2}, 4, v15
v_lshl_add_u32 v{vX2}, v{vX2}, 4, v{vX}
v_lshl_add_u32 v{vX}, v15, 4, v{vX}
s_lshl_b32 s{sXs}, s{sW}, 12
s_add_u32 s{sXs}, s{sXs}, 147456
v_bfe_u32 v15, v3, 1, 3
v_lshlrev_b32 v{vR}, 2, v4
v_xor_b32 v15, v15, v{vR}
v_lshlrev_b32 v{vR+3}, 7, v3
v_add_u32 v{vR+3}, s{sXs}, v{vR+3}
v_lshl_add_u32 v{vR}, v15, 4, v{vR+3}
v_xor_b32 v{vR+1}, 16, v{vR}
v_xor_b32 v{vR+2}, 32, v{vR}
v_xor_b32 v{vR+3}, 48, v{vR}
s_waitcnt lgkmcnt(0)
s_mov_b32 s6, {WS_BYTES}
s_mov_b32 s7, 0x20000
s_mov_b32 s10, {576*8192}
s_mov_b32 s11, 0x20000
s_mov_b32 s18, {2048*1152}
s_mov_b32 s19, 0x20000
s_mul_i32 s{sT0}, s{sW}, {36*1024}
s_mul_i32 s{sT1}, s{sW}, {36*4*8192}
s_mov_b32 s{sT2}, 0
''')
    A(f's_lshl_b32 s{sT3}, s{sH}, 2\ns_add_u32 s{sT3}, s{sT3}, s{sW}\ns_mul_i32 s{sT3}, s{sT3}, 18432\nv_lshlrev_b32 v15, 6, v1')
    for i in range(5): A(f'buffer_load_dword v{100+i}, v15, s[16:19], s{sT3} offen\ns_add_u32 s{sT3}, s{sT3}, 4096')
    lp=A.label('WD')
    A(f'''
{lp}:
s_mov_b32 m0, s{sT0}
s_add_u32 s{sT0}, s{sT0}, 1024
buffer_load_dwordx4 v9, s[8:11], s{sT1} offen lds
s_add_u32 s{sT1}, s{sT1}, {4*8192}
s_add_u32 s{sT2}, s{sT2}, 1
s_cmp_lt_u32 s{sT2}, 36
s_cbranch_scc1 {lp}
''')
    sSeg,sXo,sCc,sRound,sOut,sFl,sKVok,sMok,sFlM,sNeed=20,21,22,23,24,25,26,27,28,29
    SEGX=32*1152
    A(f'''
s_mov_b32 s{sSeg}, s{sW}
s_mul_i32 s{sXo}, s{sW}, {SEGX}
s_mov_b32 s{sRound}, 0
s_mov_b32 s{sKVok}, 0
s_mov_b32 s{sMok}, 0
s_lshl_b32 s{sFl}, s{sH}, 9
s_add_u32 s{sFl}, s{sFl}, {F_KV+(256 if kind=='V' else 0)}
s_lshl_b32 s{sFlM}, s{sH}, 7
s_add_u32 s{sFlM}, s{sFlM}, {F_M}
''')
    def xdma():
        A(f's_mov_b32 m0, s{sXs}')
        for i in range(4):
            A(f's_add_u32 s{sT3}, s{sXo}, {i*(9216-1024)}')
            A(f'buffer_load_dwordx4 v{vX2 if i%2 else vX}, s[16:19], s{sT3} offen offset:{1024*i} lds')
        A(f's_add_u32 s{sXo}, s{sXo}, 128')
    def xread(buf):
        for j in range(4): A(f'ds_read_b128 {q4(buf+4*j)}, v{vR+j}')
    xdma()
    if kind=='Q':
        A(f'v_lshlrev_b32 v15, 2, v4\nv_mov_b32 v8, {fbits(-1e30):#x}')
        for r in range(16):
            A(f'v_add_u32 v9, {8*(r//4)+r%4}, v15\nv_cmp_gt_u32 vcc, v9, v3\nv_cndmask_b32 v{80+r}, 0, v8, vcc')
    wait_init(A, fail)
    A('s_waitcnt vmcnt(0)\ns_barrier')
    xread(XB[0]); A('s_waitcnt lgkmcnt(0)'); xdma()
    if PROF: A('s_memrealtime s[90:91]\ns_waitcnt lgkmcnt(0)\ns_mov_b32 s99, s90')
    seg=A.label('SEG'); cl=A.label('CC')
    A(f'{seg}:')
    for i in range(64): A(f'v_accvgpr_write_b32 a{i}, 0')
    def wread(slot,E,j,base):
        if 'notr' in X: return
        for x in range(2): A(f'ds_read_b64_tr_b16 v[{WB+4*slot+2*x}:{WB+4*slot+2*x+1}], v{vA+E} offset:{base+(8*j+4*x)*256}')
    def chunk(cc):
        buf,nbuf,base,last,first=XB[cc%2],XB[(cc+1)%2],(cc%3)*16384,cc==8,cc==0
        seq=[(j,E) for j in range(4) for E in range(4)]
        if first:
            for n in range(6): wread(n%8,seq[n][1],seq[n][0],base)
        for n,(j,E) in enumerate(seq):
            m=n+6
            if n==11:
                if 'nox' not in X: A('s_waitcnt vmcnt(0)')
                xread(nbuf)
            if m<16: wread(m%8,seq[m][1],seq[m][0],base)
            elif not last: wread(m%8,seq[m-16][1],seq[m-16][0],base+16384)
            w=q4(WB+4*(n%8)); x=q4(buf+4*j)
            a,b=(x,w) if kind=='V' else (w,x)
            A(f'{M32} {q16(16*E,"a")}, {a}, {b}, {q16(16*E,"a")}')
            if n==13:
                A(f's_waitcnt lgkmcnt({0 if last else 6})')
                if cc==7: A(f's_add_u32 s{sXo}, s{sXo}, {4*SEGX-9*128}')
                xdma()
    for cc in range(9):
        chunk(cc)
        if cc in (2,5):
            for E in range(4): A(f'v_add_u32 v{vA+E}, {3*16384}, v{vA+E}')
    for E in range(4): A(f'v_subrev_u32 v{vA+E}, {6*16384}, v{vA+E}')
    PK=96
    for E in range(4):
        for r in range(16): A(f'v_accvgpr_read_b32 v{128+r}, a{16*E+r}')
        for j in range(2):
            for t,a in enumerate((j,j+2)):
                for p in range(2): A(f'v_cvt_pk_bf16_f32 v{PK+8*E+4*j+2*t+p}, v{128+4*a+2*p}, v{128+4*a+2*p+1}')
    A(f's_lshl_b32 s{sOut}, s{sSeg}, 5\ns_add_u32 s{sOut}, s{sOut}, s{sH}')
    if kind in 'KV':
        A(f's_lshl_b32 s{sOut}, s{sOut}, 14\ns_add_u32 s{sOut}, s{sOut}, {WS_KV+(8192 if kind=="V" else 0)}\ns_add_u32 s{sT0}, s{sOut}, 4096')
        for p in range(8 if 'nost' not in X else 0): A(f'buffer_store_dwordx4 {q4(PK+4*p)}, v2, s[4:7], s{sOut if p<4 else sT0} offen offset:{1024*(p%4)} sc1')
        for i in range(16): A(f'v_mov_b32 v{XB[0]+i}, v{XB[1]+i}')
        nf=A.label('NF')
        A(f'''
s_add_u32 s{sRound}, s{sRound}, 1
s_waitcnt vmcnt(0)
s_barrier
s_cmp_lg_u32 s{sW}, 0
s_cbranch_scc1 {nf}
v_mov_b32 v8, 0
v_mov_b32 v9, s{sRound}
buffer_store_dword v9, v8, s[4:7], s{sFl} offen sc1
{nf}:
''')
    else:
        c=math.log2(math.e)/math.sqrt(128.0)
        KB=128
        VB=160; VM=192; S=208; SM=224;
        sKVb,sKMb,sVMb,sOb=30,31,32,33
        A(f'''
s_lshl_b32 s{sKVb}, s{sOut}, 14
s_add_u32 s{sKVb}, s{sKVb}, {WS_KV}
s_lshl_b32 s{sKMb}, s{sOut}, 11
s_add_u32 s{sKMb}, s{sKMb}, {WS_KM}
s_lshl_b32 s{sVMb}, s{sOut}, 12
s_add_u32 s{sVMb}, s{sVMb}, {WS_VM}
s_lshl_b32 s{sOb}, s{sOut}, 13
s_add_u32 s{sOb}, s{sOb}, {WS_O}
s_add_u32 s{sNeed}, s{sRound}, 1
''')
        poll_ge(A,fail,sFl,sNeed,[0,256],240,cache=sKVok)
        for p in range(16):
            if p%4==0 and p: A(f's_add_u32 s{sKVb}, s{sKVb}, 4096')
            A(f'buffer_load_dwordx4 {q4(KB+4*p)}, v2, s[4:7], s{sKVb} offen offset:{1024*(p%4)} sc1')
        for p in range(8): A(f'{M32} {q16(S)}, {q4(KB+4*p)}, {q4(PK+4*p)}, {q16(80) if p==0 else q16(S)}')
        for i in range(16): A(f'v_mov_b32 v{XB[0]+i}, v{XB[1]+i}')
        A(f'''
v_and_b32 v8, 7, v1
v_lshlrev_b32 v8, 4, v8
v_lshl_add_u32 v8, v4, 7, v8
v_and_b32 v9, 15, v1
v_lshlrev_b32 v9, 4, v9
v_lshl_add_u32 v9, v4, 8, v9
v_lshl_add_u32 v9, v5, 3, v9
s_add_u32 s{sNeed}, s{sSeg}, 1
''')
        poll_ge(A,fail,sFlM,sNeed,[0],240,cache=sMok,sleep=2)
        for p in range(8): A(f'buffer_load_dwordx4 {q4(KB+4*p)}, v8, s[4:7], s{sKMb} offen offset:{256*p} sc1')
        for E in range(4):
            for hf in range(2): A(f'buffer_load_dwordx2 v[{VM+4*E+2*hf}:{VM+4*E+2*hf+1}], v9, s[4:7], s{sVMb} offen offset:{1024*E+512*hf} sc1')
        mx,t=240,241
        A(f'v_max3_f32 v{mx}, v{S}, v{S+1}, v{S+2}')
        for r in range(3,15,2): A(f'v_max3_f32 v{mx}, v{mx}, v{S+r}, v{S+r+1}')
        A(f'v_max_f32 v{mx}, v{mx}, v{S+15}')
        for p in range(8): A(f'{M32} {q16(SM)}, {q4(KB+4*p)}, {q4(PK+4*p)}, {"0" if p==0 else q16(SM)}')
        A(f'''
s_mov_b32 s{sT0}, {fbits(c):#x}
v_max3_f32 v{mx}, v{mx}, v{SM}, v{SM+1}
v_max3_f32 v{mx}, v{mx}, v{SM+2}, v{SM+3}
v_mov_b32 v{t}, v{mx}
v_permlane32_swap_b32 v{mx}, v{t}
v_max_f32 v{mx}, v{mx}, v{t}
v_mul_f32 v{mx}, s{sT0}, v{mx}
''')
        regs=[S+r for r in range(16)]+[SM+r for r in range(4)]
        for r in regs: A(f'v_fma_f32 v{r}, v{r}, s{sT0}, -v{mx}')
        for r in regs: A(f'v_exp_f32 v{r}, v{r}')
        P=KB
        for j in range(2):
            for tt,a in enumerate((j,j+2)):
                for p in range(2): A(f'v_cvt_pk_bf16_f32 v{P+4*j+2*tt+p}, v{S+4*a+2*p}, v{S+4*a+2*p+1}')
        for tt in range(2):
            for p in range(2): A(f'v_cvt_pk_bf16_f32 v{P+8+2*tt+p}, v{SM+2*p}, v{SM+2*p+1}')
        for E in range(4):
            A(f'{M32} {q16(16*E,"a")}, {q4(VB+8*E)}, {q4(P)}, 0')
            A(f'{M32} {q16(16*E,"a")}, {q4(VB+8*E+4)}, {q4(P+4)}, {q16(16*E,"a")}')
            A(f'{M32} {q16(16*E,"a")}, {q4(VM+4*E)}, {q4(P+8)}, {q16(16*E,"a")}')
            if E==0:
                for r in regs[1:10]: A(f'v_add_f32 v{S}, v{S}, v{r}')
            if E==1:
                for r in regs[10:]: A(f'v_add_f32 v{S}, v{S}, v{r}')
        A(f'v_mov_b32 v{t}, v{S}\nv_permlane32_swap_b32 v{S}, v{t}\nv_add_f32 v{S}, v{S}, v{t}\nv_rcp_f32 v{mx}, v{S}')
        A(f's_add_u32 s{sT0}, s{sOb}, 4096')
        for E in range(4):
            for r in range(16): A(f'v_accvgpr_read_b32 v{S+r}, a{16*E+r}')
            for r in range(16): A(f'v_mul_f32 v{S+r}, v{mx}, v{S+r}')
            for j in range(2):
                for tt,a in enumerate((j,j+2)):
                    for p in range(2): A(f'v_cvt_pk_bf16_f32 v{PK+8*E+4*j+2*tt+p}, v{S+4*a+2*p}, v{S+4*a+2*p+1}')
                p=2*E+j
                A(f'buffer_store_dwordx4 {q4(PK+4*p)}, v2, s[4:7], s{sOb if p<4 else sT0} offen offset:{1024*(p%4)} sc1')
        A(f'''
s_lshl_b32 s{sT0}, s{sOut}, 2
s_add_u32 s{sT0}, s{sT0}, {F_O}
v_mov_b32 v8, 0
v_mov_b32 v9, 1
s_add_u32 s{sRound}, s{sRound}, 1
s_waitcnt vmcnt(0)
buffer_store_dword v9, v8, s[4:7], s{sT0} offen sc1
''')
    A(f'''
s_add_u32 s{sSeg}, s{sSeg}, 4
s_cmp_lt_u32 s{sSeg}, 64
s_cbranch_scc1 {seg}
''')
    if kind=='K': A(f's_add_u32 s{sH}, s{sH}, 36\ns_branch L_op')
    elif kind=='V': A(f's_add_u32 s{sH}, s{sH}, 68\ns_cmp_lt_u32 s{sH}, 72\ns_cbranch_scc1 L_op\ns_branch {end}')
    else: A(f's_branch {end}')

def emit_outproj(A, fail, end):
    M16='v_mfma_f32_16x16x32_bf16'
    A(f"""
s_load_dwordx2 s[4:5], s[0:1], {KA['ws']}
s_load_dwordx2 s[8:9], s[0:1], {KA['B_Wo']}
s_load_dwordx2 s[16:17], s[0:1], {KA['out']}
s_load_dwordx2 s[66:67], s[0:1], {KA['dbg']}
""")
    lane_setup(A)
    sZ,sNb,sSeg,sSrc,sLb,sPar,sFl=20,21,22,23,24,25,26
    sInc,sJmp,sF1,sF2,sG=27,28,29,30,31
    S0=44
    A(f"""
s_cmp_ge_u32 s{sH}, 36
s_cselect_b32 s{sG}, 1, 0
s_cselect_b32 s{sT0}, 36, 0
s_sub_u32 s{sH}, s{sH}, s{sT0}
s_cmp_ge_u32 s{sH}, 18
s_cselect_b32 s{sZ}, 1, 0
s_mul_i32 s{sT0}, s{sZ}, 18
s_sub_u32 s{sNb}, s{sH}, s{sT0}
v_lshrrev_b32 v8, 2, v1
v_mul_u32_u24 v8, 1152, v8
v_lshl_add_u32 v8, v7, 4, v8
s_lshl_b32 s{sT0}, s{sNb}, 6
v_add_u32 v8, s{sT0}, v8
s_mul_i32 s{sLb}, s{sW}, 32768
v_lshrrev_b32 v15, 4, v1
v_lshl_add_u32 v9, v15, 2, v6
v_lshlrev_b32 v9, 6, v9
v_lshl_add_u32 v9, v7, 3, v9
v_add_u32 v9, s{sLb}, v9
s_waitcnt lgkmcnt(0)
s_mov_b32 s6, {WS_BYTES}
s_mov_b32 s7, 0x20000
s_mov_b32 s10, {4096*1152}
s_mov_b32 s11, 0x20000
s_mov_b32 s18, {2048*2304}
s_mov_b32 s19, 0x20000
s_mul_i32 s{sSrc}, s{sW}, {1024*1152}
""")
    def dma(hd):
        for i in range(8):
            A(f's_add_u32 m0, s{sLb}, {(hd%4)*8192+1024*i}\nbuffer_load_dwordx4 v8, s[8:11], s{sSrc} offen lds\ns_add_u32 s{sSrc}, s{sSrc}, {16*1152}')
    for hd in range(4): dma(hd)
    for hd in range(8):
        A(f's_waitcnt vmcnt({8*min(3,7-hd)})')
        for E in range(4):
            for c in range(2):
                for x in range(2):
                    r=((hd*4+E)*2+c)*4+2*x
                    A(f'ds_read_b64_tr_b16 a[{r}:{r+1}], v9 offset:{(hd%4)*8192+(32*E+16*x)*64+32*c}')
        if hd+4<8:
            A('s_waitcnt lgkmcnt(0)'); dma(hd+4)
    A(f"""
v_and_b32 v14, 15, v1
s_lshl_b32 s{sT0}, s{sZ}, 8
v_lshlrev_b32 v28, 9, v15
v_lshl_add_u32 v28, v14, 4, v28
v_add_u32 v28, s{sT0}, v28
s_lshl_b32 s{sT0}, s{sW}, 11
v_add_u32 v11, s{sT0}, v2
s_lshl_b32 s{sT0}, s{sW}, 9
v_lshlrev_b32 v12, 3, v1
v_add_u32 v12, s{sT0}, v12
v_bfe_u32 v10, v1, 1, 4
v_mul_u32_u24 v10, 2304, v10
v_lshl_add_u32 v10, v4, 3, v10
v_and_b32 v14, 1, v1
v_lshl_add_u32 v10, v14, 2, v10
s_lshl_b32 s{sT0}, s{sNb}, 6
s_lshl_b32 s{sT1}, s{sW}, 4
s_add_u32 s{sT0}, s{sT0}, s{sT1}
s_mul_i32 s{sT1}, s{sZ}, {16*2304}
s_add_u32 s{sT0}, s{sT0}, s{sT1}
s_add_u32 s{sT0}, s{sT0}, 1152
v_add_u32 v10, s{sT0}, v10
v_and_b32 v13, 7, v1
v_lshlrev_b32 v13, 2, v13
s_lshl_b32 s{sT0}, s{sW}, 5
v_add_u32 v13, s{sT0}, v13
s_mul_i32 s{sSeg}, s{sG}, {S0+1}
""")
    wait_init(A, fail)
    A('s_waitcnt lgkmcnt(0)\ns_barrier')
    seg=A.label('OSEG'); lp=A.label('OP'); ok=A.label('OK'); go=A.label('OGO'); plain=A.label('OPL')
    OB=32; ACC=16; RB=160
    def ld(k):
        A(f'buffer_load_dwordx4 {q4(OB+4*k)}, v28, s[4:7], s{sSrc} offen offset:{2048*(k%2)} sc1')
        if k%2 and k<31: A(f's_add_u32 s{sSrc}, s{sSrc}, 4096')
    def epi():
        for c in range(2): A(f'ds_write_b128 v11, {q4(ACC+4*c)} offset:{1024*c}')
        A('s_waitcnt lgkmcnt(0)\ns_barrier')
        for w in range(4): A(f'ds_read_b64 v[{RB+2*w}:{RB+2*w+1}], v12 offset:{2048*w}')
        for w in range(1,4):
            for b in range(2): A(f'v_add_f32 v{RB+b}, v{RB+b}, v{RB+2*w+b}')
        A(f"""
v_cvt_pk_bf16_f32 v{RB}, v{RB}, v{RB+1}
s_mul_i32 s{sT0}, s{sSeg}, {32*2304}
buffer_store_dword v{RB}, v10, s[16:19], s{sT0} offen
v_xor_b32 v11, 8192, v11
v_xor_b32 v12, 8192, v12
s_mov_b32 s{sSeg}, s{sInc}
""")
    def nxt(d,src):
        A(f's_cmp_ge_u32 s{src}, {S0}\ns_cselect_b32 s{d}, 2, 1\ns_add_u32 s{d}, s{d}, s{src}')
    def src(sg): A(f's_lshl_b32 s{sSrc}, s{sg}, 18\ns_lshl_b32 s{sT0}, s{sW}, 16\ns_add_u32 s{sSrc}, s{sSrc}, s{sT0}\ns_add_u32 s{sSrc}, s{sSrc}, {WS_O}')
    def flg(d,sg): A(f's_lshl_b32 s{d}, s{sg}, 7\ns_add_u32 s{d}, s{d}, {F_O}')
    A(f'{seg}:')
    nxt(sInc,sSeg); flg(sFl,sSeg); flg(sF1,sInc); src(sSeg)
    A(f"""
s_mov_b32 s{sPoll}, 0
{lp}:
buffer_load_dword v14, v13, s[4:7], s{sFl} offen sc1
buffer_load_dword v15, v13, s[4:7], s{sF1} offen sc1
s_add_u32 s{sPoll}, s{sPoll}, 1
s_cmp_gt_u32 s{sPoll}, {POLLMAX}
s_cbranch_scc1 {fail}
v_cmp_eq_u32 vcc, 0, v14
s_cbranch_vccz {ok}
s_sleep 1
s_branch {lp}
{ok}:
""")
    for k in range(32): ld(k)
    prof=f's_cmp_lg_u32 s{sSeg}, {PROFSEG}\ns_cbranch_scc1 {go}_p\ns_memrealtime s[90:91]\ns_waitcnt lgkmcnt(0)\ns_mov_b32 s99, s90\n{go}_p:' if PROF else ''
    A(f"""
{go}:
{prof}
""")
    nxt(sInc,sSeg); nxt(sF2,sInc); flg(sF2,sF2); src(sInc)
    A(f"""
v_cmp_eq_u32 vcc, 0, v15
s_cmp_ge_u32 s{sInc}, 64
s_cbranch_scc1 {plain}
s_cbranch_vccnz {plain}
buffer_load_dword v15, v13, s[4:7], s{sF2} offen sc1
""")
    for k in range(32):
        for c in range(2): A(f'{M16} {q4(ACC+4*c)}, {q4(8*k+4*c,"a")}, {q4(OB+4*k)}, {"0" if k==0 else q4(ACC+4*c)}')
        ld(k)
    epi()
    A(f's_branch {go}\n{plain}:')
    for k in range(32):
        for c in range(2): A(f'{M16} {q4(ACC+4*c)}, {q4(8*k+4*c,"a")}, {q4(OB+4*k)}, {"0" if k==0 else q4(ACC+4*c)}')
    epi()
    A(f's_cmp_lt_u32 s{sSeg}, 64\ns_cbranch_scc1 {seg}\ns_branch {end}')

def emit_flaginit(A, end):
    lp=A.label('FI')
    assert WS_H2==72*4096 and WS_H2+3*H2SZ<=79*4096 and WS_F1==80*4096 and FLAG_BYTES==7*4096
    A(f"""
s_load_dwordx2 s[4:5], s[0:1], {KA['ws']}
s_load_dwordx2 s[66:67], s[0:1], {KA['dbg']}
v_lshlrev_b32 v2, 4, v0
s_mul_i32 s20, s{sH}, 11
s_add_u32 s21, s20, 11
s_waitcnt lgkmcnt(0)
s_mov_b32 s6, {WS_BYTES}
s_mov_b32 s7, 0x20000
{lp}:
s_lshl_b32 s22, s20, 12
s_add_u32 s23, s22, {WS_FLAGS-81*4096}
s_cmp_ge_u32 s20, 81
s_cselect_b32 s22, s23, s22
s_sub_u32 s23, s20, 72
s_cmp_lt_u32 s23, 7
s_cselect_b32 s23, -1, 0
v_mov_b32 v4, s23
v_mov_b32 v5, s23
v_mov_b32 v6, s23
v_mov_b32 v7, s23
buffer_store_dwordx4 v[4:7], v2, s[4:7], s22 offen sc1
s_add_u32 s20, s20, 1
s_cmp_lt_u32 s20, s21
s_cbranch_scc1 {lp}
s_waitcnt vmcnt(0)
s_barrier
s_cmp_lg_u32 s{sW}, 0
s_cbranch_scc1 {end}
v_mov_b32 v4, 0
v_mov_b32 v5, 1
s_mov_b64 exec, 1
global_atomic_add v4, v5, s[66:67] offset:{D_INIT}
s_branch {end}
""")
```

```python
import sys, os
sys.path.insert(0, os.path.dirname(__file__))
from asmgen import *
from common import *
import chain, workb
NAME='concat_heads__grouped_kv_mqa__memory_aug_recurrent_mem_tr__prompt'

def build(chain_kw=None, with_a=True, prof=False, XK=(), XV=(), warm=False, defer=False, pseg=63, touch=False):
    A=Asm()
    workb.PROF=prof; workb.DEFER=defer; workb.PROFSEG=pseg
    sH,sW=12,13
    A(f'''
s_cmp_ge_u32 s2, 256
s_cbranch_scc1 L_exit
s_load_dwordx2 s[66:67], s[0:1], {KA['dbg']}
s_getreg_b32 s20, hwreg(HW_REG_XCC_ID)
s_and_b32 s20, s20, 7
v_lshrrev_b32 v1, 6, v0
v_readfirstlane_b32 s{sW}, v1
s_mov_b32 s{chain.sMode}, 0
''')
    if prof: A('s_memrealtime s[96:97]\ns_memtime s[100:101]')
    if warm:
        A(f'''
s_cmp_lt_u32 s20, 4
s_cbranch_scc1 L_nowarm
s_load_dwordx2 s[24:25], s[0:1], {KA['B_Wq']}
s_load_dwordx2 s[28:29], s[0:1], {KA['B_Wk']}
s_load_dwordx2 s[32:33], s[0:1], {KA['B_Wv']}
s_sub_u32 s21, s20, 4
s_lshl_b32 s21, s21, 5
s_lshr_b32 s22, s2, 3
s_add_u32 s21, s21, s22
s_lshl_b32 s21, s21, 2
s_add_u32 s21, s21, s{sW}
s_mul_i32 s21, s21, 9216
v_and_b32 v2, 63, v0
v_lshlrev_b32 v2, 6, v2
s_mov_b32 s26, {576*8192}
s_mov_b32 s27, 0x20000
s_mov_b32 s30, {576*8192}
s_mov_b32 s31, 0x20000
s_mov_b32 s34, {576*8192}
s_mov_b32 s35, 0x20000
s_add_u32 s22, s21, 4096
s_add_u32 s23, s21, 5120
s_waitcnt lgkmcnt(0)
''')
        for i,srd in enumerate(('s[24:27]','s[28:31]','s[32:35]')):
            for j,so in enumerate((21,22,23)): A(f'buffer_load_dword v{240+3*i+j}, v2, {srd}, s{so} offen')
        A('L_nowarm:')
    if touch:
        A(f'''
s_cmp_lg_u32 s20, 0
s_cbranch_scc1 L_notouch
s_cmp_eq_u32 s{sW}, 0
s_cbranch_scc1 L_notouch
s_load_dwordx4 s[24:27], s[0:1], {KA['B_Wq']}
s_load_dwordx4 s[28:31], s[0:1], {KA['B_Wv']}
v_and_b32 v2, 63, v0
v_mul_u32_u24 v2, 24576, v2
s_add_u32 s21, s{sW}, -1
s_mul_i32 s21, s21, {64*24576}
v_add_u32 v2, s21, v2
s_waitcnt lgkmcnt(0)
global_load_dword v240, v2, s[24:25]
global_load_dword v241, v2, s[26:27]
global_load_dword v242, v2, s[28:29]
global_load_dword v243, v2, s[30:31]
L_notouch:
''')
    A(f'''
s_waitcnt lgkmcnt(0)
s_cmp_lg_u32 s{sW}, 0
s_cbranch_scc1 L_gotrole
s_mov_b64 exec, 1
s_lshl_b32 s21, s20, 2
v_mov_b32 v2, s21
v_mov_b32 v3, 1
global_atomic_add v4, v2, v3, s[66:67] sc0
v_readfirstlane_b32 s22, v4
s_cmp_lt_u32 s22, 32
s_cbranch_scc1 L_tk
v_mov_b32 v2, 0
global_atomic_add v4, v2, v3, s[66:67] offset:{D_OVF} sc0
v_readfirstlane_b32 s23, v4
s_mov_b32 s40, 0
L_ovf:
global_load_dwordx4 v[4:7], v2, s[66:67] sc1
global_load_dwordx4 v[8:11], v2, s[66:67] offset:16 sc1
s_add_u32 s40, s40, 1
s_cmp_gt_u32 s40, 400000
s_cbranch_scc1 L_exit
''')
    for i in range(8): A(f'v_readfirstlane_b32 s{24+i}, v{4+i}')
    A('s_mov_b32 s32, 0')
    for i in range(8): A(f's_add_u32 s32, s32, s{24+i}')
    A('s_cmp_lt_u32 s32, 256\ns_cbranch_scc1 L_ovf')
    for i in range(8):
        nx=f'L_ovf{i}'
        A(f'''
s_min_u32 s33, s{24+i}, 32
s_sub_u32 s34, 32, s33
s_cmp_ge_u32 s23, s34
s_cbranch_scc1 {nx}
s_mov_b32 s20, {i}
s_add_u32 s22, s33, s23
s_branch L_tk
{nx}:
s_sub_u32 s23, s23, s34
''')
    A(f'''
s_branch L_exit
L_tk:
s_lshl_b32 s20, s20, 5
s_add_u32 s20, s20, s22
v_mov_b32 v2, 0
v_mov_b32 v3, s20
ds_write_b32 v2, v3
s_mov_b64 exec, -1
s_waitcnt lgkmcnt(0)
L_gotrole:
s_barrier
v_mov_b32 v2, 0
ds_read_b32 v3, v2
v_readfirstlane_b32 s20, v3
s_barrier
s_mov_b32 s98, s20
s_and_b32 s{sH}, s20, 31
s_cmp_lt_u32 s20, 32
s_cbranch_scc1 L_chain
s_cmp_lt_u32 s20, 64
s_cbranch_scc1 L_k
s_cmp_lt_u32 s20, 96
s_cbranch_scc1 L_v
s_cmp_lt_u32 s20, 128
s_cbranch_scc1 L_q
''')
    A(f'''
s_sub_u32 s{sH}, s20, 128
s_cmp_lt_u32 s20, 164
s_cbranch_scc1 L_op
s_sub_u32 s{sH}, s20, 164
s_cmp_lt_u32 s20, 228
s_cbranch_scc1 L_a
s_sub_u32 s{sH}, s20, 228
s_cmp_lt_u32 s20, 236
s_cbranch_scc1 L_fi
s_branch L_end
''')
    A('L_fi:'); workb.emit_flaginit(A,'L_end')
    A('L_k:'); workb.emit_proj(A,'K','L_fail','L_end',XK)
    A('L_v:'); workb.emit_proj(A,'V','L_fail','L_end',XV)
    A('L_q:'); workb.emit_proj(A,'Q','L_fail','L_end')
    A('L_op:'); workb.emit_outproj(A,'L_fail','L_end')
    A('L_a:')
    if with_a:
        import worka
        worka.emit_a(A,'L_fail','L_end')
    else: A('s_branch L_end')
    A('L_chain:')
    kw=dict(modes=('','sc1'),X=('rdy',) if prof else ()); kw.update(chain_kw or {})
    chain.emit_chain(A,'L_fail','L_end',**kw)
    A('L_fail:\nL_end:')
    if prof:
        A(f'''
s_memrealtime s[94:95]
s_memtime s[92:93]
s_load_dwordx2 s[4:5], s[0:1], {KA['ws']}
s_mov_b64 exec, 1
s_waitcnt lgkmcnt(0)
s_lshl_b32 s98, s98, 2
s_add_u32 s98, s98, s{sW}
s_lshl_b32 s98, s98, 4
s_sub_u32 s92, s92, s100
s_add_u32 s98, s98, 0x8000000
v_mov_b32 v0, s98
v_mov_b32 v2, s96
v_mov_b32 v3, s94
v_mov_b32 v4, s92
v_mov_b32 v5, s99
global_store_dwordx4 v0, v[2:5], s[4:5]
''')
    A('L_exit:\ns_endpgm')
    body=A.finalize()
    hdr=open(os.path.join(os.path.dirname(__file__),'..','cdna_kernels',NAME+'.s.ref')).read().split('; Override launch')[0]
    txt=hdr+f'''; One persistent launch: 256 workgroups, one per CU, roles chosen at run time (see gen/ comments in the body).
; @launch grid=(256,1,1) block=(256,1,1) lds=163840
.amdgcn_target "amdgcn-amd-amdhsa--gfx950"
.text
.globl {NAME}_kernel
.p2align 8
.type {NAME}_kernel,@function
{NAME}_kernel:
{body}
.section .rodata,"a"
.p2align 6
.amdhsa_kernel {NAME}_kernel
  .amdhsa_next_free_vgpr 512
  .amdhsa_next_free_sgpr 102
  .amdhsa_accum_offset 256
  .amdhsa_group_segment_fixed_size 0
  .amdhsa_kernarg_size 120
  .amdhsa_user_sgpr_count 2
  .amdhsa_user_sgpr_kernarg_segment_ptr 1
  .amdhsa_system_sgpr_workgroup_id_x 1
.end_amdhsa_kernel
'''
    return txt, A.stats

if __name__=='__main__':
    txt,st=build(with_a=os.path.exists(os.path.join(os.path.dirname(__file__),'worka.py')))
    out=sys.argv[1] if len(sys.argv)>1 else os.path.join(os.path.dirname(__file__),'..','cdna_kernels',NAME+'.s')
    open(out,'w').write(txt); print(st, len(txt))
```

```python
from asmgen import *
from common import *
import math, struct

L_M  = 0
L_O  = 8192
L_QK = 10240
L_MX = L_QK+4096
L_C  = L_MX+1024
L_W  = L_C+64
WREG = 36864
assert L_W+4*WREG<=163840

vL16,vIdx,vS16,vS16b,vWl,vYw,vOw,vOr,vMw,vH1st,vH1s1,vH2st,vKx,vMl_,vSel,vCon = range(16)
KX = 16
VX = 24
T = lambda i: 32+i
sH,sW,sStep,sU = 12,13,14,15
sTag,sH1ld,sKVc = 16,17,18
sH2c,sH2n,sH2p = 19,20,21
sKn,sKMo,sVMo = 24,25,26
sScale = 27
sMask = 28
sT0,sT1,sT2,sT3 = 36,37,38,39
sPoll = 40
sH2ld = 41
sFlagM = 42
sFlagKV = 43
sKVok = 44
sH2pz = 45
sHi = 46
sW3k = 48
s32k = 49
sMode = 50
sW256 = 52
sStep1 = 53
sPrb = 54
sFlg = 55
sLate = 22
sSc2 = 70
sLo20 = 69
sHi20 = 23
sPf = 27
sFlagKVd = 68
sPfK = 42
sFlagM2 = 8
sOwn = 10
sFlagMw = 51
sTr = 56
sSt = 80
POLLMAX=200000

TORD=[0,2,4,6,8,1,3,5,7]
QKPOS=[1,3,7,11,14,18,22,25,28,32]
QKBUF=[0,1,0,1,0,1,0,1,0,1]
def operand_map():
    qk_order=[]
    for t in TORD:
        qk_order += [('q',t,0),('q',t,1),('k',t,0),('k',t,1)]
    lds_qk = [qk_order[n] for n in QKPOS]
    lds_o = [('o',0,2),('o',0,3),('o',2,0),('o',3,0),('o',3,1),('o',1,2),('o',1,3),('o',3,3)]
    m={}
    li=0
    for op in lds_o+lds_qk:
        m[op]=('l',li); li+=1
    rest=[op for op in qk_order if op not in m]
    rest+=[('v',t,c) for t in range(9) for c in range(2)]
    rest+=[('o',k,P) for k in range(4) for P in range(4) if ('o',k,P) not in m]
    rest+=[('s',0),('s',1)]
    regs=[('v',80+8*i) for i in range(22)]+[('a',8*i) for i in range(32)]
    assert len(rest)==len(regs)==54
    for op,r in zip(rest,regs): m[op]=r
    return m, qk_order, lds_qk, lds_o

def R(loc,off=0,n=8):
    return vr(loc[1]+off,n,loc[0])
def q4(b): return f'v[{b}:{b+3}]'

def status_loads(A):
    A(f"""
v_mov_b32 v{VX}, 0
global_load_dwordx4 v[64:67], v{VX}, s[66:67] offset:{D_TICK} sc1
global_load_dwordx4 v[68:71], v{VX}, s[66:67] offset:{D_TICK+16} sc1
global_load_dword v{VX+1}, v{VX}, s[66:67] offset:{D_INIT} sc1
buffer_load_dword v{VX+2}, v{VX}, s[4:7], s{sFlagKV} offen sc1
buffer_load_dword v{VX+3}, v{VX}, s[4:7], s{sFlagKV} offen offset:256 sc1
""")

def emit_chain_init(A, m, X=()):
    l,n,g,n7,n8,g1,g2,r4,cc=['v%d'%i for i in range(32,41)]
    t0,t1,t2='v41','v42','v43'
    A(f"""
s_load_dwordx2 s[4:5], s[0:1], {KA['ws']}
s_load_dwordx2 s[56:57], s[0:1], {KA['B_Wq']}
s_load_dwordx2 s[58:59], s[0:1], {KA['B_Wk']}
s_load_dwordx2 s[60:61], s[0:1], {KA['B_Wv']}
s_load_dwordx2 s[62:63], s[0:1], {KA['B_Wo']}
s_load_dwordx2 s[64:65], s[0:1], {KA['B_mem0']}
s_load_dwordx2 s[66:67], s[0:1], {KA['dbg']}
v_and_b32 {l}, 63, v0
v_and_b32 {n}, 15, {l}
v_lshrrev_b32 {g}, 4, {l}
v_lshlrev_b32 v{vL16}, 4, {l}
v_and_b32 {n7}, 7, {n}
v_lshrrev_b32 {n8}, 3, {n}
v_and_b32 {g1}, 1, {g}
v_lshrrev_b32 {g2}, 1, {g}
v_lshrrev_b32 {r4}, 2, {n}
v_and_b32 {cc}, 3, {n}
v_mov_b32 {t0}, 0x4444
v_mov_b32 {t1}, 0xeeee
v_cmp_eq_u32 s[{sHi}:{sHi+1}], 1, {n8}
v_cndmask_b32 v{vIdx}, {t0}, {t1}, s[{sHi}:{sHi+1}]
s_mul_i32 s{sT0}, s{sW}, {WREG}
s_add_u32 s{sT0}, s{sT0}, {L_W}
v_add_u32 v{vWl}, s{sT0}, v{vL16}
s_lshl_b32 s{sT1}, s{sW}, 10
v_add_u32 v{vYw}, s{sT1}, v{vL16}
v_lshlrev_b32 {t0}, 7, {g}
v_lshl_add_u32 {t0}, {n7}, 4, {t0}
v_and_b32 v{vOr}, 255, {t0}
s_lshl_b32 s{sT1}, s{sW}, 9
v_add_u32 v{vOw}, s{sT1}, {t0}
s_lshl_b32 s{sW256}, s{sW}, 8
s_lshl_b32 s{sW3k}, s{sW}, 10
s_cmp_eq_u32 s{sW}, 2
s_cselect_b32 s{sW3k}, 6144, s{sW3k}
s_cmp_eq_u32 s{sW}, 3
s_cselect_b32 s{sW3k}, 4096, s{sW3k}
v_add_u32 v{vMw}, s{sW3k}, v{vL16}
; vH1st = (16w + l/8)*4096 + h*128 + (l%8)*16
v_lshrrev_b32 {t0}, 3, {l}
v_lshlrev_b32 {t0}, 12, {t0}
v_lshl_add_u32 {t0}, {n7}, 4, {t0}
s_lshl_b32 s{sT1}, s{sW}, 16
s_lshl_b32 s{sT2}, s{sH}, 7
s_add_u32 s{sT1}, s{sT1}, s{sT2}
v_add_u32 v{vH1st}, s{sT1}, {t0}
; vH1s1 = (64 + 2w + n8)*4096 + h*128 + n7*16 + g1*8
v_lshlrev_b32 {t0}, 12, {n8}
v_lshl_add_u32 {t0}, {n7}, 4, {t0}
v_lshl_add_u32 {t0}, {g1}, 3, {t0}
s_lshl_b32 s{sT1}, s{sW}, 13
s_add_u32 s{sT1}, s{sT1}, s{sT2}
s_add_u32 s{sT1}, s{sT1}, {64*4096}
v_add_u32 v{vH1s1}, s{sT1}, {t0}
s_lshr_b32 s{sU}, s{sH}, 3
s_lshl_b32 s{sU}, s{sU}, 4
s_and_b32 s{sT1}, s{sH}, 7
s_add_u32 s{sU}, s{sU}, s{sT1}
s_lshl_b32 s{sT1}, s{sW}, 3
s_add_u32 s{sU}, s{sU}, s{sT1}
s_add_u32 s{sT1}, s{sH}, 64
s_cmp_eq_u32 s{sW}, 2
s_cselect_b32 s{sU}, s{sT1}, s{sU}
s_cmp_eq_u32 s{sW}, 3
s_cselect_b32 s{sU}, 72, s{sU}
v_lshlrev_b32 {t0}, 4, {n7}
v_lshl_add_u32 {t0}, {g1}, 3, {t0}
v_lshl_add_u32 {t0}, {g2}, 2, {t0}
s_lshl_b32 s{sT1}, s{sU}, 7
v_add_u32 v{vH2st}, s{sT1}, {t0}
s_lshr_b32 s{sT1}, s{sH}, 2
s_add_u32 s{sT1}, s{sT1}, 64
s_lshl_b32 s{sT1}, s{sT1}, 7
s_and_b32 s{sT2}, s{sH}, 3
s_lshl_b32 s{sT2}, s{sT2}, 2
s_add_u32 s{sT1}, s{sT1}, s{sT2}
v_lshlrev_b32 {t0}, 4, {n7}
v_add_u32 {t0}, s{sT1}, {t0}
s_cmp_eq_u32 s{sW}, 2
s_cselect_b64 vcc, -1, 0
v_cndmask_b32 v{vH2st}, v{vH2st}, {t0}, vcc
s_lshl_b32 s{sT1}, s{sW}, 11
v_lshlrev_b32 {t0}, 9, {g}
v_add_u32 {t0}, s{sT1}, {t0}
v_lshl_add_u32 {t1}, {n}, 4, {t0}
v_mov_b32 v{vKx}, {t1}
v_add_u32 v{vMl_}, s{sT1}, v{vL16}
; selector value + masks
v_mov_b32 {t0}, 0x3f80
v_mov_b32 {t1}, 0x3f800000
v_and_b32 {t2}, 1, {n}
v_cmp_eq_u32 vcc, 0, {t2}
v_cndmask_b32 v{vSel}, {t1}, {t0}, vcc
v_lshrrev_b32 {t2}, 1, {n7}
v_cmp_eq_u32 s[{sMask}:{sMask+1}], 0, {t2}
v_cmp_eq_u32 s[{sMask+2}:{sMask+3}], 1, {t2}
v_cmp_eq_u32 s[{sMask+4}:{sMask+5}], 2, {t2}
v_cmp_eq_u32 s[{sMask+6}:{sMask+7}], 3, {t2}
v_mov_b32 v{vCon}, {L_C}
v_lshlrev_b32 {t0}, 1, {g1}
v_cmp_eq_u32 vcc, {t0}, {t2}
v_cndmask_b32 v{vS16}, 0, v{vSel}, vcc
v_add_u32 {t0}, 1, {t0}
v_cmp_eq_u32 vcc, {t0}, {t2}
v_cndmask_b32 v{vS16b}, 0, v{vSel}, vcc
; init-only address regs: v16 dma voffset qkv ; v17..v19 tr bases ; v20,v21 mem0 ; v71..v79 Wo dma voffsets
v_lshlrev_b32 {t0}, 1, {g1}
v_xor_b32 {t0}, {t0}, {n}
v_lshlrev_b32 {t0}, 4, {t0}
v_lshl_add_u32 {t0}, {g}, 13, {t0}
s_lshl_b32 s{sT1}, s{sH}, 8
v_add_u32 v16, s{sT1}, {t0}
v_xor_b32 v28, 64, v16
v_xor_b32 v29, 128, v16
v_xor_b32 v30, 192, v16
v_lshrrev_b32 {t1}, 1, {r4}
v_and_b32 {t2}, 1, {r4}
v_lshlrev_b32 {t0}, 2, {g1}
v_lshl_add_u32 {t0}, {t1}, 3, {t0}
v_add_u32 {t0}, {t0}, {t2}
v_lshlrev_b32 {t0}, 8, {t0}
v_lshl_add_u32 {t0}, {cc}, 3, {t0}
v_lshl_add_u32 v17, {g1}, 1, {t2}
v_lshl_add_u32 v17, {t1}, 2, v17
s_lshl_b32 s{sT1}, s{sW}, 1
v_xor_b32 v17, s{sT1}, v17
v_lshl_add_u32 {t0}, v17, 5, {t0}
v_xor_b32 v23, 32, {t0}
v_mul_u32_u24 v22, {WREG}, {g2}
v_add_u32 v22, {L_W}, v22
v_add_u32 v17, {t0}, v22
v_add_u32 v23, v23, v22
v_add_u32 v22, {2*WREG}, v17
v_add_u32 v31, {2*WREG}, v23
v_lshlrev_b32 {t0}, 4, {g1}
v_lshl_add_u32 {t0}, {g2}, 2, {t0}
v_add_u32 {t0}, {t0}, {t2}
v_mul_u32_u24 {t0}, 288, {t0}
v_lshl_add_u32 {t0}, {t1}, 6, {t0}
v_lshl_add_u32 {t0}, {cc}, 3, {t0}
v_add_u32 v18, s{sT0}, {t0}
v_lshl_add_u32 {t0}, {g}, 2, {r4}
v_mul_u32_u24 {t0}, 288, {t0}
v_lshl_add_u32 {t0}, {cc}, 3, {t0}
v_add_u32 {t0}, 256, {t0}
v_add_u32 v19, s{sT0}, {t0}
""")
    for ii in range(9):
        A(f"""
v_add_u32 {t0}, {64*ii}, {l}
v_mul_u32_u24 {t1}, 3641, {t0}
v_lshrrev_b32 {t1}, 16, {t1}
v_mul_u32_u24 {t2}, 18, {t1}
v_sub_u32 {t2}, {t0}, {t2}
v_mul_u32_u24 {t1}, 1152, {t1}
v_lshl_add_u32 v{71+ii}, {t2}, 4, {t1}""")
    A(f"""
v_mul_u32_u24 {t0}, 1152, {n7}
v_lshl_add_u32 {t0}, {n8}, 4, {t0}
v_lshl_add_u32 v20, {g}, 5, {t0}
v_mul_u32_u24 {t1}, 288, {g}
v_add_u32 v21, {t0}, {t1}
s_waitcnt lgkmcnt(0)
s_mov_b32 s6, {WS_BYTES}
s_mov_b32 s7, 0x20000
s_mov_b32 s10, {0 if 'nodata' in X else 576*8192}
s_mov_b32 s11, 0x20000
s_mov_b32 s68, s{sT0}
s_lshl_b32 s{sH1ld}, s{sU}, 12
s_cmp_lt_u32 s{sU}, 72
s_cselect_b32 s{sH1ld}, s{sH1ld}, {WS_BYTES}
s_cmp_lt_u32 s{sW}, 3
s_cselect_b32 s{sH2pz}, 0, {WS_BYTES}
v_mov_b32 v44, 0
v_mov_b32 v45, 0
v_mov_b32 v46, 0
v_mov_b32 v47, 0
v_mov_b32 v48, 0x3f803f80
v_mov_b32 v49, 0x3f803f80
v_mov_b32 v50, 0x3f803f80
v_mov_b32 v51, 0x3f803f80
v_mov_b32 v52, 0x3f003f00
v_mov_b32 v53, 0x3f003f00
v_mov_b32 v54, -1
""")
    lab=A.label('CI')
    A(f"""
ds_write_b128 v{vCon}, v[44:47]
ds_write_b128 v{vCon}, v[48:51] offset:16
ds_write_b64 v{vCon}, v[52:53] offset:32
""")
    HELP='help' in X
    HL=([x[1] for x in X if isinstance(x,tuple) and x[0]=='hl'] or [5])[0]
    if HELP:
        A(f"""
s_and_b32 s{sT1}, s{sH}, 3
s_add_u32 s{sT2}, s{sT1}, -1
s_cselect_b32 s{sT2}, s{sT2}, 0
s_lshl_b32 s{sT2}, s{sT2}, 2
s_add_u32 s{sT2}, s{sT2}, s{sW}
s_mul_i32 s{sT2}, s{sT2}, 11
s_cmp_eq_u32 s{sT1}, 1
s_cselect_b32 s{sT2}, 128, s{sT2}
v_lshrrev_b32 v60, 4, v{vL16}
v_add_u32 v61, s{sT2}, v60
v_lshrrev_b32 v62, 1, v61
v_lshlrev_b32 v62, 13, v62
v_and_b32 v63, 1, v61
v_lshl_add_u32 v62, v63, 7, v62
s_and_b32 s{sT2}, s{sH}, 28
s_add_u32 s{sT2}, s{sT2}, 1
s_lshl_b32 s{sT2}, s{sT2}, 8
v_add_u32 v62, s{sT2}, v62
v_cmp_gt_u32 s[{sT2-sT2%2}:{sT2-sT2%2+1}], {HL}, v60
v_cmp_gt_u32 vcc, 128, v61
s_and_b64 vcc, vcc, s[{sT2-sT2%2}:{sT2-sT2%2+1}]
v_mov_b32 v63, 0x10000000
v_cndmask_b32 v62, v63, v62, vcc
""")
    sRow,sRow8=sTag,sKVc
    A(f's_mul_i32 s{sRow}, s{sW}, {16*8192}\ns_mul_i32 s{sRow8}, s{sW}, {144*8192}')
    chunks=[]
    def qkv_chunk(mat,t):
        return dict(kind='w',mat=mat,t=t,size=4096,n=4+(1 if HELP and t<8 else 0))
    qk=[qkv_chunk(mm,t) for t in range(9) for mm in 'qk']
    oc=[dict(kind='o',k=k,size=9216,n=9) for k in range(4)]
    for grp in ([x[1] for x in X if isinstance(x,tuple) and x[0]=='ord'] or ['qoqqoqoqoq'])[0]:
        if grp=='q': chunks+= [qk.pop(0) for _ in range(3)]
        else: chunks.append(oc.pop(0))
    for t in range(9): chunks.append(qkv_chunk('v',t))
    ptr={'q':56,'k':58,'v':60,'o':62}
    cur_srd=[None]
    def set_srd(mat):
        if cur_srd[0]!=mat:
            A(f's_mov_b32 s8, s{ptr[mat]}\ns_mov_b32 s9, s{ptr[mat]+1}')
            cur_srd[0]=mat
    def issue(c):
        if c['kind']=='w':
            set_srd(c['mat']); t=c['t']
            d = (144*(t//2)+64*(t%2)) if t<8 else 128
            A(f's_add_u32 m0, s68, {c["addr"]}')
            if HELP and t<8: A(f's_mov_b32 s{sT1}, {d*8192}\nbuffer_load_dword v63, v62, s[8:11], s{sT1} offen')
            for ii in range(4):
                A(f's_add_u32 s{sT1}, s{sRow8 if t==8 else sRow}, {d*8192+ii*(4*8192-1024)}')
                A(f'buffer_load_dwordx4 v{(16,28,29,30)[ii]}, s[8:11], s{sT1} offen offset:{1024*ii} lds')
        else:
            set_srd('o'); k=c['k']
            A(f's_xor_b32 s{sT1}, s{sW}, {k}\ns_lshl_b32 s{sT1}, s{sT1}, 5\ns_lshl_b32 s{sT2}, s{sH}, 7\ns_add_u32 s{sT1}, s{sT1}, s{sT2}\ns_mul_i32 s{sT1}, s{sT1}, 1152\ns_mul_i32 s{sT2}, s{sW}, 288\ns_add_u32 s{sT1}, s{sT1}, s{sT2}')
            for ii in range(9):
                A(f's_add_u32 m0, s68, {c["addr"]+1024*ii}')
                A(f'buffer_load_dwordx4 v{71+ii}, s[8:11], s{sT1} offen {"nt" if "nt" in X else ""} lds')
    def ops_of(c):
        if c['kind']=='w': return [(c['mat'],c['t'],0),(c['mat'],c['t'],1)]
        return [('o',c['k'],P) for P in range(4)]+[('sx',c['k'])]
    def tr_reads(c,op,loc):
        f,b=loc
        if 'notr' in X: return
        if c['kind']=='w':
            for jh in range(2):
                for jl in (0,2):
                    off=c['addr']+jl*256
                    A(f'ds_read_b64_tr_b16 {vr(b+4*jh+jl,2,f)}, v{((17,22),(23,31))[op[2]][jh]} offset:{off}')
        elif op[0]=='o':
            P=op[2]; PP,q=P//2,P%2
            for jh in range(2):
                for jl in (0,2):
                    off=c['addr']+(8*jh+jl)*288+(64*PP+16*q)*2
                    A(f'ds_read_b64_tr_b16 {vr(b+4*jh+jl,2,f)}, v18 offset:{off}')
        else:
            for a in range(2):
                A(f'ds_read_b64_tr_b16 {vr(b+2*a,2,f)}, v19 offset:{c["addr"]+16*a*288}')
    parkregs=[('v',32),('v',40)]+[m[('v',t,c)] for t in range(1,9) for c in range(2)]
    parked={}
    live=[]; nissued=0; nslot=[0]
    def alloc(c):
        a = (nslot[0]%9)*4096
        if any(not (x['addr']+x['size']<=a or x['addr']>=a+c['size']) for x in live): return None
        nslot[0]+= 3 if c['kind']=='o' else 1
        return a
    def flush(loc,addr):
        op=parked.pop(loc); m[op]=('l',addr//2048)
        for j in range(2): A(f'ds_write_b128 v{vWl}, {R(loc,4*j,4)} offset:{addr+1024*j}')
    def early():
        A(f's_mov_b32 s8, s64\ns_mov_b32 s9, s65\ns_mov_b32 s10, 9216')
        for j in range(3):
            A(f"""
s_mul_i32 s{sT1}, s{sW}, 3
s_add_u32 s{sT1}, s{sT1}, {j}
s_lshr_b32 s{sT2}, s{sT1}, 1
s_mul_i32 s{sT2}, s{sT2}, 288
s_and_b32 s{sT3}, s{sT1}, 1
s_lshl_b32 s{sT3}, s{sT3}, 7
s_add_u32 s{sT2}, s{sT2}, s{sT3}
""")
            if j==2:
                A(f"""
s_cmp_eq_u32 s{sT1}, 8
s_cselect_b32 s{sT2}, 256, s{sT2}
s_cselect_b64 vcc, -1, 0
v_cndmask_b32 v20, v20, v21, vcc
""")
            A(f'buffer_load_dwordx4 v[{T(16)+4*j}:{T(19)+4*j}], v20, s[8:11], s{sT2} offen')
        A(f's_lshl_b32 s{sT1}, s{sH}, 9\ns_add_u32 s{sFlagKV}, s{sT1}, {F_KV}')
        A(f'v_readfirstlane_b32 s{sStep1}, v61')
        status_loads(A)
        return 3+5
    pending_reads=False; extra=0
    def its(k):
        if 'itrace' in X: A(f's_memtime s[{sSt+2}:{sSt+3}]\ns_waitcnt lgkmcnt(0)\ns_sub_u32 s{sSt+4+k}, s{sSt+2}, s72')
    its(0)
    def issue_more():
        nonlocal nissued
        while nissued<len(chunks):
            nc=chunks[nissued]
            if sum(x['n'] for x in live)+nc['n']>52: break
            a=alloc(nc)
            if a is None: break
            nc['addr']=a
            issue(nc); live.append(nc); nissued+=1
    issue_more(); its(1)
    prev=None
    for ci,c in enumerate(chunks):
        assert c in live
        if ci==10: A(f'v_mov_b32 v60, 0\nglobal_load_dword v61, v60, s[66:67] offset:{D_INIT} sc1')
        younger=sum(x['n'] for x in live if x is not c and x is not prev)+extra
        A(f's_waitcnt vmcnt({younger}) lgkmcnt(0)')
        if 'nobar' not in X: A('s_barrier')
        if ci in (8,16,22): its((0,0,8,16,22).index(ci,2))
        if ci==30: its(5)
        if prev is not None:
            live.remove(prev)
            issue_more()
            if nissued==len(chunks) and not extra: extra=early()
            if prev['kind']=='w' and prev['mat']=='v':
                for j in range(2): flush(m[('v',c['t'],j)],prev['addr']+2048*j)
        for op in ops_of(c):
            if op[0]=='sx':
                k=op[1]; loc=m[('s',k//2)]; tr_reads(c,op,(loc[0],loc[1]+4*(k%2)))
            elif m[op][0]!='l':
                assert m[op] not in parked
                tr_reads(c,op,m[op])
            else:
                loc=parkregs.pop(0); parked[loc]=op
                tr_reads(c,op,loc)
        prev=c
    A('s_waitcnt lgkmcnt(0)\ns_barrier')
    for j,loc in enumerate([('v',32),('v',40)]): flush(loc,prev['addr']+2048*j)
    assert not parked and not parkregs
    if 'rdy0' in X: A('s_memrealtime s[90:91]\ns_waitcnt lgkmcnt(0)\ns_mov_b32 s99, s90')
    c = math.log2(math.e)/math.sqrt(128.0)
    cb = struct.unpack('<I',struct.pack('<f',c))[0]
    A(f"""
s_mov_b32 s{sSc2}, {cb:#x}
s_mov_b32 s{sSc2+1}, {cb:#x}
s_mov_b32 s{sLo20}, 0x35800000
s_mov_b32 s{sHi20}, 0x49800000
s_mov_b32 s{sStep}, 0
s_mov_b32 s{sTag}, 1
s_mov_b32 s{s32k}, 32768
s_lshl_b32 s{sLate}, s{sW}, 11
s_add_u32 s{sLate}, s{sLate}, 1024
s_mov_b32 s{sH2c}, {WS_H2}
s_mov_b32 s{sH2n}, {WS_H2+H2SZ}
s_mov_b32 s{sH2p}, {WS_H2+2*H2SZ}
s_lshl_b32 s{sT1}, s{sH}, 14
s_add_u32 s{sKVc}, s{sT1}, {WS_KV}
s_add_u32 s{sKn}, s{sKVc}, {32*16384}
s_lshl_b32 s{sT2}, s{sW}, 11
s_add_u32 s{sPf}, s{sKn}, s{sT2}
s_add_u32 s{sPf}, s{sPf}, 8192
s_mov_b32 m0, {L_W+4*WREG}
s_lshl_b32 s{sT1}, s{sH}, 11
s_add_u32 s{sKMo}, s{sT1}, {WS_KM}
s_lshl_b32 s{sT1}, s{sH}, 12
s_add_u32 s{sVMo}, s{sT1}, {WS_VM}
s_lshl_b32 s{sT1}, s{sW}, 10
s_add_u32 s{sVMo}, s{sVMo}, s{sT1}
s_lshl_b32 s{sT1}, s{sH}, 7
s_add_u32 s{sFlagM}, s{sT1}, {F_M}
s_lshr_b32 s{sT1}, s{sH}, 2
s_add_u32 s{sT1}, s{sT1}, 64
s_lshl_b32 s{sT1}, s{sT1}, 12
s_and_b32 s{sT2}, s{sH}, 3
s_lshl_b32 s{sT2}, s{sT2}, 5
s_add_u32 s{sT1}, s{sT1}, s{sT2}
s_cmp_eq_u32 s{sW}, 2
s_cselect_b32 s{sH1ld}, s{sT1}, s{sH1ld}
s_sub_u32 s{sFlagMw}, s{sFlagM}, {L_C}
s_mov_b32 s{sT1}, {WS_BYTES}
s_cmp_eq_u32 s{sW}, 3
s_cselect_b32 s{sFlagMw}, s{sFlagMw}, s{sT1}
s_add_u32 s{sPrb}, s{sH}, s{sW}
s_and_b32 s{sPrb}, s{sPrb}, 3
s_lshl_b32 s{sPrb}, s{sPrb}, 8
s_add_u32 s{sPrb}, s{sPrb}, {WS_F1}
s_lshl_b32 s{sFlg}, s{sH}, 2
s_add_u32 s{sFlg}, s{sFlg}, {WS_F1}
s_cmp_eq_u32 s{sW}, 3
s_cselect_b32 s{sPrb}, s{sPrb}, s{sT1}
s_cmp_eq_u32 s{sW}, 1
s_cselect_b32 s{sFlg}, s{sFlg}, s{sT1}
""")

def emit_wait_kv(A, need_sreg, fail, tmp):
    lp=A.label('KVW'); ok=A.label('KVOK')
    A(f"""
s_cmp_ge_u32 s{sKVok}, s{need_sreg}
s_cbranch_scc1 {ok}
s_mov_b32 s{sPoll}, 0
{lp}:
v_mov_b32 v{tmp}, 0
buffer_load_dword v{tmp+1}, v{tmp}, s[4:7], s{sFlagKV} offen offset:256 sc1
buffer_load_dword v{tmp}, v{tmp}, s[4:7], s{sFlagKV} offen sc1
s_add_u32 s{sPoll}, s{sPoll}, 1
s_cmp_gt_u32 s{sPoll}, {POLLMAX}
s_cbranch_scc1 {fail}
v_min_u32 v{tmp}, v{tmp}, v{tmp+1}
v_readfirstlane_b32 s{sKVok}, v{tmp}
s_cmp_lt_u32 s{sKVok}, s{need_sreg}
s_cbranch_scc1 {lp}
{ok}:
""")

def emit_chain_loop(A, m, qk_order, lds_qk, lds_o, st, tag, fail, done, D1=0, D2=2, stamps=(), X=()):
    def stamp(i):
        if ('tr',i) in X:
            k=[x for x in X if isinstance(x,tuple) and x[0]=='tr'].index(('tr',i))
            sk=A.label('TR')
            A(f's_cmp_gt_u32 s{sStep}, {31 if i in (8,7,13) or (i==0 and k>0) else 30}\ns_cbranch_scc1 {sk}\ns_memtime s[{sTr+2*k}:{sTr+2*k+1}]\n{sk}:')
        if i in stamps:
            k=stamps.index(i)
            A(f's_memtime s[{sSt+2}:{sSt+3}]\ns_waitcnt lgkmcnt(0)')
            if k==0: A(f's_mov_b32 s{sSt}, s{sSt+2}')
            else: A(f's_sub_u32 s{sSt+3}, s{sSt+2}, s{sSt}\ns_add_u32 s{sSt+4+k}, s{sSt+4+k}, s{sSt+3}')
    def delay(n):
        while n>0:
            c=min(n,16); A(f's_nop {c-1}'); n-=c
    Dl=dict(a1=4,a2=25,g=34,al=24,b1=52,b2=80,c1=0,c2=30,d1=94,nl=10,fl=0,vl=16,v4=1,fm=23,z0=0,z1=0,pr=(7,9,11,13),sp=2,se=2,kx2=0,ow=0,pk=0,pf=20,xo=1); Dl.update(D1 if isinstance(D1,dict) else {})
    SM='v_smfmac_f32_16x16x64_bf16'
    M32='v_mfma_f32_16x16x32_bf16'; M16='v_mfma_f32_16x16x16_bf16'
    accq=[T(0),T(4)]; acck=[T(8),T(12)]; ring=[T(16),T(20),T(24)]; stg=[T(28),T(36),VX]
    def ldsop(op,buf):
        A(f'ds_read_b128 {q4(buf)}, v{vWl} offset:{m[op][1]*2048}')
        A(f'ds_read_b128 {q4(buf+4)}, v{vWl} offset:{m[op][1]*2048+1024}')
    def zero(b): A(f'ds_read_b128 {q4(b)}, v{vCon}')
    Q=[]
    def qop(op,buf):
        Q.append(f'ds_read_b128 {q4(buf)}, v{vWl} offset:{m[op][1]*2048}')
        Q.append(f'ds_read_b128 {q4(buf+4)}, v{vWl} offset:{m[op][1]*2048+1024}')
    def pop(k=1):
        for _ in range(k):
            if Q: A(Q.pop(0))
    top=f'CSTEP_{tag}'; p2=f'CP2_{tag}'; barA=f'CBA_{tag}'
    late=T(44); vMl=vMl_; lateL=A.label('LATE')
    A(f'{top}_prep:')
    for i in range(16): A(f'v_mov_b32 v{T(i)}, 0')
    for j in range(2): ldsop(lds_qk[j],stg[j])
    pw=A.label('PW')
    A(f's_cmp_eq_u32 s{sW}, 3\ns_cbranch_scc1 {pw}')
    A(f's_mul_i32 s{sT1}, s{sW}, 3072\nv_add_u32 v{T(45)}, s{sT1}, v{vL16}')
    for j in range(3): A(f'ds_write_b128 v{T(45)}, {q4(T(16)+4*j)} offset:{L_M+1024*j}')
    A(f'{pw}:')
    A('s_waitcnt lgkmcnt(0)\ns_barrier')
    A(f'ds_read_b128 {q4(late)}, v{vMl} offset:{L_M+1024}')
    A('.p2align 6')
    A(f'{barA}:')
    A('s_waitcnt lgkmcnt(0)\ns_barrier')
    stamp(0)
    if 'hist' in X:
        A(f's_memtime s[{sSt+2}:{sSt+3}]\ns_waitcnt lgkmcnt(0)\ns_sub_u32 s{sSt+3}, s{sSt+2}, s{sSt}\ns_mov_b32 s{sSt}, s{sSt+2}')
        for i,th in enumerate((4000,4100,4200,4300,4450,4700)):
            A(f's_cmp_lt_u32 s{sSt+3}, {th}\ns_addc_u32 s{sSt+4+i}, s{sSt+4+i}, 0')
    for x in X:
        if isinstance(x,tuple) and x[0]=='at':
            sk=A.label('AT'); A(f's_cmp_lg_u32 s{sStep}, {x[1]}\ns_cbranch_scc1 {sk}\ns_memrealtime s[90:91]\ns_waitcnt lgkmcnt(0)\ns_mov_b32 s99, s90\ns_mov_b32 s90, 0\ns_mov_b32 s91, 0\n{sk}:')
    def mtxt(pos): return f'ds_read_b128 {q4(ring[pos%3])}, v{vL16} offset:{L_M+1024*(TORD[pos%9])}'
    def mread(pos): A(mtxt(pos))
    mread(0); mread(1); Q.append(mtxt(2))
    accv=[T(44),T(28)]
    li=0
    cold=[]
    NL=Dl['nl']
    for n,op in enumerate(qk_order):
        pos=n//4; acc=(accq if op[0]=='q' else acck)[op[2]]
        if m[op][0]=='l':
            b=stg[QKBUF[li]]; B=f'v[{b}:{b+7}]'
        else: B=R(m[op])
        A(f'{SM} {q4(acc)}, {q4(ring[pos%3])}, {B}, v{vIdx}')
        if m[op][0]=='l':
            nx=[j for j in range(li+1,len(lds_qk)) if QKBUF[j]==QKBUF[li]]
            if nx: qop(lds_qk[nx[0]],b)
            li+=1
        if n==NL:
            ck=late; ok=A.label('LOK')
            A(f'ds_write_b128 v{vMl}, {q4(late)} offset:{L_M+1024}'); wpos=len(A.items)
        if n==NL+1: A(f'v_max3_u32 v{ck}, v{late}, v{late+1}, v{late+2}')
        if n==NL+2: A(f'v_max_u32 v{ck}, v{ck}, v{late+3}')
        if n==NL+3:
            A(f'v_cmp_eq_u32 vcc, -1, v{ck}\ns_cbranch_vccnz {lateL}\n{ok}:')
            def c(ok=ok,ck=ck):
                A(f'{lateL}:')
                A(f'buffer_load_dwordx4 {q4(late)}, v{vL16}, s[4:7], s{sT3} offen sc1')
                A(f's_add_u32 s{sPoll}, s{sPoll}, 1\ns_add_u32 s{sSt+12}, s{sSt+12}, 1\ns_cmp_gt_u32 s{sPoll}, {POLLMAX}\ns_cbranch_scc1 {fail}')
                A(f'ds_write_b128 v{vMl}, {q4(late)} offset:{L_M+1024}')
                A(f's_nop 1\nv_max3_u32 v{ck}, v{late}, v{late+1}, v{late+2}\nv_max_u32 v{ck}, v{ck}, v{late+3}')
                A(f'v_cmp_eq_u32 vcc, -1, v{ck}\ns_cbranch_vccnz {lateL}\ns_waitcnt lgkmcnt(0)\ns_branch {ok}')
            cold.append(c)
        if n%4==3:
            if pos<2: Q.insert(0,mtxt(pos+3))
            elif pos==3:
                A('LGKM_A2\ns_barrier'.replace('LGKM_A2',f's_waitcnt lgkmcnt({sum(1 for it in A.items[wpos:] if isinstance(it,Ins) and it.kind=="ds")})'))
                Q.insert(0,mtxt(5)); Q.insert(1,mtxt(6))
            elif pos>3: Q.insert(0,mtxt(pos+3))
        if n!=NL: pop()
        if n==Dl['vl'] and 'nov' not in X: A(f'buffer_load_dwordx4 {q4(VX)}, v{vKx}, s[4:7], s{sKVc} offen sc1')
        if n==Dl['vl']+1 and 'nov' not in X: A(f'buffer_load_dwordx4 {q4(VX+4)}, v{vKx}, s[4:7], s{sKVc} offen offset:256 sc1')
        if n==Dl['fm']-1: A(f'v_mov_b32 v{T(45)}, s{sStep}')
        if n==Dl['fm']: A(f'buffer_store_dword v{T(45)}, v{vCon}, s[4:7], s{sFlagMw} offen sc1')
        if n==24:
            kf_=A.label('KVF'); kb_=A.label('KVB')
            A(f's_add_u32 s{sT1}, s{sStep}, 8\ns_lshr_b32 s{sT1}, s{sT1}, 2\ns_min_u32 s{sT1}, s{sT1}, 16\ns_cmp_lt_u32 s{sKVok}, s{sT1}\ns_cbranch_scc1 {kf_}\n{kb_}:')
            def c(kf_=kf_,kb_=kb_):
                A(f'{kf_}:\nbuffer_load_dword v{vCon}, s[4:7], s{sFlagKVd} offen offset:256 sc1 lds\nbuffer_load_dword v{vCon}, s[4:7], s{sFlagKVd} offen offset:512 sc1 lds\ns_branch {kb_}')
            cold.append(c)
        if n==18: A(f'v_mov_b32 v{T(44)}, -1')
        if n==16: A(f'v_lshlrev_b32 v{T(46)}, 3, v{vL16}')
        if n==17 and Dl['pk']: A(f'v_lshrrev_b32 v{T(47)}, 8, v{vL16}')
        if n==19 and Dl['pk']: A(f'v_mad_u32_u24 v{T(46)}, v{T(47)}, s{sPfK}, v{T(46)}')
        if n==Dl['pf'] and 'nopf' not in X: A(f's_mov_b64 exec, {"0xffffffff" if Dl["pk"] else "0xffff"}\nbuffer_load_dword v{T(46)}, s[4:7], s{sPf} offen sc1 lds\ns_mov_b64 exec, -1')
        if n==19: A(f's_add_u32 s{sT1}, s{sH2p}, s{sH2pz}\nbuffer_store_dword v{T(44)}, v{vH2st}, s[4:7], s{sT1} offen {st}')
        if 25<=n<29: A(f'v_mov_b32 v{accv[0]+n-25}, 0')
        if 30<=n<34: A(f'v_mov_b32 v{accv[1]+n-30}, 0')
    stamp(1)
    def vstep(p):
        for c in range(2):
            A(f'{SM} {q4(accv[c])}, {q4(ring[p%3])}, {R(m[("v",TORD[p],c)])}, v{vIdx}')
            if c==1 and p+3<9: Q.insert(0,mtxt(p+3))
            pop()
    def cv(d,a): A(f'v_cvt_pk_bf16_f32 v{d}, v{a}, v{a+1}')
    vstep(0)
    for a in accq: cv(a,a); cv(a+1,a+2)
    tq=[T(32),T(36)]; tk=[T(0),T(4)]
    A(f'{M16} {q4(tq[0])}, v[{accq[0]}:{accq[0]+1}], v[{vS16}:{vS16+1}], 0')
    cv(acck[0],acck[0]); cv(acck[0]+1,acck[0]+2)
    A(f'{M16} {q4(tq[1])}, v[{accq[1]}:{accq[1]+1}], v[{vS16}:{vS16+1}], 0')
    cv(acck[1],acck[1]); cv(acck[1]+1,acck[1]+2)
    A(f'{M16} {q4(tk[0])}, v[{acck[0]}:{acck[0]+1}], v[{vS16}:{vS16+1}], 0')
    A(f'{M16} {q4(tk[1])}, v[{acck[1]}:{acck[1]+1}], v[{vS16}:{vS16+1}], 0')
    qf,kf=T(32),T(8)
    A(f'v_add_u32 v{T(40)}, s{sW256}, v{vOr}')
    cv(qf,tq[0]); cv(qf+1,tq[0]+2); cv(qf+2,tq[1]); cv(qf+3,tq[1]+2)
    X0,X1,Mm=T(4),T(12),T(0)
    cv(kf,tk[0]); cv(kf+1,tk[0]+2)
    A(f'{M32} {q4(X1)}, {q4(KX+4)}, {q4(qf)}, 0')
    cv(kf+2,tk[1]); cv(kf+3,tk[1]+2)
    A(f'{M32} {q4(X0)}, {q4(KX)}, {q4(qf)}, 0')
    A(f'{M32} {q4(Mm)}, {q4(kf)}, {q4(qf)}, 0')
    vstep(1)
    if 'nok' not in X: A(f'buffer_load_dwordx4 {q4(KX)}, v{vKx}, s[4:7], s{sKn} offen sc1')
    if Dl['kx2'] or Dl['ow']: A(f'v_cndmask_b32 v{T(41)}, 0, 8, s[{sHi}:{sHi+1}]')
    if Dl['kx2']:
        A(f'v_cndmask_b32 v{kf}, v{kf}, v{kf+2}, s[{sHi}:{sHi+1}]\nv_cndmask_b32 v{kf+1}, v{kf+1}, v{kf+3}, s[{sHi}:{sHi+1}]\nv_add_u32 v{T(42)}, v{T(41)}, v{vOw}')
        A(f'buffer_store_dwordx2 v[{kf}:{kf+1}], v{T(42)}, s[4:7], s{sKMo} offen sc1')
    elif 'nokm' not in X: A(f'buffer_store_dwordx4 {q4(kf)}, v{vOw}, s[4:7], s{sKMo} offen sc1')
    for r in range(4): A(f'v_cndmask_b32 v{X0+r}, v{X0+r}, v{X1+r}, s[{sHi}:{sHi+1}]')
    A(f'ds_write_b128 v{vYw}, {q4(X0)} offset:{L_QK}')
    if 'nok' not in X: A(f'buffer_load_dwordx4 {q4(KX+4)}, v{vKx}, s[4:7], s{sKn} offen offset:256 sc1')
    if Dl['ow']:
        A(f'v_cndmask_b32 v{Mm}, v{Mm}, v{Mm+2}, s[{sHi}:{sHi+1}]\nv_cndmask_b32 v{Mm+1}, v{Mm+1}, v{Mm+3}, s[{sHi}:{sHi+1}]\nv_add_u32 v{T(40)}, v{T(41)}, v{T(40)}')
        A(f'ds_write_b64 v{T(40)}, v[{Mm}:{Mm+1}] offset:{L_MX}')
    else: A(f'ds_write_b128 v{T(40)}, {q4(Mm)} offset:{L_MX}')
    wp=len(A.items)
    vstep(2); vstep(3)
    if Dl['v4']: vstep(4)
    A(f's_waitcnt lgkmcnt({sum(1 for it in A.items[wp:] if isinstance(it,Ins) and it.kind=="ds")})\ns_barrier')
    stamp(2)
    Y=[T(0),T(4),T(8),T(12)]; Mp=[T(32),T(36),T(40),T(16)]
    A(f'ds_read_b128 {q4(Y[0])}, v{vL16} offset:{L_QK}')
    for j in range(1,4): Q.append(f'ds_read_b128 {q4(Y[j])}, v{vL16} offset:{L_QK+1024*j}')
    for j in range(3): Q.append(f'ds_read_b128 {q4(Mp[j])}, v{vOr} offset:{L_MX+256*j}')
    if not Dl['v4']: vstep(4)
    vstep(5); vstep(6)
    Q.append(f'ds_read_b128 {q4(Mp[3])}, v{vOr} offset:{L_MX+256*3}')
    vstep(7); vstep(8)
    pop(len(Q))
    def padd(a,b):
        A(f'v_pk_add_f32 v[{a}:{a+1}], v[{a}:{a+1}], v[{b}:{b+1}]\nv_pk_add_f32 v[{a+2}:{a+3}], v[{a+2}:{a+3}], v[{b+2}:{b+3}]')
    def pmul(a):
        for o in (0,2): A(f'v_pk_mul_f32 v[{a+o}:{a+o+1}], v[{a+o}:{a+o+1}], s[{sSc2}:{sSc2+1}]')
    Ys,Ms=Y[0],Mp[0]
    vm=T(20); P=T(12); ones,half=T(4),T(8)
    accO=[T(16),T(20),T(24),T(28)]; accS=T(44)
    O0,O1,Lr=T(0),T(40),T(44)
    def softpv(fast):
        for r in range(4): A(f'v_exp_f32 v{Ys+r}, v{Ys+r}')
        if fast:
            padd(Mp[0],Mp[1]); padd(Mp[2],Mp[3])
        A(f'v_cvt_pk_bf16_f32 v{P}, v{Ys}, v{Ys+1}\nv_cvt_pk_bf16_f32 v{P+2}, v{Ys}, v{Ys+1}')
        A(f'v_cvt_pk_bf16_f32 v{P+1}, v{Ys+2}, v{Ys+3}\nv_cvt_pk_bf16_f32 v{P+3}, v{Ys+2}, v{Ys+3}')
        if fast:
            padd(Mp[0],Mp[2])
        A(f'v_mov_b32_dpp v{P}, v{P+2} row_ror:8 row_mask:0xf bank_mask:0xc')
        A(f'v_mov_b32_dpp v{P+1}, v{P+3} row_ror:8 row_mask:0xf bank_mask:0xc')
        A(f'v_mov_b32_dpp v{P+2}, v{P+2} row_ror:8 row_mask:0xf bank_mask:0x3')
        A(f'v_mov_b32_dpp v{P+3}, v{P+3} row_ror:8 row_mask:0xf bank_mask:0x3')
        if fast:
            pmul(Ms)
        A(f'{M32} {q4(Lr)}, {q4(ones)}, {q4(P)}, 0')
        A(f'v_exp_f32 v{Ms}, v{Ms}')
        A(f'{M32} {q4(O0)}, {q4(VX)}, {q4(P)}, 0')
        A(f'v_exp_f32 v{Ms+1}, v{Ms+1}')
        A(f'{M32} {q4(O1)}, {q4(VX+4)}, {q4(P)}, 0')
        A(f'v_exp_f32 v{Ms+2}, v{Ms+2}\nv_exp_f32 v{Ms+3}, v{Ms+3}')
        A(f'v_cvt_pk_bf16_f32 v{Ms}, v{Ms}, v{Ms+1}')
        A(f'v_cvt_pk_bf16_f32 v{Ms+1}, v{Ms+2}, v{Ms+3}')
        z=lambda b,lo,hi: [A(f'v_mov_b32 v{b+i}, 0') for i in range(lo,hi)]
        z(accO[0],0,2)
        A(f'{M16} {q4(Lr)}, v[{half}:{half+1}], v[{Ms}:{Ms+1}], {q4(Lr)}')
        z(accO[0],2,4)
        A(f'{M16} {q4(O0)}, v[{vm}:{vm+1}], v[{Ms}:{Ms+1}], {q4(O0)}')
        zero(accO[2])
        A(f'{M16} {q4(O1)}, v[{vm+2}:{vm+3}], v[{Ms}:{Ms+1}], {q4(O1)}')
        zero(accO[3])
    padd(Y[0],Y[1]); padd(Y[2],Y[3]); padd(Y[0],Y[2])
    A(f'ds_read_b128 {q4(ones)}, v{vCon} offset:16\nds_read_b64 v[{half}:{half+1}], v{vCon} offset:32')
    pmul(Ys)
    for c in range(2): cv(vm+2*c,accv[c]); cv(vm+2*c+1,accv[c]+2)
    if 'nokm' not in X: A(f'buffer_store_dwordx4 {q4(vm)}, v{vL16}, s[4:7], s{sVMo} offen sc1')
    A(f's_cmp_eq_u32 s{sStep}, 63\ns_cbranch_scc1 {done}')
    stamp(3)
    softpv(True)
    ostg=[VX,T(36)]
    ra=[T(33),T(34),T(35)]
    rl=T(32); m1,m2=T(10),T(11)
    sm_slow=A.label('SMX'); sm_ok=A.label('SMK')
    A(f'v_xor_b32 v{ra[1]}, 1024, v{vOw}\nv_xor_b32 v{ra[2]}, 1536, v{vOw}')
    A(f'v_mov_b32 v{m2}, s{sHi20}\nv_med3_f32 v{m1}, v{Lr}, s{sLo20}, v{m2}\nv_rcp_f32 v{rl}, v{Lr}')
    A(f'v_cmp_neq_f32 vcc, v{m1}, v{Lr}')
    if 'forceslow' in X: A(f's_branch {sm_slow}')
    else: A(f's_cbranch_vccnz {sm_slow}')
    A(f'{sm_ok}:')
    def c():
        A(f'{sm_slow}:')
        tm=[T(16),T(36),T(24),T(28)]
        for j in range(4): A(f'ds_read_b128 {q4(tm[j])}, v{vL16} offset:{L_QK+1024*j}')
        padd(tm[0],tm[1]); padd(tm[2],tm[3]); padd(tm[0],tm[2])
        for r in range(4): A(f'v_mov_b32 v{Ys+r}, v{T(16)+r}')
        for j in range(4): A(f'ds_read_b128 {q4(tm[j])}, v{vOr} offset:{L_MX+256*j}')
        padd(tm[0],tm[1]); padd(tm[2],tm[3]); padd(tm[0],tm[2])
        for r in range(4): A(f'v_mov_b32 v{Ms+r}, v{T(16)+r}')
        pmul(Ys); pmul(Ms)
        A(f"""
v_max3_f32 v{m1}, v{Ys}, v{Ys+1}, v{Ys+2}
v_max3_f32 v{m2}, v{Ms}, v{Ms+1}, v{Ys+3}
v_max3_f32 v{m1}, v{m1}, v{Ms+2}, v{Ms+3}
v_max_f32 v{m1}, v{m1}, v{m2}
v_max_f32_dpp v{m1}, v{m1}, v{m1} row_ror:8 row_mask:0xf bank_mask:0xf
v_mov_b32 v{m2}, v{m1}
v_permlane32_swap_b32 v{m1}, v{m2}
v_max_f32 v{m1}, v{m1}, v{m2}
v_mov_b32 v{m2}, v{m1}
v_permlane16_swap_b32 v{m1}, v{m2}
v_max_f32 v{m1}, v{m1}, v{m2}
""")
        for r in range(4): A(f'v_sub_f32 v{Ys+r}, v{Ys+r}, v{m1}\nv_sub_f32 v{Ms+r}, v{Ms+r}, v{m1}')
        softpv(False)
        A(f'v_xor_b32 v{ra[1]}, 1024, v{vOw}\nv_xor_b32 v{ra[2]}, 1536, v{vOw}\nv_rcp_f32 v{rl}, v{Lr}\ns_branch {sm_ok}')
    cold.append(c)
    vmpos=len(A.items)
    zero(accO[1])
    Q.clear(); qop(lds_o[0],ostg[0]); qop(lds_o[1],ostg[1])
    A(f'v_xor_b32 v{ra[0]}, 512, v{vOw}')
    own=T(12)
    for i,b in enumerate((O0,O0+2,O1,O1+2)):
        A(f'v_pk_mul_f32 v[{b}:{b+1}], v[{b}:{b+1}], v[{rl}:{rl+1}] op_sel_hi:[1,0]')
    for i,b in enumerate((O0,O0+2,O1,O1+2)):
        A(f'v_cvt_pk_bf16_f32 v{own+i}, v{b}, v{b+1}')
    A(f'ds_write_b128 v{vOw}, {q4(own)} offset:{L_O}')
    wp=len(A.items); pop()
    vP,vPa,vFa,vFd=T(32),T(33),T(34),T(35)
    def flag(): A(f'buffer_store_dword v{vFd}, v{vFa}, s[4:7], s{sFlg} offen {st}')
    def probe(): A(f'buffer_load_dword v{vP}, v{vPa}, s[4:7], s{sPrb} offen sc1 ;nw')
    if Dl['fl']==-2:
        A(f's_add_u32 s{sStep1}, s{sStep}, 1\nv_bfe_u32 v{T(0)}, v{vL16}, 0, 6\nv_mov_b32 v{T(1)}, s{sStep1}\nv_lshlrev_b32 v{T(0)}, 4, v{T(0)}')
        A(f'buffer_store_dword v{T(1)}, v{T(0)}, s[4:7], s{sFlg} offen {st}')
    stamp(4)
    fr=[own,T(0),T(4),T(8)]
    def osm(k,P):
        op=('o',k,P)
        if m[op][0]=='l':
            i=lds_o.index(op); b=ostg[i%2]; B=f'v[{b}:{b+7}]'
        else: B=R(m[op])
        A(f'{SM} {q4(accO[P])}, {q4(fr[k])}, {B}, v{vIdx}')
        if m[op][0]=='l' and i+2<len(lds_o): qop(lds_o[i+2],ostg[i%2])
        pop()
    def osg(k):
        loc=m[('s',k//2)]
        A(f'{M32} {q4(accS)}, {q4(fr[k])}, {R(loc,4*(k%2),4)}, {"0" if k==0 else q4(accS)}')
        pop()
    osg(0); osm(0,0); osm(0,1)
    A(f's_waitcnt lgkmcnt({sum(1 for it in A.items[wp:] if isinstance(it,Ins) and it.kind=="ds")})\ns_barrier')
    for k in range(1,4): A(f'ds_read_b128 {q4(fr[k])}, v{ra[k-1]} offset:{L_O}')
    osm(0,2); osm(0,3)
    stamp(5)
    def tagit(r): A(f'v_and_or_b32 v{r}, v{r}, -2, s{sTag}')
    def pack(x,y,so):
        A(f'v_cvt_pk_bf16_f32 v{x}, v{x}, v{x+1}\nv_cvt_pk_bf16_f32 v{x+1}, v{x+2}, v{x+3}')
        A(f'v_cvt_pk_bf16_f32 v{x+3}, v{y+2}, v{y+3}\nv_cvt_pk_bf16_f32 v{x+2}, v{y}, v{y+1}')
        tagit(x+2); tagit(x)
        A(f'v_permlane16_swap_b32 v{x+1}, v{x+3}\nv_permlane16_swap_b32 v{x}, v{x+2}')
        A(f'buffer_store_dwordx4 {q4(x)}, v{vH1st}, s[4:7], {so} offen {st}')
    if Dl['fl']!=-2: A(f's_add_u32 s{sStep1}, s{sStep}, 1\nv_bfe_u32 v{vFa}, v{vL16}, 0, 6\nv_mov_b32 v{vFd}, s{sStep1}\nv_lshlrev_b32 v{vFa}, 4, v{vFa}')
    if Dl['fl']==-1: flag()
    A(f'v_bfe_u32 v{vPa}, v{vL16}, 2, 7\nv_mov_b32 v{vP}, 0')
    cnt=[0]
    def tick():
        if cnt[0]==Dl['fl']: flag()
        if cnt[0] in Dl['pr']: probe()
        cnt[0]+=1
    for k in range(1,4): osg(k); tick()
    for k in range(1,4): osm(k,0); tick()
    sst=f's_mov_b64 exec, 0xffffffff\nbuffer_store_dwordx2 v[{accS}:{accS+1}], v{vH1s1}, s[4:7], 0 offen {st}\ns_mov_b64 exec, -1'
    if Dl['se']:
        A(f'v_cvt_pk_bf16_f32 v{accS}, v{accS}, v{accS+1}')
        osm(1,1); tick(); A(f'v_cvt_pk_bf16_f32 v{accS+1}, v{accS+2}, v{accS+3}')
        osm(2,1); tick(); tagit(accS)
        osm(3,1); tick(); A(sst)
        if Dl['se']==2: osm(1,2); tick()
    else:
        for k in range(1,4): osm(k,1); tick()
        A(f'v_cvt_pk_bf16_f32 v{accS}, v{accS}, v{accS+1}\nv_cvt_pk_bf16_f32 v{accS+1}, v{accS+2}, v{accS+3}')
        tagit(accS); A(sst)
    pack(accO[0],accO[1],'0')
    sel=T(44); D=T(16)
    for j in range(4): A(f'v_cndmask_b32 v{sel+j}, 0, v{vSel}, s[{sMask+2*j}:{sMask+2*j+1}]')
    for k in range(2 if Dl['se']==2 else 1,4): osm(k,2); tick()
    for k in range(1,4): osm(k,3); tick()
    A(f's_cmp_lg_u32 s{sW}, 3')
    pack(accO[2],accO[3],f's{s32k}')
    stamp(6)
    if 6 in stamps or ('tr',6) in X: A(f's_cmp_lg_u32 s{sW}, 3')
    nyoung=sum(1 for it in A.items[vmpos:] if isinstance(it,Ins) and it.vm)
    f1=sum((((a^c)|(b^c))<<(a*4+b*2+c)) for a in (0,1) for b in (0,1) for c in (0,1))
    f2=sum(((a|(b^c))<<(a*4+b*2+c)) for a in (0,1) for b in (0,1) for c in (0,1))
    def zacc(lo=0,hi=16):
        for i in range(lo,hi): A(f'v_mov_b32 v{T(i)}, 0 ;nw')
    def h1loads(hd):
        for j in range(4): A(f'buffer_load_dwordx4 {q4(hd+4*j)}, v{vL16}, s[4:7], s{sH1ld} offen offset:{1024*j} sc1')
    def rbody(hd):
        ck=T(20)
        for j in range(4):
            A(f'{M32} {q4(D)}, {q4(hd+4*j)}, {q4(sel)}, {q4(D) if j else "0"}')
            if j==0: A(f'v_bitop3_b32 v{ck}, v{hd}, v{hd+2}, s{sTag} bitop3:{f1:#x}')
            else:
                A(f'v_bitop3_b32 v{ck}, v{ck}, v{hd+4*j}, s{sTag} bitop3:{f2:#x}')
                A(f'v_bitop3_b32 v{ck}, v{ck}, v{hd+4*j+2}, s{sTag} bitop3:{f2:#x}')
        A(f'v_and_b32 v{ck}, 1, v{ck}\nv_cmp_ne_u32 vcc, 0, v{ck}')
    def reduce(between=None):
        p1=A.label('P1'); ok=A.label('P1K')
        hd=T(28)
        stamp(10)
        h1loads(hd)
        if between: between()
        rbody(hd); A(f's_cbranch_vccnz {p1}')
        A(f'{ok}:')
        A(f'v_permlane32_swap_b32 v{D}, v{D+2}\nv_permlane32_swap_b32 v{D+1}, v{D+3}')
        A(f'v_pk_add_f32 v[{D}:{D+1}], v[{D}:{D+1}], v[{D+2}:{D+3}]\nv_cvt_pk_bf16_f32 v{D}, v{D}, v{D+1}')
        A(f'buffer_store_dword v{D}, v{vH2st}, s[4:7], s{sH2c} offen {st}')
        stamp(11)
        def c():
            A(f'{p1}:')
            h1loads(hd)
            A(f's_add_u32 s{sPoll}, s{sPoll}, 1\ns_add_u32 s{sSt+13}, s{sSt+13}, 1\ns_cmp_gt_u32 s{sPoll}, {POLLMAX}\ns_cbranch_scc1 {fail}')
            rbody(hd); A(f's_cbranch_vccz {ok}\ns_branch {p1}')
        cold.append(c)
    def book():
        for j in range(2): ldsop(lds_qk[j],stg[j])
        A(f"""
s_add_u32 s{sH2ld}, s{sH2c}, s{sW3k}
s_add_u32 s{sT3}, s{sH2c}, s{sLate}
s_xor_b32 s{sTag}, s{sTag}, 1
s_mov_b32 s{sT1}, s{sH2p}
s_mov_b32 s{sH2p}, s{sH2n}
s_mov_b32 s{sH2n}, s{sH2c}
s_mov_b32 s{sH2c}, s{sT1}
s_add_u32 s{sKVc}, s{sKn}, 8192
s_add_u32 s{sKn}, s{sKn}, {0 if 'samekv' in X else 32*16384}
s_add_u32 s{sPf}, s{sPf}, {32*16384}
s_add_u32 s{sKMo}, s{sKMo}, {32*2048}
s_add_u32 s{sVMo}, s{sVMo}, {32*4096}
s_add_u32 s{sStep}, s{sStep}, 1
s_mov_b32 s{sPoll}, 0
""")
    def l_load(): A(f'buffer_load_dwordx4 {q4(late)}, v{vL16}, s[4:7], s{sT3} offen sc1')
    def gather(ne,g,dl):
        p2=A.label('P2'); sec=A.label('P2S')
        regs=[VX,VX+4][:ne]; ck=T(16)
        def e_loads():
            for j in range(ne): A(f'buffer_load_dwordx4 {q4(regs[j])}, v{vL16}, s[4:7], s{sH2ld} offen offset:{2048*j} sc1')
        def body(tgt,nw):
            x=' ;nw' if nw is not None else ''
            for j,r in enumerate(regs):
                if nw is not None: A(f's_waitcnt vmcnt({nw+ne-1-j})')
                if j==0: A(f'v_max3_u32 v{ck}, v{r}, v{r+1}, v{r+2}{x}\nv_max_u32 v{ck}, v{ck}, v{r+3}{x}')
                else: A(f'v_max3_u32 v{ck}, v{ck}, v{r}, v{r+1}{x}\nv_max3_u32 v{ck}, v{ck}, v{r+2}, v{r+3}{x}')
                if j<ne-1: A(f'ds_write_b128 v{vMw}, {q4(r)} offset:{L_M+2048*j}{x}')
            A(f'v_cmp_eq_u32 vcc, -1, v{ck}\ns_cbranch_vccnz {tgt}')
            A(f'ds_write_b128 v{vMw}, {q4(regs[ne-1])} offset:{L_M+2048*(ne-1)}{x}')
            stamp(8)
            A(f's_branch {barA}')
        e_loads(); delay(g); e_loads(); delay(dl); l_load(); body(sec,ne+1)
        def c():
            A(f'{sec}:\ns_add_u32 s{sSt+9}, s{sSt+9}, 1'); body(p2,1)
            A(f'{p2}:')
            e_loads(); l_load()
            A(f's_add_u32 s{sPoll}, s{sPoll}, 1\ns_add_u32 s{sSt+14}, s{sSt+14}, 1\ns_cmp_gt_u32 s{sPoll}, {POLLMAX}\ns_cbranch_scc1 {fail}')
            body(p2,None)
        cold.append(c)
    W1,W2,W3,W2n=[A.label(x) for x in ('W1','W2','W3','W2X')]
    def setml(): A(f's_mov_b32 s{sPoll}, 0')
    A(f's_cbranch_scc1 {W3}')
    sp=A.label('SPIN'); go=A.label('GO')
    def pchk(tgt,ready):
        A(f'v_cmp_gt_u32 vcc, s{sStep1}, v{vP} ;nw')
        if Dl['xo']: A(f's_andn2_b64 vcc, vcc, s[{sOwn}:{sOwn+1}]\ns_cbranch_scc{0 if ready else 1} {tgt}')
        else: A(f's_cbranch_vcc{"z" if ready else "nz"} {tgt}')
    pchk(sp,False)
    delay(Dl['z0'])
    A(f'{go}:\ns_barrier'); stamp(9)
    def c():
        A(f'{sp}:\ns_mov_b32 s{sPoll}, 0\n{sp}_l:')
        for i in range(4):
            probe(); A(f's_add_u32 s{sSt+11}, s{sSt+11}, 1'); delay(Dl['sp'])
            pchk(f'{sp}_d',True)
        A(f's_add_u32 s{sPoll}, s{sPoll}, 1\ns_cmp_lt_u32 s{sPoll}, 32\ns_cbranch_scc1 {sp}_l\n{sp}_d:')
        delay(Dl['z1'])
        A(f's_branch {go}')
    cold.append(c)
    zacc(); setml()
    A(f's_add_u32 s{sT1}, s{sStep}, 3\ns_lshr_b32 s{sT1}, s{sT1}, 2\ns_add_u32 s{sT1}, s{sT1}, 1\ns_min_u32 s{sT1}, s{sT1}, 16')
    A(f'v_mov_b32 v{T(20)}, {L_W+4*WREG}\nds_read2_b32 v[{T(20)}:{T(21)}], v{T(20)} offset0:64 offset1:128')
    A(f'v_min_u32 v{T(20)}, v{T(20)}, v{T(21)}\nv_readfirstlane_b32 s{sT2}, v{T(20)}\ns_max_u32 s{sKVok}, s{sKVok}, s{sT2}')
    emit_wait_kv(A,sT1,fail,T(26))
    delay(Dl['d1']); book(); gather(1,Dl['g'],Dl['al'])
    A(f'{W3}:\ns_cmp_lg_u32 s{sW}, 0\ns_cbranch_scc1 {W2}')
    A('s_barrier'); delay(Dl['a1']); reduce(lambda: (zacc(),setml())); book(); delay(Dl['a2']); gather(2,Dl['g'],Dl['al'])
    A(f'{W2}:\ns_cmp_lg_u32 s{sW}, 2\ns_cbranch_scc1 {W1}')
    ad=T(21); hq=T(28); cq=T(20); p1=A.label('Q1'); okq=A.label('Q1K')
    A(f'v_lshrrev_b32 v{ad}, 5, v{vL16}\nv_lshlrev_b32 v{ad}, 7, v{ad}\nv_and_or_b32 v{ad}, v{vL16}, 16, v{ad}')
    def q1body():
        A(f'{M32} {q4(D)}, {q4(hq)}, {q4(sel)}, 0')
        A(f'v_bitop3_b32 v{cq}, v{hq}, v{hq+2}, s{sTag} bitop3:{f1:#x}\nv_and_b32 v{cq}, 1, v{cq}\nv_cmp_ne_u32 vcc, 0, v{cq}')
    q1ld=f'buffer_load_dwordx4 {q4(hq)}, v{ad}, s[4:7], s{sH1ld} offen sc1'
    A('s_barrier'); delay(Dl['c1']); A(q1ld); zacc(); setml(); q1body()
    A(f's_cbranch_vccnz {p1}\n{okq}:')
    A(f"""
v_pk_add_f32 v[{D}:{D+1}], v[{D}:{D+1}], v[{D+2}:{D+3}]
v_permlane32_swap_b32 v{D}, v{D+1}
v_add_f32 v{D}, v{D}, v{D+1}
v_mov_b32 v{D+1}, v{D}
v_permlane16_swap_b32 v{D}, v{D+1}
v_add_f32 v{D}, v{D}, v{D+1}
v_mov_b32 v{D+1}, v{D}
v_permlane32_swap_b32 v{D}, v{D+1}
v_cvt_pk_bf16_f32 v{D}, v{D}, v{D+1}
buffer_store_dword v{D}, v{vH2st}, s[4:7], s{sH2c} offen {st}
""")
    stamp(11)
    def c():
        A(f'{p1}:\n{q1ld}')
        A(f's_add_u32 s{sPoll}, s{sPoll}, 1\ns_add_u32 s{sSt+13}, s{sSt+13}, 1\ns_cmp_gt_u32 s{sPoll}, {POLLMAX}\ns_cbranch_scc1 {fail}')
        q1body(); A(f's_cbranch_vccz {okq}\ns_branch {p1}')
    cold.append(c)
    book(); delay(Dl['c2']); gather(2,Dl['g'],Dl['al'])
    A(f'{W1}:')
    zacc(); setml(); A('s_barrier'); delay(Dl['b1']); reduce(); book(); delay(Dl['b2']); l_load(); stamp(8); A(f's_branch {barA}')
    for c in cold: c()

def emit_chain(A, fail, end, D1=0, D2=2, stamps=(), modes=('',), X=()):
    m, qk_order, lds_qk, lds_o = operand_map()
    emit_chain_init(A, m, X)
    lp=A.label('CB'); ck=A.label('CBC')
    A(f's_mov_b32 s{sPoll}, 0\ns_branch {ck}\n{lp}:')
    status_loads(A)
    A(f"""
s_add_u32 s{sPoll}, s{sPoll}, 1
s_cmp_gt_u32 s{sPoll}, {POLLMAX}
s_cbranch_scc1 {fail}
{ck}:
v_add3_u32 v65, v65, v66, v67
v_add3_u32 v68, v68, v69, v70
v_add3_u32 v65, v65, v68, v71
v_add_u32 v65, v65, v64
v_min_u32 v{VX+2}, v{VX+2}, v{VX+3}
v_readfirstlane_b32 s{sT1}, v{VX+1}
v_readfirstlane_b32 s{sT2}, v64
v_readfirstlane_b32 s{sT3}, v65
v_readfirstlane_b32 s{sKVok}, v{VX+2}
s_cmp_lt_u32 s{sT1}, 8
s_cbranch_scc1 {lp}
s_cmp_lt_u32 s{sT2}, 32
s_cselect_b32 s{sMode}, 1, 0
s_cselect_b32 s{sT3}, s{sT3}, 256
s_cmp_lt_u32 s{sT3}, 256
s_cbranch_scc1 {lp}
s_cmp_ge_u32 s{sStep1}, 8
s_cselect_b32 s{sKVok}, s{sKVok}, 0
s_mov_b32 s{sT1}, 1
""")
    emit_wait_kv(A,sT1,fail,VX)
    A(f'buffer_load_dwordx4 {q4(KX)}, v{vKx}, s[4:7], s{sKVc} offen sc1')
    A(f'buffer_load_dwordx4 {q4(KX+4)}, v{vKx}, s[4:7], s{sKVc} offen offset:256 sc1')
    A(f's_add_u32 s{sKVc}, s{sKVc}, 8192')
    A(f's_lshl_b32 s{sOwn}, 1, s{sH}\ns_mov_b32 s{sOwn+1}, s{sOwn}')
    A(f's_mov_b32 s{sFlagM2}, s{sFlagM}\ns_mov_b32 s{sPfK}, {32*16384-8192-2048}')
    A(f's_sub_u32 s{sFlagKVd}, s{sFlagKV}, {L_C+256}\ns_cmp_eq_u32 s{sW}, 3\ns_cselect_b32 s{sKVok}, s{sKVok}, 16')
    A(f'v_mov_b32 v{VX}, {L_W+4*WREG}\nv_mov_b32 v{VX+1}, 0\nds_write2_b32 v{VX}, v{VX+1}, v{VX+1} offset0:64 offset1:128')
    for i in range(16):
        if not ('itrace' in X and 4<=i<10): A(f's_mov_b32 s{sSt+i}, 0')
    if 'rdy' in X: A('s_memrealtime s[90:91]\ns_waitcnt lgkmcnt(0)\ns_mov_b32 s99, s90\ns_mov_b32 s90, 0\ns_mov_b32 s91, 0')
    if 'initstamp' in X: A(f's_memtime s[{sSt+10}:{sSt+11}]\ns_waitcnt lgkmcnt(0)\ns_sub_u32 s{sSt+10}, s{sSt+10}, s72\ns_mov_b32 s{sSt+11}, 0')
    done=A.label('CDONE')
    trcopy='\n'.join(f's_mov_b32 s{sSt+4+i}, s{sTr+2*i}' for i in range(6))+'\n' if any(isinstance(x,tuple) and x[0]=='tr' for x in X) else ''
    if len(modes)==2:
        A(f's_cmp_lg_u32 s{sMode}, 0\ns_cbranch_scc1 CSTEP_1_prep')
    for i,st in enumerate(modes):
        emit_chain_loop(A, m, qk_order, lds_qk, lds_o, st, i, fail, done, D1, D2, list(stamps), X)
    A(f"""
{done}:
s_waitcnt lgkmcnt(0)
{trcopy}s_waitcnt vmcnt(0)
s_barrier
s_cmp_lg_u32 s{sW}, 3
s_cbranch_scc1 {end}
v_mov_b32 v{T(0)}, 0
v_mov_b32 v{T(1)}, 64
buffer_store_dword v{T(1)}, v{T(0)}, s[4:7], s{sFlagM2} offen sc1
s_branch {end}
""")
```

```python
import sys, os
sys.path.insert(0, os.path.dirname(__file__))
from asmgen import *
from common import *
import chain, workb
NAME='concat_heads__grouped_kv_mqa__memory_aug_recurrent_mem_tr__prompt'

def build(chain_kw=None, with_a=True, prof=False, XK=(), XV=(), warm=False, defer=False, pseg=63, touch=False):
    A=Asm()
    workb.PROF=prof; workb.DEFER=defer; workb.PROFSEG=pseg
    sH,sW=12,13
    A(f'''
s_cmp_ge_u32 s2, 256
s_cbranch_scc1 L_exit
s_load_dwordx2 s[66:67], s[0:1], {KA['dbg']}
s_getreg_b32 s20, hwreg(HW_REG_XCC_ID)
s_and_b32 s20, s20, 7
v_lshrrev_b32 v1, 6, v0
v_readfirstlane_b32 s{sW}, v1
s_mov_b32 s{chain.sMode}, 0
''')
    if prof: A('s_memrealtime s[96:97]\ns_memtime s[100:101]')
    if warm:
        A(f'''
s_cmp_lt_u32 s20, 4
s_cbranch_scc1 L_nowarm
s_load_dwordx2 s[24:25], s[0:1], {KA['B_Wq']}
s_load_dwordx2 s[28:29], s[0:1], {KA['B_Wk']}
s_load_dwordx2 s[32:33], s[0:1], {KA['B_Wv']}
s_sub_u32 s21, s20, 4
s_lshl_b32 s21, s21, 5
s_lshr_b32 s22, s2, 3
s_add_u32 s21, s21, s22
s_lshl_b32 s21, s21, 2
s_add_u32 s21, s21, s{sW}
s_mul_i32 s21, s21, 9216
v_and_b32 v2, 63, v0
v_lshlrev_b32 v2, 6, v2
s_mov_b32 s26, {576*8192}
s_mov_b32 s27, 0x20000
s_mov_b32 s30, {576*8192}
s_mov_b32 s31, 0x20000
s_mov_b32 s34, {576*8192}
s_mov_b32 s35, 0x20000
s_add_u32 s22, s21, 4096
s_add_u32 s23, s21, 5120
s_waitcnt lgkmcnt(0)
''')
        for i,srd in enumerate(('s[24:27]','s[28:31]','s[32:35]')):
            for j,so in enumerate((21,22,23)): A(f'buffer_load_dword v{240+3*i+j}, v2, {srd}, s{so} offen')
        A('L_nowarm:')
    if touch:
        A(f'''
s_cmp_lg_u32 s20, 0
s_cbranch_scc1 L_notouch
s_cmp_eq_u32 s{sW}, 0
s_cbranch_scc1 L_notouch
s_load_dwordx4 s[24:27], s[0:1], {KA['B_Wq']}
s_load_dwordx4 s[28:31], s[0:1], {KA['B_Wv']}
v_and_b32 v2, 63, v0
v_mul_u32_u24 v2, 24576, v2
s_add_u32 s21, s{sW}, -1
s_mul_i32 s21, s21, {64*24576}
v_add_u32 v2, s21, v2
s_waitcnt lgkmcnt(0)
global_load_dword v240, v2, s[24:25]
global_load_dword v241, v2, s[26:27]
global_load_dword v242, v2, s[28:29]
global_load_dword v243, v2, s[30:31]
L_notouch:
''')
    A(f'''
s_waitcnt lgkmcnt(0)
s_cmp_lg_u32 s{sW}, 0
s_cbranch_scc1 L_gotrole
s_mov_b64 exec, 1
s_lshl_b32 s21, s20, 2
v_mov_b32 v2, s21
v_mov_b32 v3, 1
global_atomic_add v4, v2, v3, s[66:67] sc0
v_readfirstlane_b32 s22, v4
s_cmp_lt_u32 s22, 32
s_cbranch_scc1 L_tk
v_mov_b32 v2, 0
global_atomic_add v4, v2, v3, s[66:67] offset:{D_OVF} sc0
v_readfirstlane_b32 s23, v4
s_mov_b32 s40, 0
L_ovf:
global_load_dwordx4 v[4:7], v2, s[66:67] sc1
global_load_dwordx4 v[8:11], v2, s[66:67] offset:16 sc1
s_add_u32 s40, s40, 1
s_cmp_gt_u32 s40, 400000
s_cbranch_scc1 L_norole
''')
    for i in range(8): A(f'v_readfirstlane_b32 s{24+i}, v{4+i}')
    A('s_mov_b32 s32, 0')
    for i in range(8): A(f's_add_u32 s32, s32, s{24+i}')
    A('s_cmp_lt_u32 s32, 256\ns_cbranch_scc1 L_ovf')
    for i in range(8):
        nx=f'L_ovf{i}'
        A(f'''
s_min_u32 s33, s{24+i}, 32
s_sub_u32 s34, 32, s33
s_cmp_ge_u32 s23, s34
s_cbranch_scc1 {nx}
s_mov_b32 s20, {i}
s_add_u32 s22, s33, s23
s_branch L_tk
{nx}:
s_sub_u32 s23, s23, s34
''')
    A(f'''
L_norole:
s_mov_b32 s20, 7
s_mov_b32 s22, 31
L_tk:
s_lshl_b32 s20, s20, 5
s_add_u32 s20, s20, s22
v_mov_b32 v2, 0
v_mov_b32 v3, s20
ds_write_b32 v2, v3
s_mov_b64 exec, -1
s_waitcnt lgkmcnt(0)
L_gotrole:
s_barrier
v_mov_b32 v2, 0
ds_read_b32 v3, v2
v_readfirstlane_b32 s20, v3
s_barrier
s_mov_b32 s98, s20
s_and_b32 s{sH}, s20, 31
s_cmp_lt_u32 s20, 32
s_cbranch_scc1 L_chain
s_cmp_lt_u32 s20, 64
s_cbranch_scc1 L_k
s_cmp_lt_u32 s20, 96
s_cbranch_scc1 L_v
s_cmp_lt_u32 s20, 128
s_cbranch_scc1 L_q
''')
    A(f'''
s_sub_u32 s{sH}, s20, 128
s_cmp_lt_u32 s20, 164
s_cbranch_scc1 L_op
s_sub_u32 s{sH}, s20, 164
s_cmp_lt_u32 s20, 228
s_cbranch_scc1 L_a
s_sub_u32 s{sH}, s20, 228
s_cmp_lt_u32 s20, 236
s_cbranch_scc1 L_fi
s_branch L_end
''')
    A('L_fi:'); workb.emit_flaginit(A,'L_end')
    A('L_k:'); workb.emit_proj(A,'K','L_fail','L_end',XK)
    A('L_v:'); workb.emit_proj(A,'V','L_fail','L_end',XV)
    A('L_q:'); workb.emit_proj(A,'Q','L_fail','L_end')
    A('L_op:'); workb.emit_outproj(A,'L_fail','L_end')
    A('L_a:')
    if with_a:
        import worka
        worka.emit_a(A,'L_fail','L_end')
    else: A('s_branch L_end')
    A('L_chain:')
    kw=dict(modes=('','sc1'),X=('rdy',) if prof else ()); kw.update(chain_kw or {})
    chain.emit_chain(A,'L_fail','L_end',**kw)
    A('L_fail:\nL_end:')
    if prof:
        A(f'''
s_memrealtime s[94:95]
s_memtime s[92:93]
s_load_dwordx2 s[4:5], s[0:1], {KA['ws']}
s_mov_b64 exec, 1
s_waitcnt lgkmcnt(0)
s_lshl_b32 s98, s98, 2
s_add_u32 s98, s98, s{sW}
s_lshl_b32 s98, s98, 4
s_sub_u32 s92, s92, s100
s_add_u32 s98, s98, 0x8000000
v_mov_b32 v0, s98
v_mov_b32 v2, s96
v_mov_b32 v3, s94
v_mov_b32 v4, s92
v_mov_b32 v5, s99
global_store_dwordx4 v0, v[2:5], s[4:5]
''')
    A('L_exit:\ns_endpgm')
    body=A.finalize()
    hdr=open(os.path.join(os.path.dirname(__file__),'..','cdna_kernels',NAME+'.s.ref')).read().split('; Override launch')[0]
    txt=hdr+f'''; One persistent launch: 256 workgroups, one per CU, roles chosen at run time (see gen/ comments in the body).
; @launch grid=(256,1,1) block=(256,1,1) lds=163840
.amdgcn_target "amdgcn-amd-amdhsa--gfx950"
.text
.globl {NAME}_kernel
.p2align 8
.type {NAME}_kernel,@function
{NAME}_kernel:
{body}
.section .rodata,"a"
.p2align 6
.amdhsa_kernel {NAME}_kernel
  .amdhsa_next_free_vgpr 512
  .amdhsa_next_free_sgpr 102
  .amdhsa_accum_offset 256
  .amdhsa_group_segment_fixed_size 0
  .amdhsa_kernarg_size 120
  .amdhsa_user_sgpr_count 2
  .amdhsa_user_sgpr_kernarg_segment_ptr 1
  .amdhsa_system_sgpr_workgroup_id_x 1
.end_amdhsa_kernel
'''
    return txt, A.stats

if __name__=='__main__':
    txt,st=build(with_a=os.path.exists(os.path.join(os.path.dirname(__file__),'worka.py')))
    out=sys.argv[1] if len(sys.argv)>1 else os.path.join(os.path.dirname(__file__),'..','cdna_kernels',NAME+'.s')
    open(out,'w').write(txt); print(st, len(txt))
```

```python
import re

def regs_of(tok):
    tok = tok.strip()
    neg = tok.lstrip('-')
    if neg.startswith('abs(') : neg = neg[4:-1]
    if neg.startswith('|'): neg = neg.strip('|')
    tok = neg
    m = re.fullmatch(r'([vas])(\d+)', tok)
    if m: return [(m.group(1), int(m.group(2)))]
    m = re.fullmatch(r'([vas])\[(\d+):(\d+)\]', tok)
    if m: return [(m.group(1), i) for i in range(int(m.group(2)), int(m.group(3))+1)]
    if tok == 'vcc': return [('s','vcc_lo'),('s','vcc_hi')]
    if tok in ('vcc_lo','vcc_hi'): return [('s',tok)]
    if tok == 'exec': return [('s','exec_lo'),('s','exec_hi')]
    if tok in ('exec_lo','exec_hi'): return [('s',tok)]
    if tok == 'm0': return [('s','m0')]
    return []

TRANS = ('v_exp_f32','v_log_f32','v_rcp_f32','v_rsq_f32','v_sqrt_f32','v_sin_f32','v_cos_f32','v_rcp_iflag_f32')

class Ins:
    __slots__=('text','op','ops','mods','kind','w','r','passes','srcC','srcAB','pre','isdpp','vm','lgkm','wide','lds_dma','tgt','uid', 'nowait')
    def __init__(self, text):
        self.text = text
        t = text.split(';')[0].strip()
        parts = t.split(None,1)
        self.op = op = parts[0]
        rest = parts[1] if len(parts)>1 else ''
        toks = [x.strip() for x in re.split(r',(?![^\[\(]*[\]\)])', rest)] if rest else []
        mods = ''
        if toks:
            lt = toks[-1].split(None,1)
            if not toks[-1].startswith('hwreg') and len(lt)>1 and not op.startswith('s_waitcnt'):
                toks[-1] = lt[0]; mods = lt[1]
        self.ops = toks; self.mods = mods
        self.w=[]; self.r=[]; self.passes=0; self.srcC=[]; self.srcAB=[]; self.pre=[]; self.isdpp = ('_dpp' in op) or ('row_' in mods) or ('quad_perm' in mods)
        self.vm=False; self.lgkm=None; self.wide=False; self.lds_dma=False; self.tgt=None; self.nowait=(';nw' in text)
        R = lambda i: regs_of(toks[i]) if i < len(toks) else []
        base = re.sub(r'_(e32|e64|dpp|sdwa)$','',op)
        if op.startswith('v_mfma'):
            self.kind='mfma'; self.w=R(0); self.srcAB=R(1)+R(2); self.srcC=R(3); self.r=self.srcAB+self.srcC
            self.passes = 8 if '32x32' in op else 4
        elif op.startswith('v_smfmac'):
            self.kind='mfma'; self.w=R(0); self.srcAB=R(1)+R(2)+R(3); self.srcC=R(0); self.r=self.srcAB+self.srcC
            self.passes = 8 if '32x32' in op else 4
        elif op.startswith('v_'):
            self.kind='valu'
            if base.startswith('v_cmpx'):
                raise Exception('v_cmpx not supported: '+text)
            if base.startswith('v_permlane') and 'swap' in base:
                self.w=R(0)+R(1); self.r=R(0)+R(1)
            elif base in ('v_add_co_u32','v_sub_co_u32','v_subrev_co_u32'):
                self.w=R(0)+R(1); self.r=R(2)+R(3)
            elif base in ('v_addc_co_u32','v_subb_co_u32'):
                self.w=R(0)+R(1); self.r=R(2)+R(3)+R(4)
            elif base=='v_nop':
                pass
            else:
                self.w=R(0)
                for i in range(1,len(toks)): self.r+=R(i)
                if base in ('v_fmac_f32','v_dot2c_f32_bf16','v_writelane_b32','v_pk_fmac_f16') or self.isdpp:
                    self.r+=R(0)
                if base=='v_cndmask_b32' and len(toks)==3: self.r+=regs_of('vcc')
        elif op.startswith('ds_'):
            self.kind='ds'; self.lgkm='ds'
            if op.startswith('ds_read') or op.startswith('ds_bpermute') or op.startswith('ds_permute') or op.startswith('ds_swizzle') or '_rtn' in op:
                self.w=R(0)
                for i in range(1,len(toks)): self.r+=R(i)
            else:
                for i in range(len(toks)): self.r+=R(i)
        elif op.startswith('buffer_') or op.startswith('global_'):
            self.kind='vmem'; self.vm=True
            ms = mods.split()
            if op.startswith('buffer_wbl2') or op.startswith('buffer_inv'):
                pass
            elif 'lds' in ms or op.startswith('global_load_lds'):
                self.lds_dma=True
                for i in range(len(toks)): self.r+=R(i)
                self.r+=[('s','m0')]
            elif '_load' in op:
                self.w=R(0)
                for i in range(1,len(toks)): self.r+=R(i)
                if 'd16' in op: self.r+=R(0)
            elif '_atomic' in op:
                for i in range(len(toks)): self.r+=R(i)
                if 'sc0' in ms:
                    if op.startswith('buffer_'): self.w=R(0)[:1] if 'cmpswap' in op else R(0)
                    else:
                        self.w=R(0); self.r=[]
                        for i in range(1,len(toks)): self.r+=R(i)
            else:
                for i in range(len(toks)): self.r+=R(i)
                if 'x4' in op or 'x3' in op:
                    self.wide = R(0) if op.startswith('buffer_') else R(1)
        elif op.startswith('s_'):
            self.kind='salu'
            if op.startswith('s_load') or op.startswith('s_buffer_load') or op in ('s_memtime','s_memrealtime') or op.startswith('s_atomic'):
                self.kind='smem'; self.lgkm='smem'; self.w=R(0)
                for i in range(1,len(toks)): self.r+=R(i)
            elif op.startswith('s_cbranch') or op=='s_branch':
                self.kind='branch'; self.tgt=toks[0]
                if 'vcc' in op: self.r=regs_of('vcc')
            elif op in ('s_waitcnt','s_nop','s_barrier','s_endpgm','s_sleep','s_setprio','s_sethalt'):
                self.kind=op
            elif op.startswith('s_cmp') or op.startswith('s_bitcmp'):
                for i in range(len(toks)): self.r+=R(i)
            elif 'saveexec' in op:
                self.w=R(0)+regs_of('exec'); self.r=R(1)+regs_of('exec')
            else:
                self.w=R(0)
                for i in range(1,len(toks)): self.r+=R(i)
                if op in ('s_addk_i32','s_mulk_i32','s_cmov_b32','s_cmov_b64','s_bitset1_b32','s_bitset0_b32'): self.r+=R(0)
        else:
            raise Exception('unknown op: '+text)
    def states(self):
        if self.op=='s_nop': return int(self.ops[0],0)+1
        return 1

class Label:
    def __init__(self,name): self.name=name
class Raw:
    def __init__(self,text): self.text=text

CAP=24
class State:
    def __init__(self):
        self.h={}
        self.vm={}
        self.lg={}
        self.smem=False
    def copy(self):
        s=State(); s.h=dict(self.h); s.vm=dict(self.vm); s.lg=dict(self.lg); s.smem=self.smem; return s
    def merge(self,o):
        ch=False
        for a,b in ((self.h,o.h),(self.vm,o.vm),(self.lg,o.lg)):
            for k,v in b.items():
                if k not in a or v<a[k]: a[k]=v; ch=True
        if o.smem and not self.smem: self.smem=True; ch=True
        return ch

def isv(r): return r[0] in 'va'

def need_nops(ins, st):
    need=0
    h=st.h
    def req(cls, regs, n):
        nonlocal need
        for r in regs:
            d=h.get((cls,r))
            if d is not None and n-d>need: need=n-d
    k=ins.kind
    vr=[r for r in ins.r if isv(r)]; vw=[r for r in ins.w if isv(r)]
    sr=[r for r in ins.r if r[0]=='s']
    if k=='mfma':
        req('valu_w', vr, 2)
        for p,n in ((4,8),(8,12)):
            req(('xdl',p), ins.srcAB, n)
        C=tuple(ins.srcC)
        for p,n in ((4,6),(8,10)):
            for r in ins.srcC:
                d=h.get((('xdl',p),r))
                if d is not None:
                    same = h.get((('xdlD',p,C),r))
                    if same is not None and same<=d and p==ins.passes: continue
                    if n-d>need: need=n-d
            for r in ins.w:
                if r in ins.srcC: continue
                d=h.get((('xdl',p),r))
                if d is not None and n-d>need: need=n-d
    elif k=='valu':
        for p,n in ((4,8),(8,12)): req(('xdl',p), vr+vw, n)
        for p,n in ((4,3),(8,7)): req(('xdlC',p), vw, n)
        base=re.sub(r'_(e32|e64|dpp|sdwa)$','',ins.op)
        if base.startswith('v_permlane') or ins.isdpp: req('valu_w', vr, 2)
        if base in ('v_readlane_b32','v_readfirstlane_b32'): req('valu_w', vr, 1)
        if base in ('v_readlane_b32','v_writelane_b32'): req('valu_s', sr, 4)
        if base not in TRANS: req('trans', vr, 1)
        req('valu_s', sr, 2)
        req('wide', vw, 2)
    elif k in ('vmem','ds'):
        for p,n in ((4,8),(8,12)): req(('xdl',p), vr+vw, n)
        if k=='vmem': req('valu_s', sr, 5)
        if ins.lds_dma: req('salu_m0', [('s','m0')], 1)
        req('wide', vw, 1)
        req('trans', vr, 1)
    elif k in ('salu','branch','smem'):
        req('valu_s', sr, 1 if k!='branch' else 0)
    return need

def need_waits(ins, st):
    touched = ins.r+ins.w
    vm=None; lg=None
    for r in touched:
        if r in st.vm:
            if ins.kind=='vmem' and r in ins.w and r not in ins.r: continue
            vm = st.vm[r] if vm is None else min(vm, st.vm[r])
        if r in st.lg:
            if ins.kind=='ds' and r in ins.w and r not in ins.r and not st.smem: continue
            n = 0 if st.smem else st.lg[r]
            lg = n if lg is None else min(lg,n)
    if ins.nowait: vm=None
    if vm is not None: vm=min(vm,63)
    if lg is not None: lg=min(lg,15)
    return vm,lg

def apply_wait(st, vm, lg):
    if vm is not None:
        st.vm={r:n for r,n in st.vm.items() if n<vm}
    if lg is not None:
        if lg==0: st.lg={}; st.smem=False
        elif not st.smem: st.lg={r:n for r,n in st.lg.items() if n<lg}

def advance(st, n):
    st.h={k:v+n for k,v in st.h.items() if v+n<CAP}

def step(ins, st):
    if ins.op=='s_waitcnt':
        t=ins.text.split(';')[0]
        m=re.search(r'vmcnt\((\d+)\)',t); vm=int(m.group(1)) if m else None
        m=re.search(r'lgkmcnt\((\d+)\)',t); lg=int(m.group(1)) if m else None
        apply_wait(st,vm,lg)
    advance(st, ins.states())
    h=st.h
    if ins.kind=='valu':
        base=re.sub(r'_(e32|e64|dpp|sdwa)$','',ins.op)
        for r in ins.w:
            if isv(r):
                h[('valu_w',r)]=0
                if base in TRANS: h[('trans',r)]=0
            else: h[('valu_s',r)]=0
    elif ins.kind=='mfma':
        D=tuple(ins.w)
        for r in ins.w:
            h[(('xdl',ins.passes),r)]=0; h[(('xdlD',ins.passes,D),r)]=0
        for r in ins.srcC: h[(('xdlC',ins.passes),r)]=0
    elif ins.kind=='salu':
        if ('s','m0') in ins.w: h[('salu_m0',('s','m0'))]=0
    if ins.wide:
        for r in ins.wide: h[('wide',r)]=0
    if ins.vm:
        for r in st.vm: st.vm[r]+=1
        for r in ins.w: st.vm[r]=0
    if ins.lgkm:
        for r in st.lg: st.lg[r]+=1
        for r in ins.w: st.lg[r]=0
        if ins.lgkm=='smem': st.smem=True

class Asm:
    def __init__(self):
        self.items=[]; self.nl=0
    def __call__(self, text):
        for line in text.split('\n'):
            s=line.strip()
            if not s or s.startswith(';'): continue
            if s.endswith(':'): self.items.append(Label(s[:-1]))
            elif s.startswith('.'): self.items.append(Raw(s))
            else: self.items.append(Ins(s))
    def label(self, base='L'):
        self.nl+=1; return f'{base}_{self.nl}'
    def finalize(self):
        items=self.items
        starts=[0]
        for i,it in enumerate(items):
            if isinstance(it,Label): starts.append(i)
            elif isinstance(it,Ins) and (it.kind=='branch' or it.op=='s_endpgm'): starts.append(i+1)
        starts=sorted(set(s for s in starts if s<len(items)))
        blocks=[(s, starts[j+1] if j+1<len(starts) else len(items)) for j,s in enumerate(starts)]
        lab={}
        for j,(s,e) in enumerate(blocks):
            k=s
            while k<e and not isinstance(items[k],Ins):
                if isinstance(items[k],Label): lab[items[k].name]=j
                k+=1
        succ=[]
        for j,(s,e) in enumerate(blocks):
            last=None
            for k in range(e-1,s-1,-1):
                if isinstance(items[k],Ins): last=items[k]; break
            sc=[]
            if last is not None and last.kind=='branch':
                if last.tgt not in lab: raise Exception('unknown label '+last.tgt)
                sc.append(lab[last.tgt])
                if last.op!='s_branch' and j+1<len(blocks): sc.append(j+1)
            elif last is not None and last.op=='s_endpgm': pass
            elif j+1<len(blocks): sc.append(j+1)
            succ.append(sc)
        pre={}
        LAT=getattr(self,'merge_lat',0); recent={}
        if LAT:
            t=0; dsq=[]
            for k,it in enumerate(items):
                if not isinstance(it,Ins): continue
                recent[k]=sum(1 for x in dsq[-16:] if x>t-LAT)
                if it.lgkm: dsq.append(t)
                if it.op in ('s_branch','s_endpgm'): dsq=[t+10**6]*16
                t+= (4*it.passes if it.kind=='mfma' else 4*it.states())
        for outer in range(50):
            changed_pre=False
            inn=[None]*len(blocks); inn[0]=State()
            work=[0]
            while work:
                j=work.pop()
                st=inn[j].copy()
                s,e=blocks[j]
                for k in range(s,e):
                    it=items[k]
                    if not isinstance(it,Ins): continue
                    p=pre.setdefault(k,[0,None,None])
                    vm,lg=need_waits(it,st)
                    if vm is not None and (p[1] is None or vm<p[1]): p[1]=vm; changed_pre=True
                    if lg is not None and LAT and k>=getattr(self,'merge_from',0): lg=min(lg,recent[k])
                    if lg is not None and (p[2] is None or lg<p[2]): p[2]=lg; changed_pre=True
                    if p[1] is not None or p[2] is not None:
                        apply_wait(st,p[1],p[2]); advance(st,1)
                    n=need_nops(it,st)
                    if n>p[0]: p[0]=n; changed_pre=True
                    if p[0]: advance(st,p[0])
                    step(it,st)
                for t in succ[j]:
                    if inn[t] is None: inn[t]=st.copy(); work.append(t)
                    elif inn[t].merge(st): work.append(t)
            if not changed_pre: break
        out=[]; self.stats={'nops':0,'waits':0,'ins':0}
        for k,it in enumerate(items):
            if isinstance(it,Label): out.append(it.name+':')
            elif isinstance(it,Raw): out.append(it.text)
            else:
                p=pre.get(k,[0,None,None])
                if p[1] is not None or p[2] is not None:
                    w='s_waitcnt'
                    if p[1] is not None: w+=f' vmcnt({p[1]})'
                    if p[2] is not None: w+=f' lgkmcnt({p[2]})'
                    out.append('  '+w); self.stats['waits']+=1
                n=p[0]
                while n>0:
                    c=min(n,16); out.append(f'  s_nop {c-1}'); n-=c; self.stats['nops']+=1
                out.append('  '+it.text); self.stats['ins']+=1
        if getattr(self,'align',0): out=align8(out,self.align,getattr(self,'align_range',None))
        return '\n'.join(out)

def vr(b,n=1,f='v'):
    return f'{f}{b}' if n==1 else f'{f}[{b}:{b+n-1}]'

import subprocess, tempfile, os
_SZ={}
def _sizes(lines):
    todo=[]
    def key(l):
        t=l.split(';')[0].strip()
        if t.startswith('s_cbranch') or t.startswith('s_branch'): return t.split()[0]+' 0'
        return t
    for l in lines:
        k=key(l)
        if k not in _SZ and k not in todo: todo.append(k)
    if todo:
        with tempfile.TemporaryDirectory() as d:
            open(d+'/a.s','w').write('.amdgcn_target "amdgcn-amd-amdhsa--gfx950"\n.text\n'+'\n'.join(todo)+'\n')
            r=subprocess.run(['llvm-mc','-triple=amdgcn-amd-amdhsa','-mcpu=gfx950','-show-encoding',d+'/a.s'],capture_output=True,text=True)
            enc=re.findall(r'encoding: \[([^\]]*)\]',r.stdout)
            assert len(enc)==len(todo),(len(enc),len(todo),r.stderr[:500])
            for k,e in zip(todo,enc): _SZ[k]=len(e.split(','))
    return [_SZ[key(l)] for l in lines]

PROMO=('v_mov_b32','v_exp_f32','v_rcp_f32','v_add_f32','v_sub_f32','v_mul_f32','v_max_f32','v_max_u32','v_min_u32','v_and_b32','v_xor_b32','v_or_b32','v_lshlrev_b32','v_lshrrev_b32','v_add_u32','v_permlane32_swap_b32','v_permlane16_swap_b32','v_cmp_eq_u32','v_cmp_ne_u32','v_cmp_gt_u32','v_cmp_neq_f32','v_accvgpr_read_b32x')
def align8(out, mode, rng=None):
    isins=lambda l: l.startswith('  ')
    idx=[i for i,l in enumerate(out) if isins(l)]
    sz=dict(zip(idx,_sizes([out[i] for i in idx])))
    res=[]; par=0; run=[]; active=rng is None; lastm=False
    for i,l in enumerate(out):
        if not isins(l):
            if l.startswith('.p2align'): par=0; run=[]
            if rng and l.rstrip(':').startswith(rng[0]): active=True
            if rng and l.rstrip(':').startswith(rng[1]): active=False
            res.append(l); continue
        n=sz[i]
        if n%8==0 and par and active:
            c=[j for j in run if res[j].split()[0] in PROMO]
            if c:
                j=c[-1]; p=res[j].split(None,1); res[j]='  '+p[0]+'_e64 '+p[1]; par=0
            elif mode>=2 and (mode==3 or prevm):
                res.insert(run[0] if run else len(res),'  s_nop 0'); par=0
        if n%8==0:
            run=[]; prevm=('mfma' in l) or (l.split()[0].startswith('ds_read') and lastm); lastm='mfma' in l
        else:
            run.append(len(res)); par^=1
        res.append(l)
    return res
```

```python
from asmgen import *
from common import *
import math, struct

L_M  = 0
L_O  = 8192
L_QK = 10240
L_MX = L_QK+4096
L_C  = L_MX+1024
L_W  = L_C+64
WREG = 36864
assert L_W+4*WREG<=163840

vL16,vIdx,vS16,vS16b,vWl,vYw,vOw,vOr,vMw,vH1st,vH1s1,vH2st,vKx,vMl_,vSel,vCon = range(16)
vPfa = vOr
KX = 16
VX = 24
T = lambda i: 32+i
sH,sW,sStep,sU = 12,13,14,15
sTag,sH1ld,sKVc = 16,17,18
sH2c,sH2n,sH2p = 19,20,21
sKn,sKMo,sVMo = 24,25,26
sScale = 27
sMask = 28
sT0,sT1,sT2,sT3 = 36,37,38,39
sPoll = 40
sH2ld = 41
sFlagM = 42
sFlagKV = 43
sKVok = 44
sH2pz = 45
sHi = 46
sW3k = 48
s32k = 49
sMode = 50
sW256 = 52
sStep1 = 53
sPrb = 54
sFlg = 55
sLate = 22
sSc2 = 70
sLo20 = 69
sHi20 = 23
sPf = 27
sFlagKVd = 68
sPfK = 42
sFlagM2 = 8
sOwn = 10
sG2 = 2
sWm = 56
sWbm = 9
sVMp = 64
sPz = 65
sNeed = 62
sFlg1 = 60
sPrb1 = 61
sFlagMw = 51
sTr = 56
sSt = 80
POLLMAX=200000

TORD=[0,2,4,6,8,1,3,5,7]
QKV=[[1,3,7,11,14,18,22,25,28,32],[0,4,8,12,16,20,22,26,28,32],[0,2,6,8,12,16,20,24,28,32],[0,4,8,12,16,18,22,24,28,32]]
QPDEF=1
QKPOS=QKV[0]; QKBUF=[0,1]*5
def operand_map():
    qk_order=[]
    for t in TORD:
        qk_order += [('q',t,0),('q',t,1),('k',t,0),('k',t,1)]
    lds_qk = [qk_order[n] for n in QKPOS]
    lds_o = [('o',0,2),('o',0,3),('o',2,0),('o',3,0),('o',3,1),('o',1,2),('o',1,3),('o',3,3)]
    m={}
    li=0
    for op in lds_o+lds_qk:
        m[op]=('l',li); li+=1
    rest=[op for op in qk_order if op not in m]
    rest+=[('v',t,c) for t in range(9) for c in range(2)]
    rest+=[('o',k,P) for k in range(4) for P in range(4) if ('o',k,P) not in m]
    rest+=[('s',0),('s',1)]
    regs=[('v',80+8*i) for i in range(22)]+[('a',8*i) for i in range(32)]
    assert len(rest)==len(regs)==54
    for op,r in zip(rest,regs): m[op]=r
    return m, qk_order, lds_qk, lds_o

def R(loc,off=0,n=8):
    return vr(loc[1]+off,n,loc[0])
def q4(b): return f'v[{b}:{b+3}]'

def status_loads(A):
    A(f"""
v_mov_b32 v{VX}, 0
global_load_dwordx4 v[64:67], v{VX}, s[66:67] offset:{D_TICK} sc1
global_load_dwordx4 v[68:71], v{VX}, s[66:67] offset:{D_TICK+16} sc1
global_load_dword v{VX+1}, v{VX}, s[66:67] offset:{D_INIT} sc1
buffer_load_dword v{VX+2}, v{VX}, s[4:7], s{sFlagKV} offen sc1
buffer_load_dword v{VX+3}, v{VX}, s[4:7], s{sFlagKV} offen offset:256 sc1
""")

def emit_chain_init(A, m, X=()):
    l,n,g,n7,n8,g1,g2,r4,cc=['v%d'%i for i in range(32,41)]
    t0,t1,t2='v41','v42','v43'
    A(f"""
s_load_dwordx2 s[4:5], s[0:1], {KA['ws']}
s_load_dwordx2 s[56:57], s[0:1], {KA['B_Wq']}
s_load_dwordx2 s[58:59], s[0:1], {KA['B_Wk']}
s_load_dwordx2 s[60:61], s[0:1], {KA['B_Wv']}
s_load_dwordx2 s[62:63], s[0:1], {KA['B_Wo']}
s_load_dwordx2 s[64:65], s[0:1], {KA['B_mem0']}
s_load_dwordx2 s[66:67], s[0:1], {KA['dbg']}
v_and_b32 {l}, 63, v0
v_and_b32 {n}, 15, {l}
v_lshrrev_b32 {g}, 4, {l}
v_lshlrev_b32 v{vL16}, 4, {l}
v_and_b32 {n7}, 7, {n}
v_lshrrev_b32 {n8}, 3, {n}
v_and_b32 {g1}, 1, {g}
v_lshrrev_b32 {g2}, 1, {g}
v_lshrrev_b32 {r4}, 2, {n}
v_and_b32 {cc}, 3, {n}
v_mov_b32 {t0}, 0x4444
v_mov_b32 {t1}, 0xeeee
v_cmp_eq_u32 s[{sHi}:{sHi+1}], 1, {n8}
v_cndmask_b32 v{vIdx}, {t0}, {t1}, s[{sHi}:{sHi+1}]
s_mul_i32 s{sT0}, s{sW}, {WREG}
s_add_u32 s{sT0}, s{sT0}, {L_W}
v_add_u32 v{vWl}, s{sT0}, v{vL16}
s_lshl_b32 s{sT1}, s{sW}, 10
v_add_u32 v{vYw}, s{sT1}, v{vL16}
v_lshlrev_b32 {t0}, 7, {g}
v_lshl_add_u32 {t0}, {n7}, 4, {t0}
v_bfe_u32 v{vOr}, v{vL16}, 2, 7
s_lshl_b32 s{sT1}, s{sW}, 9
v_add_u32 v{vOw}, s{sT1}, {t0}
s_lshl_b32 s{sW256}, s{sW}, 2
s_lshl_b32 s{sW3k}, s{sW}, 10
s_cmp_eq_u32 s{sW}, 2
s_cselect_b32 s{sW3k}, 6144, s{sW3k}
s_cmp_eq_u32 s{sW}, 3
s_cselect_b32 s{sW3k}, 4096, s{sW3k}
v_add_u32 v{vMw}, s{sW3k}, v{vL16}
; vH1st = (16w + l/8)*4096 + h*128 + (l%8)*16
v_lshrrev_b32 {t0}, 3, {l}
v_lshlrev_b32 {t0}, 12, {t0}
v_lshl_add_u32 {t0}, {n7}, 4, {t0}
s_lshl_b32 s{sT1}, s{sW}, 16
s_lshl_b32 s{sT2}, s{sH}, 7
s_add_u32 s{sT1}, s{sT1}, s{sT2}
v_add_u32 v{vH1st}, s{sT1}, {t0}
; vH1s1 = (64 + 2w + n8)*4096 + h*128 + n7*16 + g1*8
v_lshlrev_b32 {t0}, 12, {n8}
v_lshl_add_u32 {t0}, {n7}, 4, {t0}
v_lshl_add_u32 {t0}, {g1}, 3, {t0}
s_lshl_b32 s{sT1}, s{sW}, 13
s_add_u32 s{sT1}, s{sT1}, s{sT2}
s_add_u32 s{sT1}, s{sT1}, {64*4096}
v_add_u32 v{vH1s1}, s{sT1}, {t0}
s_lshr_b32 s{sU}, s{sH}, 3
s_lshl_b32 s{sU}, s{sU}, 4
s_and_b32 s{sT1}, s{sH}, 7
s_add_u32 s{sU}, s{sU}, s{sT1}
s_lshl_b32 s{sT1}, s{sW}, 3
s_add_u32 s{sU}, s{sU}, s{sT1}
s_add_u32 s{sT1}, s{sH}, 64
s_cmp_eq_u32 s{sW}, 2
s_cselect_b32 s{sU}, s{sT1}, s{sU}
s_cmp_eq_u32 s{sW}, 3
s_cselect_b32 s{sU}, 72, s{sU}
v_lshlrev_b32 {t0}, 4, {n7}
v_lshl_add_u32 {t0}, {g1}, 3, {t0}
v_lshl_add_u32 {t0}, {g2}, 2, {t0}
s_lshl_b32 s{sT1}, s{sU}, 7
v_add_u32 v{vH2st}, s{sT1}, {t0}
s_lshr_b32 s{sT1}, s{sH}, 2
s_add_u32 s{sT1}, s{sT1}, 64
s_lshl_b32 s{sT1}, s{sT1}, 7
s_and_b32 s{sT2}, s{sH}, 3
s_lshl_b32 s{sT2}, s{sT2}, 2
s_add_u32 s{sT1}, s{sT1}, s{sT2}
v_lshlrev_b32 {t0}, 4, {n7}
v_add_u32 {t0}, s{sT1}, {t0}
s_cmp_eq_u32 s{sW}, 2
s_cselect_b64 vcc, -1, 0
v_cndmask_b32 v{vH2st}, v{vH2st}, {t0}, vcc
s_lshl_b32 s{sT1}, s{sW}, 11
v_lshlrev_b32 {t0}, 9, {g}
v_add_u32 {t0}, s{sT1}, {t0}
v_lshl_add_u32 {t1}, {n}, 4, {t0}
v_mov_b32 v{vKx}, {t1}
v_add_u32 v{vMl_}, s{sT1}, v{vL16}
; selector value + masks
v_mov_b32 {t0}, 0x3f80
v_mov_b32 {t1}, 0x3f800000
v_and_b32 {t2}, 1, {n}
v_cmp_eq_u32 vcc, 0, {t2}
v_cndmask_b32 v{vSel}, {t1}, {t0}, vcc
v_lshrrev_b32 {t2}, 1, {n7}
v_cmp_eq_u32 s[{sMask}:{sMask+1}], 0, {t2}
v_cmp_eq_u32 s[{sMask+2}:{sMask+3}], 1, {t2}
v_cmp_eq_u32 s[{sMask+4}:{sMask+5}], 2, {t2}
v_cmp_eq_u32 s[{sMask+6}:{sMask+7}], 3, {t2}
v_mov_b32 v{vCon}, {L_C}
v_lshlrev_b32 {t0}, 1, {g1}
v_cmp_eq_u32 vcc, {t0}, {t2}
v_cndmask_b32 v{vS16}, 0, v{vSel}, vcc
v_add_u32 {t0}, 1, {t0}
v_cmp_eq_u32 vcc, {t0}, {t2}
v_cndmask_b32 v{vS16b}, 0, v{vSel}, vcc
; init-only address regs: v16 dma voffset qkv ; v17..v19 tr bases ; v20,v21 mem0 ; v71..v79 Wo dma voffsets
v_lshlrev_b32 {t0}, 1, {g1}
v_xor_b32 {t0}, {t0}, {n}
v_lshlrev_b32 {t0}, 4, {t0}
v_lshl_add_u32 {t0}, {g}, 13, {t0}
s_lshl_b32 s{sT1}, s{sH}, 8
v_add_u32 v16, s{sT1}, {t0}
v_xor_b32 v28, 64, v16
v_xor_b32 v29, 128, v16
v_xor_b32 v30, 192, v16
v_lshrrev_b32 {t1}, 1, {r4}
v_and_b32 {t2}, 1, {r4}
v_lshlrev_b32 {t0}, 2, {g1}
v_lshl_add_u32 {t0}, {t1}, 3, {t0}
v_add_u32 {t0}, {t0}, {t2}
v_lshlrev_b32 {t0}, 8, {t0}
v_lshl_add_u32 {t0}, {cc}, 3, {t0}
v_lshl_add_u32 v17, {g1}, 1, {t2}
v_lshl_add_u32 v17, {t1}, 2, v17
s_lshl_b32 s{sT1}, s{sW}, 1
v_xor_b32 v17, s{sT1}, v17
v_lshl_add_u32 {t0}, v17, 5, {t0}
v_xor_b32 v23, 32, {t0}
v_mul_u32_u24 v22, {WREG}, {g2}
v_add_u32 v22, {L_W}, v22
v_add_u32 v17, {t0}, v22
v_add_u32 v23, v23, v22
v_add_u32 v22, {2*WREG}, v17
v_add_u32 v31, {2*WREG}, v23
v_lshlrev_b32 {t0}, 4, {g1}
v_lshl_add_u32 {t0}, {g2}, 2, {t0}
v_add_u32 {t0}, {t0}, {t2}
v_mul_u32_u24 {t0}, 288, {t0}
v_lshl_add_u32 {t0}, {t1}, 6, {t0}
v_lshl_add_u32 {t0}, {cc}, 3, {t0}
v_add_u32 v18, s{sT0}, {t0}
v_lshl_add_u32 {t0}, {g}, 2, {r4}
v_mul_u32_u24 {t0}, 288, {t0}
v_lshl_add_u32 {t0}, {cc}, 3, {t0}
v_add_u32 {t0}, 256, {t0}
v_add_u32 v19, s{sT0}, {t0}
""")
    for ii in range(9):
        A(f"""
v_add_u32 {t0}, {64*ii}, {l}
v_mul_u32_u24 {t1}, 3641, {t0}
v_lshrrev_b32 {t1}, 16, {t1}
v_mul_u32_u24 {t2}, 18, {t1}
v_sub_u32 {t2}, {t0}, {t2}
v_mul_u32_u24 {t1}, 1152, {t1}
v_lshl_add_u32 v{71+ii}, {t2}, 4, {t1}""")
    A(f"""
v_mul_u32_u24 {t0}, 1152, {n7}
v_lshl_add_u32 {t0}, {n8}, 4, {t0}
v_lshl_add_u32 v20, {g}, 5, {t0}
v_mul_u32_u24 {t1}, 288, {g}
v_add_u32 v21, {t0}, {t1}
s_waitcnt lgkmcnt(0)
s_mov_b32 s6, {WS_BYTES}
s_mov_b32 s7, 0x20000
s_mov_b32 s10, {0 if 'nodata' in X else 576*8192}
s_mov_b32 s11, 0x20000
s_mov_b32 s68, s{sT0}
s_lshl_b32 s{sH1ld}, s{sU}, 12
s_cmp_lt_u32 s{sU}, 72
s_cselect_b32 s{sH1ld}, s{sH1ld}, {WS_BYTES}
s_cmp_lt_u32 s{sW}, 3
s_cselect_b32 s{sH2pz}, 0, {WS_BYTES}
v_mov_b32 v44, 0
v_mov_b32 v45, 0
v_mov_b32 v46, 0
v_mov_b32 v47, 0
v_mov_b32 v48, 0x3f803f80
v_mov_b32 v49, 0x3f803f80
v_mov_b32 v50, 0x3f803f80
v_mov_b32 v51, 0x3f803f80
v_mov_b32 v52, 0x3f003f00
v_mov_b32 v53, 0x3f003f00
v_mov_b32 v54, -1
""")
    lab=A.label('CI')
    A(f"""
ds_write_b128 v{vCon}, v[44:47]
ds_write_b128 v{vCon}, v[48:51] offset:16
ds_write_b64 v{vCon}, v[52:53] offset:32
""")
    HELP='help' in X
    HL=([x[1] for x in X if isinstance(x,tuple) and x[0]=='hl'] or [5])[0]
    if HELP:
        A(f"""
s_and_b32 s{sT1}, s{sH}, 3
s_add_u32 s{sT2}, s{sT1}, -1
s_cselect_b32 s{sT2}, s{sT2}, 0
s_lshl_b32 s{sT2}, s{sT2}, 2
s_add_u32 s{sT2}, s{sT2}, s{sW}
s_mul_i32 s{sT2}, s{sT2}, 11
s_cmp_eq_u32 s{sT1}, 1
s_cselect_b32 s{sT2}, 128, s{sT2}
v_lshrrev_b32 v60, 4, v{vL16}
v_add_u32 v61, s{sT2}, v60
v_lshrrev_b32 v62, 1, v61
v_lshlrev_b32 v62, 13, v62
v_and_b32 v63, 1, v61
v_lshl_add_u32 v62, v63, 7, v62
s_and_b32 s{sT2}, s{sH}, 28
s_add_u32 s{sT2}, s{sT2}, 1
s_lshl_b32 s{sT2}, s{sT2}, 8
v_add_u32 v62, s{sT2}, v62
v_cmp_gt_u32 s[{sT2-sT2%2}:{sT2-sT2%2+1}], {HL}, v60
v_cmp_gt_u32 vcc, 128, v61
s_and_b64 vcc, vcc, s[{sT2-sT2%2}:{sT2-sT2%2+1}]
v_mov_b32 v63, 0x10000000
v_cndmask_b32 v62, v63, v62, vcc
""")
    sRow,sRow8=sTag,sKVc
    A(f's_mul_i32 s{sRow}, s{sW}, {16*8192}\ns_mul_i32 s{sRow8}, s{sW}, {144*8192}')
    chunks=[]
    def qkv_chunk(mat,t):
        return dict(kind='w',mat=mat,t=t,size=4096,n=4+(1 if HELP and t<8 else 0))
    qk=[qkv_chunk(mm,t) for t in range(9) for mm in 'qk']
    oc=[dict(kind='o',k=k,size=9216,n=9) for k in range(4)]
    for grp in ([x[1] for x in X if isinstance(x,tuple) and x[0]=='ord'] or ['qoqqoqoqoq'])[0]:
        if grp=='q': chunks+= [qk.pop(0) for _ in range(3)]
        else: chunks.append(oc.pop(0))
    for t in range(9): chunks.append(qkv_chunk('v',t))
    ptr={'q':56,'k':58,'v':60,'o':62}
    cur_srd=[None]
    def set_srd(mat):
        if cur_srd[0]!=mat:
            A(f's_mov_b32 s8, s{ptr[mat]}\ns_mov_b32 s9, s{ptr[mat]+1}')
            cur_srd[0]=mat
    def issue(c):
        if c['kind']=='w':
            set_srd(c['mat']); t=c['t']
            d = (144*(t//2)+64*(t%2)) if t<8 else 128
            A(f's_add_u32 m0, s68, {c["addr"]}')
            if HELP and t<8: A(f's_mov_b32 s{sT1}, {d*8192}\nbuffer_load_dword v63, v62, s[8:11], s{sT1} offen')
            for ii in range(4):
                A(f's_add_u32 s{sT1}, s{sRow8 if t==8 else sRow}, {d*8192+ii*(4*8192-1024)}')
                A(f'buffer_load_dwordx4 v{(16,28,29,30)[ii]}, s[8:11], s{sT1} offen offset:{1024*ii} lds')
        else:
            set_srd('o'); k=c['k']
            A(f's_xor_b32 s{sT1}, s{sW}, {k}\ns_lshl_b32 s{sT1}, s{sT1}, 5\ns_lshl_b32 s{sT2}, s{sH}, 7\ns_add_u32 s{sT1}, s{sT1}, s{sT2}\ns_mul_i32 s{sT1}, s{sT1}, 1152\ns_mul_i32 s{sT2}, s{sW}, 288\ns_add_u32 s{sT1}, s{sT1}, s{sT2}')
            for ii in range(9):
                A(f's_add_u32 m0, s68, {c["addr"]+1024*ii}')
                A(f'buffer_load_dwordx4 v{71+ii}, s[8:11], s{sT1} offen {"nt" if "nt" in X else ""} lds')
    def ops_of(c):
        if c['kind']=='w': return [(c['mat'],c['t'],0),(c['mat'],c['t'],1)]
        return [('o',c['k'],P) for P in range(4)]+[('sx',c['k'])]
    def tr_reads(c,op,loc):
        f,b=loc
        if 'notr' in X: return
        if c['kind']=='w':
            for jh in range(2):
                for jl in (0,2):
                    off=c['addr']+jl*256
                    A(f'ds_read_b64_tr_b16 {vr(b+4*jh+jl,2,f)}, v{((17,22),(23,31))[op[2]][jh]} offset:{off}')
        elif op[0]=='o':
            P=op[2]; PP,q=P//2,P%2
            for jh in range(2):
                for jl in (0,2):
                    off=c['addr']+(8*jh+jl)*288+(64*PP+16*q)*2
                    A(f'ds_read_b64_tr_b16 {vr(b+4*jh+jl,2,f)}, v18 offset:{off}')
        else:
            for a in range(2):
                A(f'ds_read_b64_tr_b16 {vr(b+2*a,2,f)}, v19 offset:{c["addr"]+16*a*288}')
    parkregs=[('v',32),('v',40)]+[m[('v',t,c)] for t in range(1,9) for c in range(2)]
    parked={}
    live=[]; nissued=0; nslot=[0]
    def alloc(c):
        a = (nslot[0]%9)*4096
        if any(not (x['addr']+x['size']<=a or x['addr']>=a+c['size']) for x in live): return None
        nslot[0]+= 3 if c['kind']=='o' else 1
        return a
    def flush(loc,addr):
        op=parked.pop(loc); m[op]=('l',addr//2048)
        for j in range(2): A(f'ds_write_b128 v{vWl}, {R(loc,4*j,4)} offset:{addr+1024*j}')
    def early():
        A(f's_mov_b32 s8, s64\ns_mov_b32 s9, s65\ns_mov_b32 s10, 9216')
        for j in range(3):
            A(f"""
s_mul_i32 s{sT1}, s{sW}, 3
s_add_u32 s{sT1}, s{sT1}, {j}
s_lshr_b32 s{sT2}, s{sT1}, 1
s_mul_i32 s{sT2}, s{sT2}, 288
s_and_b32 s{sT3}, s{sT1}, 1
s_lshl_b32 s{sT3}, s{sT3}, 7
s_add_u32 s{sT2}, s{sT2}, s{sT3}
""")
            if j==2:
                A(f"""
s_cmp_eq_u32 s{sT1}, 8
s_cselect_b32 s{sT2}, 256, s{sT2}
s_cselect_b64 vcc, -1, 0
v_cndmask_b32 v20, v20, v21, vcc
""")
            A(f'buffer_load_dwordx4 v[{T(16)+4*j}:{T(19)+4*j}], v20, s[8:11], s{sT2} offen')
        A(f's_lshl_b32 s{sT1}, s{sH}, 9\ns_add_u32 s{sFlagKV}, s{sT1}, {F_KV}')
        A(f'v_readfirstlane_b32 s{sStep1}, v61')
        status_loads(A)
        return 3+5
    pending_reads=False; extra=0
    def its(k):
        if 'itrace' in X: A(f's_memtime s[{sSt+2}:{sSt+3}]\ns_waitcnt lgkmcnt(0)\ns_sub_u32 s{sSt+4+k}, s{sSt+2}, s72')
    its(0)
    def issue_more():
        nonlocal nissued
        while nissued<len(chunks):
            nc=chunks[nissued]
            if sum(x['n'] for x in live)+nc['n']>52: break
            a=alloc(nc)
            if a is None: break
            nc['addr']=a
            issue(nc); live.append(nc); nissued+=1
    issue_more(); its(1)
    prev=None
    for ci,c in enumerate(chunks):
        assert c in live
        if ci==10: A(f'v_mov_b32 v60, 0\nglobal_load_dword v61, v60, s[66:67] offset:{D_INIT} sc1')
        younger=sum(x['n'] for x in live if x is not c and x is not prev)+extra
        A(f's_waitcnt vmcnt({younger}) lgkmcnt(0)')
        if 'nobar' not in X: A('s_barrier')
        if ci in (8,16,22): its((0,0,8,16,22).index(ci,2))
        if ci==30: its(5)
        if prev is not None:
            live.remove(prev)
            issue_more()
            if nissued==len(chunks) and not extra: extra=early()
            if prev['kind']=='w' and prev['mat']=='v':
                for j in range(2): flush(m[('v',c['t'],j)],prev['addr']+2048*j)
        for op in ops_of(c):
            if op[0]=='sx':
                k=op[1]; loc=m[('s',k//2)]; tr_reads(c,op,(loc[0],loc[1]+4*(k%2)))
            elif m[op][0]!='l':
                assert m[op] not in parked
                tr_reads(c,op,m[op])
            else:
                loc=parkregs.pop(0); parked[loc]=op
                tr_reads(c,op,loc)
        prev=c
    A('s_waitcnt lgkmcnt(0)\ns_barrier')
    for j,loc in enumerate([('v',32),('v',40)]): flush(loc,prev['addr']+2048*j)
    assert not parked and not parkregs
    if 'rdy0' in X: A('s_memrealtime s[90:91]\ns_waitcnt lgkmcnt(0)\ns_mov_b32 s99, s90')
    c = math.log2(math.e)/math.sqrt(128.0)
    cb = struct.unpack('<I',struct.pack('<f',c))[0]
    A(f"""
s_mov_b32 s{sSc2}, {cb:#x}
s_mov_b32 s{sSc2+1}, {cb:#x}
s_mov_b32 s{sLo20}, 0x35800000
s_mov_b32 s{sHi20}, 0x49800000
s_mov_b32 s{sStep}, 0
s_mov_b32 s{sTag}, 1
s_mov_b32 s{s32k}, 32768
s_lshl_b32 s{sLate}, s{sW}, 11
s_add_u32 s{sLate}, s{sLate}, 1024
s_mov_b32 s{sH2c}, {WS_H2}
s_mov_b32 s{sH2n}, {WS_H2+H2SZ}
s_mov_b32 s{sH2p}, {WS_H2+2*H2SZ}
s_lshl_b32 s{sT1}, s{sH}, 14
s_add_u32 s{sKVc}, s{sT1}, {WS_KV}
s_add_u32 s{sKn}, s{sKVc}, {32*16384}
s_lshl_b32 s{sT2}, s{sW}, 11
s_add_u32 s{sPf}, s{sKn}, s{sT2}
s_add_u32 s{sPf}, s{sPf}, 8192
s_mov_b32 m0, {L_W+4*WREG}
s_lshl_b32 s{sT1}, s{sH}, 11
s_add_u32 s{sKMo}, s{sT1}, {WS_KM}
s_lshl_b32 s{sT1}, s{sH}, 12
s_add_u32 s{sVMo}, s{sT1}, {WS_VM}
s_lshl_b32 s{sT1}, s{sW}, 10
s_add_u32 s{sVMo}, s{sVMo}, s{sT1}
s_lshl_b32 s{sT1}, s{sH}, 7
s_add_u32 s{sFlagM}, s{sT1}, {F_M}
s_lshr_b32 s{sT1}, s{sH}, 2
s_add_u32 s{sT1}, s{sT1}, 64
s_lshl_b32 s{sT1}, s{sT1}, 12
s_and_b32 s{sT2}, s{sH}, 3
s_lshl_b32 s{sT2}, s{sT2}, 5
s_add_u32 s{sT1}, s{sT1}, s{sT2}
s_cmp_eq_u32 s{sW}, 2
s_cselect_b32 s{sH1ld}, s{sT1}, s{sH1ld}
s_sub_u32 s{sFlagMw}, s{sFlagM}, {L_C}
s_mov_b32 s{sT1}, {WS_BYTES}
s_cmp_eq_u32 s{sW}, 3
s_cselect_b32 s{sFlagMw}, s{sFlagMw}, s{sT1}
s_add_u32 s{sPrb}, s{sH}, s{sW}
s_and_b32 s{sPrb}, s{sPrb}, 3
s_lshl_b32 s{sPrb}, s{sPrb}, 8
s_add_u32 s{sPrb}, s{sPrb}, {WS_F1}
s_lshl_b32 s{sFlg}, s{sH}, 2
s_add_u32 s{sFlg}, s{sFlg}, {WS_F1}
s_cmp_eq_u32 s{sW}, 3
s_cselect_b32 s{sPrb}, s{sPrb}, s{sT1}
s_cmp_eq_u32 s{sW}, 1
s_cselect_b32 s{sFlg}, s{sFlg}, s{sT1}
""")

def emit_wait_kv(A, need_sreg, fail, tmp):
    lp=A.label('KVW'); ok=A.label('KVOK')
    A(f"""
s_cmp_ge_u32 s{sKVok}, s{need_sreg}
s_cbranch_scc1 {ok}
s_mov_b32 s{sPoll}, 0
{lp}:
v_mov_b32 v{tmp}, 0
buffer_load_dword v{tmp+1}, v{tmp}, s[4:7], s{sFlagKV} offen offset:256 sc1
buffer_load_dword v{tmp}, v{tmp}, s[4:7], s{sFlagKV} offen sc1
s_add_u32 s{sPoll}, s{sPoll}, 1
s_cmp_gt_u32 s{sPoll}, {POLLMAX}
s_cbranch_scc1 {fail}
v_min_u32 v{tmp}, v{tmp}, v{tmp+1}
v_readfirstlane_b32 s{sKVok}, v{tmp}
s_cmp_lt_u32 s{sKVok}, s{need_sreg}
s_cbranch_scc1 {lp}
{ok}:
""")

def emit_chain_loop(A, m, qk_order, lds_qk, lds_o, st, tag, fail, done, D1=0, D2=2, stamps=(), X=()):
    def stamp(i):
        if ('tr',i) in X:
            k=[x for x in X if isinstance(x,tuple) and x[0]=='tr'].index(('tr',i))
            sk=A.label('TR')
            A(f's_cmp_gt_u32 s{sStep}, {31 if i in (8,7,13) or (i==0 and k>0) else 30}\ns_cbranch_scc1 {sk}\ns_memtime s[{sTr+2*k}:{sTr+2*k+1}]\n{sk}:')
        if i in stamps:
            k=stamps.index(i)
            A(f's_memtime s[{sSt+2}:{sSt+3}]\ns_waitcnt lgkmcnt(0)')
            if k==0: A(f's_mov_b32 s{sSt}, s{sSt+2}')
            else: A(f's_sub_u32 s{sSt+3}, s{sSt+2}, s{sSt}\ns_add_u32 s{sSt+4+k}, s{sSt+4+k}, s{sSt+3}')
    def pad(i):
        for _ in range((Dl['pad']>>(2*i))&3): A('s_nop 0')
    def delay(n):
        while n>0:
            c=min(n,16); A(f's_nop {c-1}'); n-=c
    Dl=dict(a1=4,a2=25,g=34,al=24,b1=58,b2=74,c1=0,c2=34,d1=94,nl=10,fl=2,vl=16,v4=1,fm=23,z0=0,z1=0,pr=(7,9,11,13),sp=2,se=2,kx2=0,ow=0,pk=0,pf=20,xo=1,a0=-1,c0=0,vp=11,vq=0,ne=0,yo=0,po=0,lb=0,oo=0,r1=1,ho=1,pad=0); Dl.update(D1 if isinstance(D1,dict) else {})
    KS='' if 'kplain' in X else ('sc1 nt' if 'knt' in X else ('sc0 sc1' if 'ksys' in X else 'sc1'))
    SM='v_smfmac_f32_16x16x64_bf16'
    M32='v_mfma_f32_16x16x32_bf16'; M16='v_mfma_f32_16x16x16_bf16'
    accq=[T(0),T(4)]; acck=[T(8),T(12)]; ring=[T(16),T(20),T(24)]; stg=[T(28),T(36),VX]
    def ldsop(op,buf):
        A(f'ds_read_b128 {q4(buf)}, v{vWl} offset:{m[op][1]*2048}')
        A(f'ds_read_b128 {q4(buf+4)}, v{vWl} offset:{m[op][1]*2048+1024}')
    def zero(b): A(f'ds_read_b128 {q4(b)}, v{vCon}')
    Q=[]
    def qop(op,buf):
        Q.append(f'ds_read_b128 {q4(buf)}, v{vWl} offset:{m[op][1]*2048}')
        Q.append(f'ds_read_b128 {q4(buf+4)}, v{vWl} offset:{m[op][1]*2048+1024}')
    def pop(k=1):
        for _ in range(k):
            if Q: A(Q.pop(0))
    top=f'CSTEP_{tag}'; p2=f'CP2_{tag}'; barA=f'CBA_{tag}'
    def scal():
        A(f's_add_u32 s{sStep1}, s{sStep}, 1\ns_add_u32 s{sPz}, s{sH2p}, s{sH2pz}\ns_add_u32 s{sNeed}, s{sStep}, 8\ns_lshr_b32 s{sNeed}, s{sNeed}, 2\ns_min_u32 s{sNeed}, s{sNeed}, 16')
    late=T(44); vMl=vMl_; lateL=A.label('LATE')
    A(f'{top}_prep:')
    for i in range(16): A(f'v_mov_b32 v{T(i)}, 0')
    for j in range(2): ldsop(lds_qk[j],stg[j])
    scal()
    pw=A.label('PW')
    A(f's_cmp_eq_u32 s{sW}, 3\ns_cbranch_scc1 {pw}')
    A(f's_mul_i32 s{sT1}, s{sW}, 3072\nv_add_u32 v{T(45)}, s{sT1}, v{vL16}')
    for j in range(3): A(f'ds_write_b128 v{T(45)}, {q4(T(16)+4*j)} offset:{L_M+1024*j}')
    A(f'{pw}:')
    A('s_waitcnt lgkmcnt(0)\ns_barrier')
    A(f'ds_read_b128 {q4(late)}, v{vMl} offset:{L_M+1024}')
    A('.p2align 8')
    for _ in range(Dl['ho']): A('s_nop 0')
    A(f'{barA}:')
    if Dl['vp']==5: A(f'buffer_store_dwordx4 {q4(T(24))}, v{vL16}, s[4:7], s{sVMo} offen {KS}')
    A('s_waitcnt lgkmcnt(0)\ns_barrier')
    if Dl['vp']==6: A(f'buffer_store_dwordx4 {q4(T(24))}, v{vL16}, s[4:7], s{sVMo} offen {KS}')
    stamp(0)
    if 'hist' in X:
        A(f's_memtime s[{sSt+2}:{sSt+3}]\ns_waitcnt lgkmcnt(0)\ns_sub_u32 s{sSt+3}, s{sSt+2}, s{sSt}\ns_mov_b32 s{sSt}, s{sSt+2}')
        for i,th in enumerate((4000,4100,4200,4300,4450,4700)):
            A(f's_cmp_lt_u32 s{sSt+3}, {th}\ns_addc_u32 s{sSt+4+i}, s{sSt+4+i}, 0')
    for x in X:
        if isinstance(x,tuple) and x[0]=='at':
            sk=A.label('AT'); A(f's_cmp_lg_u32 s{sStep}, {x[1]}\ns_cbranch_scc1 {sk}\ns_memrealtime s[90:91]\ns_waitcnt lgkmcnt(0)\ns_mov_b32 s99, s90\ns_mov_b32 s90, 0\ns_mov_b32 s91, 0\n{sk}:')
    def mtxt(pos): return f'ds_read_b128 {q4(ring[pos%3])}, v{vL16} offset:{L_M+1024*(TORD[pos%9])}'
    def mread(pos): A(mtxt(pos))
    mread(0); mread(1); Q.append(mtxt(2))
    accv=[T(44),T(28)]
    li=0
    cold=[]
    NL=Dl['nl']; late_vm=[]
    for n,op in enumerate(qk_order):
        pos=n//4; acc=(accq if op[0]=='q' else acck)[op[2]]
        if m[op][0]=='l':
            b=stg[QKBUF[li]]; B=f'v[{b}:{b+7}]'
        else: B=R(m[op])
        A(f'{SM} {q4(acc)}, {q4(ring[pos%3])}, {B}, v{vIdx}')
        if m[op][0]=='l':
            nx=[j for j in range(li+1,len(lds_qk)) if QKBUF[j]==QKBUF[li]]
            if nx: qop(lds_qk[nx[0]],b)
            li+=1
        if n==NL:
            ck=late; ok=A.label('LOK')
            A(f'ds_write_b128 v{vMl}, {q4(late)} offset:{L_M+1024}'); wpos=len(A.items)
        if n==NL+1: A(f'v_max3_u32 v{ck}, v{late}, v{late+1}, v{late+2}')
        if n==NL+2: A(f'v_max_u32 v{ck}, v{ck}, v{late+3}')
        if n==NL+3:
            A(f'v_cmp_eq_u32 vcc, -1, v{ck}\ns_cbranch_vccnz {lateL}\n{ok}:')
            def c(ok=ok,ck=ck):
                A(f'{lateL}:')
                A(f'buffer_load_dwordx4 {q4(late)}, v{vL16}, s[4:7], s{sT3} offen sc1')
                A(f's_add_u32 s{sPoll}, s{sPoll}, 1\ns_add_u32 s{sSt+12}, s{sSt+12}, 1\ns_cmp_gt_u32 s{sPoll}, {POLLMAX}\ns_cbranch_scc1 {fail}')
                A(f'ds_write_b128 v{vMl}, {q4(late)} offset:{L_M+1024}')
                A(f's_nop 1\nv_max3_u32 v{ck}, v{late}, v{late+1}, v{late+2}\nv_max_u32 v{ck}, v{ck}, v{late+3}')
                A(f'v_cmp_eq_u32 vcc, -1, v{ck}\ns_cbranch_vccnz {lateL}\ns_waitcnt lgkmcnt(0)\ns_branch {ok}')
            cold.append(c)
        if n%4==3:
            if pos<2: Q.insert(0,mtxt(pos+3))
            elif pos==3:
                A('LGKM_A2\ns_barrier'.replace('LGKM_A2',f's_waitcnt lgkmcnt({sum(1 for it in A.items[wpos:] if isinstance(it,Ins) and it.kind=="ds")})'))
                Q.insert(0,mtxt(5)); Q.insert(1,mtxt(6))
            elif pos>3: Q.insert(0,mtxt(pos+3))
        if n!=NL: pop()
        vq=Dl['vq']; B_=(lambda t,bit: (late_vm.append(t) if vq&bit else A(t)))
        if n==Dl['vl']: B_(f'buffer_load_dwordx4 {q4(VX)}, v{vKx}, s[4:7], s{sKVc} offen sc1',1)
        if n==Dl['vl']+1: B_(f'buffer_load_dwordx4 {q4(VX+4)}, v{vKx}, s[4:7], s{sKVc} offen offset:256 sc1',1)
        if n==Dl['fm']-2 and Dl['vp']==9: A(f's_cmp_lt_u32 s{sStep}, 61\ns_subb_u32 s{sT2}, s{sStep}, 0\ns_max_i32 s{sT2}, s{sT2}, 0')
        if n==(35 if Dl['vq']&2 else Dl['fm']-1): A(f'v_mov_b32 v{(T(42) if Dl["vq"]&2 else T(45))}, s{sT2 if Dl["vp"]==9 else sStep}')
        if n==Dl['fm']: (late_vm.append if Dl['vq']&2 else A)(f'buffer_store_dword v{(T(42) if Dl["vq"]&2 else T(45))}, v{vCon}, s[4:7], s{sFlagMw} offen sc1')
        if n==24:
            kf_=A.label('KVF'); kb_=A.label('KVB')
            A(f's_cmp_lt_u32 s{sKVok}, s{sNeed}\ns_cbranch_scc1 {kf_}\n{kb_}:')
            def c(kf_=kf_,kb_=kb_):
                A(f'{kf_}:\nbuffer_load_dword v{vCon}, s[4:7], s{sFlagKVd} offen offset:256 sc1 lds\nbuffer_load_dword v{vCon}, s[4:7], s{sFlagKVd} offen offset:512 sc1 lds\ns_branch {kb_}')
            cold.append(c)
        wb=[x for x in X if isinstance(x,tuple) and x[0]=='wb']
        if wb and n==21:
            wl=A.label('WB'); wr=A.label('WBR')
            A(f's_and_b32 s{sT1}, s{sStep}, {wb[0][1]-1}\ns_or_b32 s{sT1}, s{sT1}, s{sWbm}\ns_cmp_eq_u32 s{sT1}, 0\ns_cbranch_scc1 {wl}\n{wr}:')
            def c(wl=wl,wr=wr): A(f'{wl}:\nbuffer_wbl2 sc1\ns_branch {wr}')
            cold.append(c)
        tP,tF,tN=(T(41),T(42),T(43)) if Dl['vq']&2 else (T(46),T(45),T(44))
        if n==(33 if Dl['vq']&2 else 18): A(f'v_mov_b32 v{tN}, -1')
        sh=18 if Dl['vq']&2 else 0
        if n==16+sh and not Dl['ne']: A(f'v_lshlrev_b32 v{tP}, 3, v{vL16}')
        if n==17 and Dl['pk']: A(f'v_lshrrev_b32 v{T(47)}, 8, v{vL16}')
        if n==19 and Dl['pk']: A(f'v_mad_u32_u24 v{T(46)}, v{T(47)}, s{sPfK}, v{T(46)}')
        if n==Dl['pf'] and 'nopf' not in X: B_(f'buffer_load_dword v{vPfa}, s[4:7], s{sPf} offen sc1 lds' if Dl['ne'] else f's_mov_b64 exec, 0xffff\nbuffer_load_dword v{tP}, s[4:7], s{sPf} offen sc1 lds\ns_mov_b64 exec, -1',2)
        if n==19: B_(f'buffer_store_dword v{tN}, v{vH2st}, s[4:7], s{sPz} offen {st}',2)
        if 25<=n<29: A(f'v_mov_b32 v{accv[0]+n-25}, 0')
        if 30<=n<34: A(f'v_mov_b32 v{accv[1]+n-30}, 0')
        if n==33 and Dl['vp']==9: A(f'ds_read_b128 {q4(T(40))}, v{vYw} offset:{L_QK}')
    stamp(1)
    def vstep(p):
        for c in range(2):
            A(f'{SM} {q4(accv[c])}, {q4(ring[p%3])}, {R(m[("v",TORD[p],c)])}, v{vIdx}')
            if c==1 and p+3<9: Q.insert(0,mtxt(p+3))
            pop()
    def cv(d,a): A(f'v_cvt_pk_bf16_f32 v{d}, v{a}, v{a+1}')
    pad(0)
    vstep(0)
    if Dl['vp']==9: A(f'buffer_store_dwordx4 {q4(T(40))}, v{vL16}, s[4:7], s{sVMp} offen {KS}')
    for t_ in late_vm: A(t_)
    for a in accq: cv(a,a); cv(a+1,a+2)
    tq=[T(32),T(36)]; tk=[T(0),T(4)]
    A(f'{M16} {q4(tq[0])}, v[{accq[0]}:{accq[0]+1}], v[{vS16}:{vS16+1}], 0')
    cv(acck[0],acck[0]); cv(acck[0]+1,acck[0]+2)
    A(f'{M16} {q4(tq[1])}, v[{accq[1]}:{accq[1]+1}], v[{vS16}:{vS16+1}], 0')
    cv(acck[1],acck[1]); cv(acck[1]+1,acck[1]+2)
    A(f'{M16} {q4(tk[0])}, v[{acck[0]}:{acck[0]+1}], v[{vS16}:{vS16+1}], 0')
    A(f'{M16} {q4(tk[1])}, v[{acck[1]}:{acck[1]+1}], v[{vS16}:{vS16+1}], 0')
    qf,kf=T(32),T(8)
    A(f'v_add_u32 v{T(40)}, s{sW256}, v{vL16}')
    cv(qf,tq[0]); cv(qf+1,tq[0]+2); cv(qf+2,tq[1]); cv(qf+3,tq[1]+2)
    X0,X1,Mm=T(4),T(12),T(0)
    cv(kf,tk[0]); cv(kf+1,tk[0]+2)
    A(f'{M32} {q4(X1)}, {q4(KX+4)}, {q4(qf)}, 0')
    cv(kf+2,tk[1]); cv(kf+3,tk[1]+2)
    A(f'{M32} {q4(X0)}, {q4(KX)}, {q4(qf)}, 0')
    A(f'{M32} {q4(Mm)}, {q4(kf)}, {q4(qf)}, 0')
    vstep(1)
    if 'nok' not in X: A(f'buffer_load_dwordx4 {q4(KX)}, v{vKx}, s[4:7], s{sKn} offen sc1')
    if Dl['kx2'] or Dl['ow']: A(f'v_cndmask_b32 v{T(41)}, 0, 8, s[{sHi}:{sHi+1}]')
    if Dl['kx2']:
        A(f'v_cndmask_b32 v{kf}, v{kf}, v{kf+2}, s[{sHi}:{sHi+1}]\nv_cndmask_b32 v{kf+1}, v{kf+1}, v{kf+3}, s[{sHi}:{sHi+1}]\nv_add_u32 v{T(42)}, v{T(41)}, v{vOw}')
        A(f'buffer_store_dwordx2 v[{kf}:{kf+1}], v{T(42)}, s[4:7], s{sKMo} offen sc1')
    elif 'nokm' not in X and 'nokm1' not in X: A(f'buffer_store_dwordx4 {q4(kf)}, v{vOw}, s[4:7], s{sKMo} offen {KS}')
    for r in range(4): A(f'v_cndmask_b32 v{X0+r}, v{X0+r}, v{X1+r}, s[{sHi}:{sHi+1}]')
    yw=f'ds_write_b128 v{vYw}, {q4(X0)} offset:{L_QK}'
    k2=f'buffer_load_dwordx4 {q4(KX+4)}, v{vKx}, s[4:7], s{sKn} offen offset:256 sc1'
    ms=f'v_cndmask_b32 v{Mm}, v{Mm}, v{Mm+1}, s[{sHi}:{sHi+1}]\nv_cndmask_b32 v{Mm+2}, v{Mm+2}, v{Mm+3}, s[{sHi}:{sHi+1}]\nv_cndmask_b32 v{Mm}, v{Mm}, v{Mm+2}, s[{sG2}:{sG2+1}]'
    mw=f'ds_write_b32 v{T(40)}, v{Mm} offset:{L_MX}'
    for t_ in ([yw,k2,ms,mw],[ms,yw,k2,mw],[k2,ms,yw,mw])[Dl['yo']]: A(t_)
    wp=len(A.items)
    vstep(2); vstep(3)
    if Dl['v4']: vstep(4)
    A(f's_waitcnt lgkmcnt({sum(1 for it in A.items[wp:] if isinstance(it,Ins) and it.kind=="ds")})\ns_barrier')
    stamp(2)
    pad(1)
    Y=[T(0),T(4),T(8),T(12)]; Mp=[T(16)]
    A(f'ds_read_b128 {q4(Y[0])}, v{vL16} offset:{L_QK}')
    for j in range(1,4): Q.append(f'ds_read_b128 {q4(Y[j])}, v{vL16} offset:{L_QK+1024*j}')
    Q.append(f'ds_read_b128 {q4(T(36))}, v{vCon} offset:16'); Q.append(f'ds_read_b64 v[{T(40)}:{T(41)}], v{vCon} offset:32')
    if not Dl['v4']: vstep(4)
    vstep(5); vstep(6)
    Q.insert(0,f'ds_read_b128 {q4(Mp[0])}, v{vL16} offset:{L_MX}')
    vstep(7); vstep(8)
    pop(len(Q))
    def padd(a,b):
        A(f'v_pk_add_f32 v[{a}:{a+1}], v[{a}:{a+1}], v[{b}:{b+1}]\nv_pk_add_f32 v[{a+2}:{a+3}], v[{a+2}:{a+3}], v[{b+2}:{b+3}]')
    def pmul(a):
        for o in (0,2): A(f'v_pk_mul_f32 v[{a+o}:{a+o+1}], v[{a+o}:{a+o+1}], s[{sSc2}:{sSc2+1}]')
    Ys,Ms=Y[0],Mp[0]
    vm=T(32); P=T(12); ones,half=T(36),T(40)
    accO=[T(16),T(20),T(24),T(28)]; accS=T(44)
    O0,O1,Lr=T(0),T(4),T(44)
    def softpv(fast):
        for r in range(4):
            A(f'v_exp_f32 v{Ys+r}, v{Ys+r}')
            if fast and r==2: vmk(1)
        if fast: A(f'v_pk_add_f32 v[{Ms}:{Ms+1}], v[{Ms}:{Ms+1}], v[{Ms+2}:{Ms+3}]')
        A(f'v_cvt_pk_bf16_f32 v{P}, v{Ys}, v{Ys+1}\nv_cvt_pk_bf16_f32 v{P+2}, v{Ys}, v{Ys+1}')
        A(f'v_cvt_pk_bf16_f32 v{P+1}, v{Ys+2}, v{Ys+3}\nv_cvt_pk_bf16_f32 v{P+3}, v{Ys+2}, v{Ys+3}')
        if fast: vmk(2); A(f'v_add_f32 v{Ms}, v{Ms}, v{Ms+1}')
        A(f'v_mov_b32_dpp v{P}, v{P+2} row_ror:8 row_mask:0xf bank_mask:0xc')
        if fast: A(f'v_mul_f32 v{Ms}, s{sSc2}, v{Ms}')
        A(f'v_mov_b32_dpp v{P+1}, v{P+3} row_ror:8 row_mask:0xf bank_mask:0xc')
        A(f'v_mov_b32_dpp v{P+2}, v{P+2} row_ror:8 row_mask:0xf bank_mask:0x3')
        A(f'v_mov_b32_dpp v{P+3}, v{P+3} row_ror:8 row_mask:0xf bank_mask:0x3')
        A(f'v_exp_f32 v{Ms}, v{Ms}\nv_exp_f32 v{Ms+1}, v{Ms} ;dup'.replace(f'v_exp_f32 v{Ms}, v{Ms}\nv_exp_f32 v{Ms+1}, v{Ms} ;dup',f'v_exp_f32 v{Ms+1}, v{Ms}'))
        if fast: vmk(3)
        A(f'{M32} {q4(Lr)}, {q4(ones)}, {q4(P)}, 0')
        A(f'v_mov_b32 v{Ms}, v{Ms+1}')
        A(f'{M32} {q4(O0)}, {q4(VX)}, {q4(P)}, 0')
        A(f'v_mov_b32_dpp v{Ms}, v{Ms+1} row_ror:8 row_mask:0xf bank_mask:0xc')
        A(f'v_mov_b32_dpp v{Ms+1}, v{Ms+1} row_ror:8 row_mask:0xf bank_mask:0x3')
        A(f'{M32} {q4(O1)}, {q4(VX+4)}, {q4(P)}, 0')
        Pm=T(8)
        A(f'v_cvt_pk_bf16_f32 v{Pm}, v{Ms}, v{Ms+1}\nv_cvt_pk_bf16_f32 v{Pm+1}, v{Ms}, v{Ms+1}')
        z=lambda b,lo,hi: [A(f'v_mov_b32 v{b+i}, 0') for i in range(lo,hi)]
        if fast: vmk(4)
        z(accO[0],0,2)
        A(f'v_permlane32_swap_b32 v{Pm}, v{Pm+1}')
        z(accO[0],2,4)
        A(f'{M16} {q4(Lr)}, v[{half}:{half+1}], v[{Pm}:{Pm+1}], {q4(Lr)}')
        zero(accO[1])
        A(f'{M16} {q4(O0)}, v[{vm}:{vm+1}], v[{Pm}:{Pm+1}], {q4(O0)}')
        zero(accO[2])
        A(f'{M16} {q4(O1)}, v[{vm+2}:{vm+3}], v[{Pm}:{Pm+1}], {q4(O1)}')
    pad(2)
    padd(Y[0],Y[1]); padd(Y[2],Y[3]); padd(Y[0],Y[2])
    pmul(Ys)
    for c in range(2): cv(vm+2*c,accv[c]); cv(vm+2*c+1,accv[c]+2)
    vmst=f'buffer_store_dwordx4 {q4(vm)}, v{vL16}, s[4:7], s{sVMo} offen {KS}'
    def vmk(k):
        if Dl['vp']==3 and k<4: A(f's_mov_b64 exec, s[{sWm+2*k}:{sWm+2*k+1}]\n{vmst}\ns_mov_b64 exec, -1')
        if Dl['vp']==10+k: A(vmst)
        if Dl['vp']==4 and k%2==0: A(f's_mov_b64 exec, s[{sWm+8+k}:{sWm+9+k}]\n{vmst}\ns_mov_b64 exec, -1')
    if Dl['vp']==0: A(vmst)
    if Dl['vp']==9:
        vl_=A.label('VMI'); vr_=A.label('VMR')
        A(f's_cmp_ge_u32 s{sStep}, 60\ns_cbranch_scc1 {vl_}\n{vr_}:')
        def c(vl_=vl_,vr_=vr_): A(f'{vl_}:\n{vmst}\ns_cmp_eq_u32 s{sStep}, 63\ns_cbranch_scc1 {done}\ns_branch {vr_}')
        cold.append(c)
    vmk(0)
    if Dl['vp']!=9: A(f's_cmp_eq_u32 s{sStep}, 63\ns_cbranch_scc1 {done}')
    stamp(3)
    if Dl['vp']==16: A(vmst)
    softpv(True)
    ostg=[VX,T(36)]
    ra=[T(0),T(4),T(8)]
    rl=T(10); m1,m2=T(42),T(43)
    sm_slow=A.label('SMX'); sm_ok=A.label('SMK')
    vmk(5)
    A(f'v_xor_b32 v{ra[2]}, 1536, v{vOw}')
    A(f'v_mov_b32 v{m2}, s{sHi20}\nv_med3_f32 v{m1}, v{Lr}, s{sLo20}, v{m2}\nv_rcp_f32 v{rl}, v{Lr}')
    A(f'v_cmp_neq_f32 vcc, v{m1}, v{Lr}')
    if 'forceslow' in X: A(f's_branch {sm_slow}')
    else: A(f's_cbranch_vccnz {sm_slow}')
    A(f'{sm_ok}:')
    def c():
        A(f'{sm_slow}:')
        tm=[T(4),T(20),T(24),T(28)]
        for j in range(4): A(f'ds_read_b128 {q4(tm[j])}, v{vL16} offset:{L_QK+1024*j}')
        A(f'ds_read_b128 {q4(Ms)}, v{vL16} offset:{L_MX}')
        padd(tm[0],tm[1]); padd(tm[2],tm[3]); padd(tm[0],tm[2])
        for r in range(4): A(f'v_mov_b32 v{Ys+r}, v{T(4)+r}')
        pmul(Ys)
        A(f"""
v_pk_add_f32 v[{Ms}:{Ms+1}], v[{Ms}:{Ms+1}], v[{Ms+2}:{Ms+3}]
v_add_f32 v{Ms}, v{Ms}, v{Ms+1}
v_mul_f32 v{Ms}, s{sSc2}, v{Ms}
v_max3_f32 v{m1}, v{Ys}, v{Ys+1}, v{Ys+2}
v_max3_f32 v{m1}, v{m1}, v{Ms}, v{Ys+3}
v_max_f32_dpp v{m1}, v{m1}, v{m1} row_ror:8 row_mask:0xf bank_mask:0xf
v_mov_b32 v{m2}, v{m1}
v_permlane32_swap_b32 v{m1}, v{m2}
v_max_f32 v{m1}, v{m1}, v{m2}
v_mov_b32 v{m2}, v{m1}
v_permlane16_swap_b32 v{m1}, v{m2}
v_max_f32 v{m1}, v{m1}, v{m2}
v_sub_f32 v{Ms}, v{Ms}, v{m1}
""")
        for r in range(4): A(f'v_sub_f32 v{Ys+r}, v{Ys+r}, v{m1}')
        softpv(False)
        A(f'v_xor_b32 v{ra[2]}, 1536, v{vOw}\nv_rcp_f32 v{rl}, v{Lr}\ns_branch {sm_ok}')
    cold.append(c)
    vmpos=len(A.items)
    zero(accO[3])
    Q.clear(); qop(lds_o[0],ostg[0]); qop(lds_o[1],ostg[1])
    own=T(12)
    for i,b in enumerate((O0,O0+2,O1,O1+2)):
        A(f'v_pk_mul_f32 v[{b}:{b+1}], v[{b}:{b+1}], v[{rl}:{rl+1}] op_sel_hi:[1,0]')
    for i,b in enumerate((O0,O0+2,O1,O1+2)):
        A(f'v_cvt_pk_bf16_f32 v{own+i}, v{b}, v{b+1}')
    if Dl['oo']: A(f'v_xor_b32 v{ra[0]}, 512, v{vOw}\nv_xor_b32 v{ra[1]}, 1024, v{vOw}')
    A(f'ds_write_b128 v{vOw}, {q4(own)} offset:{L_O}')
    wp=len(A.items); pop()
    if Dl['vp']==1: A(vmst)
    vP,vPa,vFa,vFd=T(32),vOr,(vCon if Dl['r1'] else T(34)),T(35)
    def flag(): A(f'buffer_store_dword v{vFd}, v{vFa}, s[4:7], s{sFlg1 if Dl["r1"] else sFlg} offen {st}')
    def probe(): A(f'buffer_load_dword v{vP}, v{vPa}, s[4:7], s{sPrb1 if Dl["r1"] else sPrb} offen sc1 ;nw')
    if Dl['fl']==-2:
        A(f's_add_u32 s{sStep1}, s{sStep}, 1\nv_bfe_u32 v{T(0)}, v{vL16}, 0, 6\nv_mov_b32 v{T(1)}, s{sStep1}\nv_lshlrev_b32 v{T(0)}, 4, v{T(0)}')
        A(f'buffer_store_dword v{T(1)}, v{T(0)}, s[4:7], s{sFlg} offen {st}')
    stamp(4)
    fr=[own,T(0),T(4),T(8)]
    def osm(k,P):
        op=('o',k,P)
        if m[op][0]=='l':
            i=lds_o.index(op); b=ostg[i%2]; B=f'v[{b}:{b+7}]'
        else: B=R(m[op])
        A(f'{SM} {q4(accO[P])}, {q4(fr[k])}, {B}, v{vIdx}')
        if m[op][0]=='l' and i+2<len(lds_o): qop(lds_o[i+2],ostg[i%2])
        pop()
    def osg(k):
        loc=m[('s',k//2)]
        A(f'{M32} {q4(accS)}, {q4(fr[k])}, {R(loc,4*(k%2),4)}, {"0" if k==0 else q4(accS)}')
        pop()
    osg(0)
    if not Dl['oo']: A(f'v_xor_b32 v{ra[0]}, 512, v{vOw}\nv_xor_b32 v{ra[1]}, 1024, v{vOw}')
    osm(0,0); osm(0,1)
    if Dl['vp']==2: A(vmst)
    A(f's_waitcnt lgkmcnt({sum(1 for it in A.items[wp:] if isinstance(it,Ins) and it.kind=="ds")})\ns_barrier')
    for k in range(1,4): A(f'ds_read_b128 {q4(fr[k])}, v{ra[k-1]} offset:{L_O}')
    if Dl['vp']==9: A(f'ds_write_b128 v{vYw}, {q4(vm)} offset:{L_QK}')
    osm(0,2); osm(0,3)
    stamp(5)
    pad(3)
    def tagit(r): A(f'v_and_or_b32 v{r}, v{r}, -2, s{sTag}')
    def pack(x,y,so,last=False):
        A(f'v_cvt_pk_bf16_f32 v{x}, v{x}, v{x+1}\nv_cvt_pk_bf16_f32 v{x+1}, v{x+2}, v{x+3}')
        A(f'v_cvt_pk_bf16_f32 v{x+3}, v{y+2}, v{y+3}\nv_cvt_pk_bf16_f32 v{x+2}, v{y}, v{y+1}')
        if last and 15 in Dl['pr']: probe()
        tagit(x+2); tagit(x)
        A(f'v_permlane16_swap_b32 v{x+1}, v{x+3}\nv_permlane16_swap_b32 v{x}, v{x+2}')
        if not last and Dl['po']:
            for j in range(Dl['po']): A(f'v_cndmask_b32 v{T(44)+j}, 0, v{vSel}, s[{sMask+2*j}:{sMask+2*j+1}]')
        A(f'buffer_store_dwordx4 {q4(x)}, v{vH1st}, s[4:7], {so} offen {st}')
    A(f'v_mov_b32 v{vFd}, s{sStep1}' if Dl['r1'] else f'v_bfe_u32 v{vFa}, v{vL16}, 0, 6\nv_mov_b32 v{vFd}, s{sStep1}\nv_lshlrev_b32 v{vFa}, 4, v{vFa}')
    if Dl['fl']==-1: flag()
    A(f'v_mov_b32 v{vP}, 0')
    cnt=[0]
    def tick():
        if cnt[0]==Dl['fl']: flag()
        if cnt[0] in Dl['pr']: probe()
        cnt[0]+=1
    for k in range(1,4): osg(k); tick()
    for k in range(1,4): osm(k,0); tick()
    sst=f'buffer_store_dwordx2 v[{accS}:{accS+1}], v{vH1s1}, s[4:7], 0 offen {st}'
    if not Dl['ne']: sst=f's_mov_b64 exec, 0xffffffff\n{sst}\ns_mov_b64 exec, -1'
    if Dl['se']:
        A(f'v_cvt_pk_bf16_f32 v{accS}, v{accS}, v{accS+1}')
        osm(1,1); tick(); A(f'v_cvt_pk_bf16_f32 v{accS+1}, v{accS+2}, v{accS+3}')
        osm(2,1); tick(); tagit(accS)
        osm(3,1); tick(); A(sst)
        if Dl['se']==2: osm(1,2); tick()
    else:
        for k in range(1,4): osm(k,1); tick()
        A(f'v_cvt_pk_bf16_f32 v{accS}, v{accS}, v{accS+1}\nv_cvt_pk_bf16_f32 v{accS+1}, v{accS+2}, v{accS+3}')
        tagit(accS); A(sst)
    pack(accO[0],accO[1],'0')
    sel=T(44); D=T(16)
    for j in range(Dl['po'],4): A(f'v_cndmask_b32 v{sel+j}, 0, v{vSel}, s[{sMask+2*j}:{sMask+2*j+1}]')
    for k in range(2 if Dl['se']==2 else 1,4): osm(k,2); tick()
    for k in range(1,4): osm(k,3); tick()
    A(f's_cmp_lg_u32 s{sW}, 3')
    pack(accO[2],accO[3],f's{s32k}',True)
    stamp(6)
    if 6 in stamps or ('tr',6) in X: A(f's_cmp_lg_u32 s{sW}, 3')
    nyoung=sum(1 for it in A.items[vmpos:] if isinstance(it,Ins) and it.vm)
    f1=sum((((a^c)|(b^c))<<(a*4+b*2+c)) for a in (0,1) for b in (0,1) for c in (0,1))
    f2=sum(((a|(b^c))<<(a*4+b*2+c)) for a in (0,1) for b in (0,1) for c in (0,1))
    def zacc(lo=0,hi=16,w=False):
        for i in range(lo,hi): A(f'v_mov_b32 v{T(i)}, 0')
    def h1loads(hd):
        for j in range(4): A(f'buffer_load_dwordx4 {q4(hd+4*j)}, v{vL16}, s[4:7], s{sH1ld} offen offset:{1024*j} sc1')
    def rbody(hd):
        ck=T(20)
        for j in range(4):
            A(f'{M32} {q4(D)}, {q4(hd+4*j)}, {q4(sel)}, {q4(D) if j else "0"}')
            if j==0: A(f'v_bitop3_b32 v{ck}, v{hd}, v{hd+2}, s{sTag} bitop3:{f1:#x}')
            else:
                A(f'v_bitop3_b32 v{ck}, v{ck}, v{hd+4*j}, s{sTag} bitop3:{f2:#x}')
                A(f'v_bitop3_b32 v{ck}, v{ck}, v{hd+4*j+2}, s{sTag} bitop3:{f2:#x}')
        A(f'v_and_b32 v{ck}, 1, v{ck}\nv_cmp_ne_u32 vcc, 0, v{ck}')
    def reduce(between=None,pre=False):
        p1=A.label('P1'); ok=A.label('P1K'); sec=A.label('P1S')
        hd=T(28)
        stamp(10)
        h1loads(hd)
        if between: between()
        rbody(T(0) if pre else hd); A(f's_cbranch_vccnz {sec if pre else p1}')
        A(f'{ok}:')
        A(f'v_permlane32_swap_b32 v{D}, v{D+2}\nv_permlane32_swap_b32 v{D+1}, v{D+3}')
        A(f'v_pk_add_f32 v[{D}:{D+1}], v[{D}:{D+1}], v[{D+2}:{D+3}]\nv_cvt_pk_bf16_f32 v{D}, v{D}, v{D+1}')
        A(f'buffer_store_dword v{D}, v{vH2st}, s[4:7], s{sH2c} offen {st}')
        stamp(11)
        def c():
            if pre:
                A(f'{sec}:\ns_add_u32 s{sSt+8}, s{sSt+8}, 1'); rbody(hd); A(f's_cbranch_vccz {ok}')
            A(f'{p1}:')
            h1loads(hd)
            A(f's_add_u32 s{sPoll}, s{sPoll}, 1\ns_add_u32 s{sSt+13}, s{sSt+13}, 1\ns_cmp_gt_u32 s{sPoll}, {POLLMAX}\ns_cbranch_scc1 {fail}')
            rbody(hd); A(f's_cbranch_vccz {ok}\ns_branch {p1}')
        cold.append(c)
    def prestage():
        for j in range(2): ldsop(lds_qk[j],stg[j])
    def book(ps=True):
        if ps: prestage()
        A(f"""
s_add_u32 s{sH2ld}, s{sH2c}, s{sW3k}
s_add_u32 s{sT3}, s{sH2c}, s{sLate}
s_xor_b32 s{sTag}, s{sTag}, 1
s_mov_b32 s{sT1}, s{sH2p}
s_mov_b32 s{sH2p}, s{sH2n}
s_mov_b32 s{sH2n}, s{sH2c}
s_mov_b32 s{sH2c}, s{sT1}
s_add_u32 s{sKVc}, s{sKn}, 8192
s_add_u32 s{sKn}, s{sKn}, {0 if 'samekv' in X else 32*16384}
s_add_u32 s{sPf}, s{sPf}, {32*16384}
s_add_u32 s{sKMo}, s{sKMo}, {32*2048}
s_mov_b32 s{sVMp}, s{sVMo}
s_add_u32 s{sVMo}, s{sVMo}, {32*4096}
s_add_u32 s{sStep}, s{sStep}, 1
s_mov_b32 s{sPoll}, 0
""")
        scal()
    def l_load(): A(f'buffer_load_dwordx4 {q4(late)}, v{vL16}, s[4:7], s{sT3} offen sc1')
    def gather(ne,g,dl,ps=False):
        p2=A.label('P2'); sec=A.label('P2S')
        regs=[VX,VX+4][:ne]; ck=T(16)
        def e_loads():
            for j in range(ne): A(f'buffer_load_dwordx4 {q4(regs[j])}, v{vL16}, s[4:7], s{sH2ld} offen offset:{2048*j} sc1')
        def body(tgt,nw):
            x=' ;nw' if nw is not None else ''
            for j,r in enumerate(regs):
                if nw is not None: A(f's_waitcnt vmcnt({nw+ne-1-j})')
                if j==0: A(f'v_max3_u32 v{ck}, v{r}, v{r+1}, v{r+2}{x}\nv_max_u32 v{ck}, v{ck}, v{r+3}{x}')
                else: A(f'v_max3_u32 v{ck}, v{ck}, v{r}, v{r+1}{x}\nv_max3_u32 v{ck}, v{ck}, v{r+2}, v{r+3}{x}')
                if j<ne-1: A(f'ds_write_b128 v{vMw}, {q4(r)} offset:{L_M+2048*j}{x}')
            A(f'v_cmp_eq_u32 vcc, -1, v{ck}\ns_cbranch_vccnz {tgt}')
            A(f'ds_write_b128 v{vMw}, {q4(regs[ne-1])} offset:{L_M+2048*(ne-1)}{x}')
            stamp(8)
            A(f's_branch {barA}')
        e_loads(); delay(g); e_loads()
        if ps: prestage()
        delay(dl-(4 if ps else 0)); l_load(); body(sec,ne+1)
        def c():
            A(f'{sec}:\ns_add_u32 s{sSt+9}, s{sSt+9}, 1'); body(p2,1)
            A(f'{p2}:')
            e_loads(); l_load()
            A(f's_add_u32 s{sPoll}, s{sPoll}, 1\ns_add_u32 s{sSt+14}, s{sSt+14}, 1\ns_cmp_gt_u32 s{sPoll}, {POLLMAX}\ns_cbranch_scc1 {fail}')
            body(p2,None)
        cold.append(c)
    W1,W2,W3,W2n=[A.label(x) for x in ('W1','W2','W3','W2X')]
    def setml(): A(f's_mov_b32 s{sPoll}, 0')
    delay(Dl['lb']); A(f's_cbranch_scc1 {W3}')
    sp=A.label('SPIN'); go=A.label('GO')
    def pchk(tgt,ready):
        A(f'v_cmp_gt_u32 vcc, s{sStep1}, v{vP} ;nw')
        if Dl['xo']: A(f's_andn2_b64 vcc, vcc, s[{sOwn}:{sOwn+1}]\ns_cbranch_scc{0 if ready else 1} {tgt}')
        else: A(f's_cbranch_vcc{"z" if ready else "nz"} {tgt}')
    pchk(sp,False)
    delay(Dl['z0'])
    A(f'{go}:\ns_barrier'); stamp(9)
    def c():
        A(f'{sp}:\ns_mov_b32 s{sPoll}, 0\n{sp}_l:')
        for i in range(4):
            probe(); A(f's_add_u32 s{sSt+11}, s{sSt+11}, 1'); delay(Dl['sp'])
            pchk(f'{sp}_d',True)
        A(f's_add_u32 s{sPoll}, s{sPoll}, 1\ns_cmp_lt_u32 s{sPoll}, 32\ns_cbranch_scc1 {sp}_l\n{sp}_d:')
        delay(Dl['z1'])
        A(f's_branch {go}')
    cold.append(c)
    zacc(); setml()
    A(f's_add_u32 s{sT1}, s{sStep}, 3\ns_lshr_b32 s{sT1}, s{sT1}, 2\ns_add_u32 s{sT1}, s{sT1}, 1\ns_min_u32 s{sT1}, s{sT1}, 16')
    A(f'v_mov_b32 v{T(20)}, {L_W+4*WREG}\nds_read2_b32 v[{T(20)}:{T(21)}], v{T(20)} offset0:64 offset1:128')
    A(f'v_min_u32 v{T(20)}, v{T(20)}, v{T(21)}\nv_readfirstlane_b32 s{sT2}, v{T(20)}\ns_max_u32 s{sKVok}, s{sKVok}, s{sT2}')
    emit_wait_kv(A,sT1,fail,T(26))
    delay(Dl['d1']); book(); gather(1,Dl['g'],Dl['al'])
    A(f'{W3}:\ns_cmp_lg_u32 s{sW}, 0\ns_cbranch_scc1 {W2}')
    if Dl['a0']>=0:
        delay(Dl['a0']); h1loads(T(0)); A('s_barrier'); delay(Dl['a1']); reduce(setml,True); book(False); zacc(w=True); delay(max(0,Dl['a2']-12)); gather(2,Dl['g'],Dl['al'],True)
    else:
        A('s_barrier'); delay(Dl['a1']); reduce(lambda: (zacc(),setml())); book(); delay(Dl['a2']); gather(2,Dl['g'],Dl['al'])
    A(f'{W2}:\ns_cmp_lg_u32 s{sW}, 2\ns_cbranch_scc1 {W1}')
    ad=T(21); hq=T(28); cq=T(20); p1=A.label('Q1'); okq=A.label('Q1K')
    A(f'v_lshrrev_b32 v{ad}, 5, v{vL16}\nv_lshlrev_b32 v{ad}, 7, v{ad}\nv_and_or_b32 v{ad}, v{vL16}, 16, v{ad}')
    def q1body(hq=hq):
        A(f'{M32} {q4(D)}, {q4(hq)}, {q4(sel)}, 0')
        A(f'v_bitop3_b32 v{cq}, v{hq}, v{hq+2}, s{sTag} bitop3:{f1:#x}\nv_and_b32 v{cq}, 1, v{cq}\nv_cmp_ne_u32 vcc, 0, v{cq}')
    q1ld=f'buffer_load_dwordx4 {q4(hq)}, v{ad}, s[4:7], s{sH1ld} offen sc1'
    pre=Dl['a0']>=0; secq=A.label('Q1S')
    if pre:
        delay(Dl['c0']); A(q1ld.replace(q4(hq),q4(T(32)))); A('s_barrier'); delay(Dl['c1']); A(q1ld); zacc(); setml(); q1body(T(32))
    else:
        A('s_barrier'); delay(Dl['c1']); A(q1ld); zacc(); setml(); q1body()
    A(f's_cbranch_vccnz {secq if pre else p1}\n{okq}:')
    A(f"""
v_pk_add_f32 v[{D}:{D+1}], v[{D}:{D+1}], v[{D+2}:{D+3}]
v_permlane32_swap_b32 v{D}, v{D+1}
v_add_f32 v{D}, v{D}, v{D+1}
v_mov_b32 v{D+1}, v{D}
v_permlane16_swap_b32 v{D}, v{D+1}
v_add_f32 v{D}, v{D}, v{D+1}
v_mov_b32 v{D+1}, v{D}
v_permlane32_swap_b32 v{D}, v{D+1}
v_cvt_pk_bf16_f32 v{D}, v{D}, v{D+1}
buffer_store_dword v{D}, v{vH2st}, s[4:7], s{sH2c} offen {st}
""")
    stamp(11)
    def c():
        if pre:
            A(f'{secq}:\ns_add_u32 s{sSt+8}, s{sSt+8}, 1'); q1body(); A(f's_cbranch_vccz {okq}')
        A(f'{p1}:\n{q1ld}')
        A(f's_add_u32 s{sPoll}, s{sPoll}, 1\ns_add_u32 s{sSt+13}, s{sSt+13}, 1\ns_cmp_gt_u32 s{sPoll}, {POLLMAX}\ns_cbranch_scc1 {fail}')
        q1body(); A(f's_cbranch_vccz {okq}\ns_branch {p1}')
    cold.append(c)
    book(not pre); delay(Dl['c2']+(4 if pre else 0)); gather(2,Dl['g'],Dl['al'],pre)
    A(f'{W1}:')
    zacc(); setml(); A('s_barrier'); delay(Dl['b1']); reduce(); book(); delay(Dl['b2']); l_load(); stamp(8); A(f's_branch {barA}')
    for c in cold: c()

def emit_chain(A, fail, end, D1=0, D2=2, stamps=(), modes=('',), X=()):
    global QKPOS
    QKPOS=QKV[(D1 if isinstance(D1,dict) else {}).get('qp',QPDEF)]
    m, qk_order, lds_qk, lds_o = operand_map()
    emit_chain_init(A, m, X)
    lp=A.label('CB'); ck=A.label('CBC')
    A(f's_mov_b32 s{sPoll}, 0\ns_branch {ck}\n{lp}:')
    status_loads(A)
    A(f"""
s_add_u32 s{sPoll}, s{sPoll}, 1
s_cmp_gt_u32 s{sPoll}, {POLLMAX}
s_cbranch_scc1 {fail}
{ck}:
v_add3_u32 v65, v65, v66, v67
v_add3_u32 v68, v68, v69, v70
v_add3_u32 v65, v65, v68, v71
v_add_u32 v65, v65, v64
v_min_u32 v{VX+2}, v{VX+2}, v{VX+3}
v_readfirstlane_b32 s{sT1}, v{VX+1}
v_readfirstlane_b32 s{sT2}, v64
v_readfirstlane_b32 s{sT3}, v65
v_readfirstlane_b32 s{sKVok}, v{VX+2}
s_cmp_lt_u32 s{sT1}, 8
s_cbranch_scc1 {lp}
s_cmp_lt_u32 s{sT2}, 32
s_cselect_b32 s{sMode}, 1, 0
s_cselect_b32 s{sT3}, s{sT3}, 256
s_cmp_lt_u32 s{sT3}, 256
s_cbranch_scc1 {lp}
s_cmp_ge_u32 s{sStep1}, 8
s_cselect_b32 s{sKVok}, s{sKVok}, 0
s_mov_b32 s{sT1}, 1
""")
    emit_wait_kv(A,sT1,fail,VX)
    A(f'buffer_load_dwordx4 {q4(KX)}, v{vKx}, s[4:7], s{sKVc} offen sc1')
    A(f'buffer_load_dwordx4 {q4(KX+4)}, v{vKx}, s[4:7], s{sKVc} offen offset:256 sc1')
    A(f's_add_u32 s{sKVc}, s{sKVc}, 8192')
    A(f's_xor_b32 s{sWbm}, s{sW}, 3\ns_or_b32 s{sWbm}, s{sWbm}, s{sH}')
    A(f's_mov_b32 s{sVMp}, {WS_BYTES}')
    A(f's_sub_u32 s{sFlg1}, s{sFlg}, {L_C}\ns_and_b32 s{sPrb1}, s{sPrb}, {0xfffffcff}')
    A(f's_mov_b32 s{sG2}, 0\ns_mov_b32 s{sG2+1}, -1')
    A(f's_lshl_b32 s{sOwn}, 1, s{sH}\ns_mov_b32 s{sOwn+1}, s{sOwn}')
    A(f's_mov_b32 s{sFlagM2}, s{sFlagM}\ns_mov_b32 s{sPfK}, {32*16384-8192-2048}')
    A(f's_sub_u32 s{sFlagKVd}, s{sFlagKV}, {L_C+256}\ns_cmp_eq_u32 s{sW}, 3\ns_cselect_b32 s{sKVok}, s{sKVok}, 16')
    A(f'v_mov_b32 v{VX}, {L_W+4*WREG}\nv_mov_b32 v{VX+1}, 0\nds_write2_b32 v{VX}, v{VX+1}, v{VX+1} offset0:64 offset1:128')
    for i in range(16):
        if not ('itrace' in X and 4<=i<10): A(f's_mov_b32 s{sSt+i}, 0')
    if 'rdy' in X: A('s_memrealtime s[90:91]\ns_waitcnt lgkmcnt(0)\ns_mov_b32 s99, s90\ns_mov_b32 s90, 0\ns_mov_b32 s91, 0')
    if 'initstamp' in X: A(f's_memtime s[{sSt+10}:{sSt+11}]\ns_waitcnt lgkmcnt(0)\ns_sub_u32 s{sSt+10}, s{sSt+10}, s72\ns_mov_b32 s{sSt+11}, 0')
    done=A.label('CDONE')
    trcopy='\n'.join(f's_mov_b32 s{sSt+4+i}, s{sTr+2*i}' for i in range(6))+'\n' if any(isinstance(x,tuple) and x[0]=='tr' for x in X) else ''
    if len(modes)==2:
        A(f's_cmp_lg_u32 s{sMode}, 0\ns_cbranch_scc1 CSTEP_1_prep')
    for i,st in enumerate(modes):
        emit_chain_loop(A, m, qk_order, lds_qk, lds_o, st, i, fail, done, D1, D2, list(stamps), X)
    A(f"""
{done}:
buffer_store_dwordx4 {q4(T(32))}, v{vL16}, s[4:7], s{sVMo} offen sc1
s_waitcnt lgkmcnt(0)
{trcopy}s_waitcnt vmcnt(0)
s_barrier
s_cmp_lg_u32 s{sW}, 3
s_cbranch_scc1 {end}
v_mov_b32 v{T(0)}, 0
v_mov_b32 v{T(1)}, 64
buffer_store_dword v{T(1)}, v{T(0)}, s[4:7], s{sFlagM2} offen sc1
s_branch {end}
""")
```

```python
import sys, os
sys.path.insert(0, os.path.dirname(__file__))
from asmgen import *
from common import *
import chain, workb
NAME='concat_heads__grouped_kv_mqa__memory_aug_recurrent_mem_tr__prompt'

def build(chain_kw=None, with_a=True, prof=False, XK=(), XV=(), warm=False, defer=False, pseg=63, touch=False, fakexcc=0, ml=70):
    A=Asm()
    workb.PROF=prof; workb.DEFER=defer; workb.PROFSEG=pseg
    sH,sW=12,13
    fake={0:'',1:'s_min_u32 s20, s20, 5',2:'s_lshr_b32 s21, s2, 3\ns_and_b32 s21, s21, 1\ns_cmp_eq_u32 s20, 0\ns_cselect_b32 s21, s21, 0\ns_add_u32 s20, s20, s21',3:'s_max_u32 s20, s20, 1'}[fakexcc]
    A(f'''
s_cmp_ge_u32 s2, 256
s_cbranch_scc1 L_exit
s_load_dwordx2 s[66:67], s[0:1], {KA['dbg']}
s_getreg_b32 s20, hwreg(HW_REG_XCC_ID)
s_and_b32 s20, s20, 7
{fake}
v_lshrrev_b32 v1, 6, v0
v_readfirstlane_b32 s{sW}, v1
s_mov_b32 s{chain.sMode}, 0
''')
    if prof: A('s_memrealtime s[96:97]\ns_memtime s[100:101]')
    if warm:
        A(f'''
s_cmp_lt_u32 s20, 4
s_cbranch_scc1 L_nowarm
s_load_dwordx2 s[24:25], s[0:1], {KA['B_Wq']}
s_load_dwordx2 s[28:29], s[0:1], {KA['B_Wk']}
s_load_dwordx2 s[32:33], s[0:1], {KA['B_Wv']}
s_sub_u32 s21, s20, 4
s_lshl_b32 s21, s21, 5
s_lshr_b32 s22, s2, 3
s_add_u32 s21, s21, s22
s_lshl_b32 s21, s21, 2
s_add_u32 s21, s21, s{sW}
s_mul_i32 s21, s21, 9216
v_and_b32 v2, 63, v0
v_lshlrev_b32 v2, 6, v2
s_mov_b32 s26, {576*8192}
s_mov_b32 s27, 0x20000
s_mov_b32 s30, {576*8192}
s_mov_b32 s31, 0x20000
s_mov_b32 s34, {576*8192}
s_mov_b32 s35, 0x20000
s_add_u32 s22, s21, 4096
s_add_u32 s23, s21, 5120
s_waitcnt lgkmcnt(0)
''')
        for i,srd in enumerate(('s[24:27]','s[28:31]','s[32:35]')):
            for j,so in enumerate((21,22,23)): A(f'buffer_load_dword v{240+3*i+j}, v2, {srd}, s{so} offen')
        A('L_nowarm:')
    if touch:
        A(f'''
s_cmp_lg_u32 s20, 0
s_cbranch_scc1 L_notouch
s_cmp_eq_u32 s{sW}, 0
s_cbranch_scc1 L_notouch
s_load_dwordx4 s[24:27], s[0:1], {KA['B_Wq']}
s_load_dwordx4 s[28:31], s[0:1], {KA['B_Wv']}
v_and_b32 v2, 63, v0
v_mul_u32_u24 v2, 24576, v2
s_add_u32 s21, s{sW}, -1
s_mul_i32 s21, s21, {64*24576}
v_add_u32 v2, s21, v2
s_waitcnt lgkmcnt(0)
global_load_dword v240, v2, s[24:25]
global_load_dword v241, v2, s[26:27]
global_load_dword v242, v2, s[28:29]
global_load_dword v243, v2, s[30:31]
L_notouch:
''')
    A(f'''
s_waitcnt lgkmcnt(0)
s_cmp_lg_u32 s{sW}, 0
s_cbranch_scc1 L_gotrole
s_mov_b64 exec, 1
s_lshl_b32 s21, s20, 2
v_mov_b32 v2, s21
v_mov_b32 v3, 1
global_atomic_add v4, v2, v3, s[66:67] sc0
v_readfirstlane_b32 s22, v4
s_cmp_lt_u32 s22, 32
s_cbranch_scc1 L_tk
v_mov_b32 v2, 0
global_atomic_add v4, v2, v3, s[66:67] offset:{D_OVF} sc0
v_readfirstlane_b32 s23, v4
s_mov_b32 s40, 0
L_ovf:
global_load_dwordx4 v[4:7], v2, s[66:67] sc1
global_load_dwordx4 v[8:11], v2, s[66:67] offset:16 sc1
s_add_u32 s40, s40, 1
s_cmp_gt_u32 s40, 400000
s_cbranch_scc1 L_norole
''')
    for i in range(8): A(f'v_readfirstlane_b32 s{24+i}, v{4+i}')
    A('s_mov_b32 s32, 0')
    for i in range(8): A(f's_add_u32 s32, s32, s{24+i}')
    A('s_cmp_lt_u32 s32, 256\ns_cbranch_scc1 L_ovf')
    for i in range(8):
        nx=f'L_ovf{i}'
        A(f'''
s_min_u32 s33, s{24+i}, 32
s_sub_u32 s34, 32, s33
s_cmp_ge_u32 s23, s34
s_cbranch_scc1 {nx}
s_mov_b32 s20, {i}
s_add_u32 s22, s33, s23
s_branch L_tk
{nx}:
s_sub_u32 s23, s23, s34
''')
    A(f'''
L_norole:
s_mov_b32 s20, 7
s_mov_b32 s22, 31
L_tk:
s_lshl_b32 s20, s20, 5
s_add_u32 s20, s20, s22
v_mov_b32 v2, 0
v_mov_b32 v3, s20
ds_write_b32 v2, v3
s_mov_b64 exec, -1
s_waitcnt lgkmcnt(0)
L_gotrole:
s_barrier
v_mov_b32 v2, 0
ds_read_b32 v3, v2
v_readfirstlane_b32 s20, v3
s_barrier
s_mov_b32 s98, s20
s_and_b32 s{sH}, s20, 31
s_cmp_lt_u32 s20, 32
s_cbranch_scc1 L_chain
s_cmp_lt_u32 s20, 64
s_cbranch_scc1 L_k
s_cmp_lt_u32 s20, 96
s_cbranch_scc1 L_v
s_cmp_lt_u32 s20, 128
s_cbranch_scc1 L_q
''')
    A(f'''
s_sub_u32 s{sH}, s20, 128
s_cmp_lt_u32 s20, 164
s_cbranch_scc1 L_op
s_sub_u32 s{sH}, s20, 164
s_cmp_lt_u32 s20, 228
s_cbranch_scc1 L_a
s_sub_u32 s{sH}, s20, 228
s_cmp_lt_u32 s20, 236
s_cbranch_scc1 L_fi
s_branch L_end
''')
    A('L_fi:'); workb.emit_flaginit(A,'L_end')
    A('L_k:'); workb.emit_proj(A,'K','L_fail','L_end',XK)
    A('L_v:'); workb.emit_proj(A,'V','L_fail','L_end',XV)
    A('L_q:'); workb.emit_proj(A,'Q','L_fail','L_end')
    A('L_op:'); workb.emit_outproj(A,'L_fail','L_end')
    A('L_a:')
    if with_a:
        import worka
        worka.emit_a(A,'L_fail','L_end')
    else: A('s_branch L_end')
    A('L_chain:')
    A.merge_lat=ml; A.merge_from=len(A.items)
    kw=dict(modes=('','sc1'),X=('rdy',) if prof else ()); kw.update(chain_kw or {})
    chain.emit_chain(A,'L_fail','L_end',**kw)
    A('L_fail:\nL_end:')
    if prof:
        A(f'''
s_memrealtime s[94:95]
s_memtime s[92:93]
s_load_dwordx2 s[4:5], s[0:1], {KA['ws']}
s_mov_b64 exec, 1
s_waitcnt lgkmcnt(0)
s_lshl_b32 s98, s98, 2
s_add_u32 s98, s98, s{sW}
s_lshl_b32 s98, s98, 4
s_sub_u32 s92, s92, s100
s_add_u32 s98, s98, 0x8000000
v_mov_b32 v0, s98
v_mov_b32 v2, s96
v_mov_b32 v3, s94
v_mov_b32 v4, s92
v_mov_b32 v5, s99
global_store_dwordx4 v0, v[2:5], s[4:5]
''')
    A('L_exit:\ns_endpgm')
    body=A.finalize()
    hdr=open(os.path.join(os.path.dirname(__file__),'..','cdna_kernels',NAME+'.s.ref')).read().split('; Override launch')[0]
    txt=hdr+f'''; One persistent launch: 256 workgroups, one per CU, roles chosen at run time (see gen/ comments in the body).
; @launch grid=(256,1,1) block=(256,1,1) lds=163840
.amdgcn_target "amdgcn-amd-amdhsa--gfx950"
.text
.globl {NAME}_kernel
.p2align 8
.type {NAME}_kernel,@function
{NAME}_kernel:
{body}
.section .rodata,"a"
.p2align 6
.amdhsa_kernel {NAME}_kernel
  .amdhsa_next_free_vgpr 512
  .amdhsa_next_free_sgpr 102
  .amdhsa_accum_offset 256
  .amdhsa_group_segment_fixed_size 0
  .amdhsa_kernarg_size 120
  .amdhsa_user_sgpr_count 2
  .amdhsa_user_sgpr_kernarg_segment_ptr 1
  .amdhsa_system_sgpr_workgroup_id_x 1
.end_amdhsa_kernel
'''
    return txt, A.stats

if __name__=='__main__':
    txt,st=build(with_a=os.path.exists(os.path.join(os.path.dirname(__file__),'worka.py')))
    out=sys.argv[1] if len(sys.argv)>1 else os.path.join(os.path.dirname(__file__),'..','cdna_kernels',NAME+'.s')
    open(out,'w').write(txt); print(st, len(txt))
```

```python
from asmgen import *
from common import *
import math, struct

L_M  = 0
L_O  = 7168
L_QK = 9216
L_MX = L_QK+4096
L_C  = L_MX+1024
L_S  = L_C+64
L_W  = L_S+1024
WREG = 36864
assert L_W+4*WREG<=163840

vL16,vIdx,vS16,vS16b,vWl,vYw,vOw,vOr,vMw,vH1st,vH1s1,vH2st,vKx,vMl_,vSel,vCon = range(16)
vPfa = vOr
KX = 16
VX = 24
T = lambda i: 32+i
sH,sW,sStep,sU = 12,13,14,15
sTag,sH1ld,sKVc = 16,17,18
sH2c,sH2n,sH2p = 19,20,21
sKn,sKMo,sVMo = 24,25,26
sScale = 27
sMask = 28
sT0,sT1,sT2,sT3 = 36,37,38,39
sPoll = 40
sH2ld = 41
sFlagM = 42
sFlagKV = 43
sKVok = 44
sH2pz = 45
sHi = 46
sW3k = 48
s32k = 49
sMode = 50
sW256 = 52
sStep1 = 53
sPrb = 54
sFlg = 55
sLate = 22
sSc2 = 70
sLo20 = 69
sHi20 = 23
sPf = 27
sFlagKVd = 68
sPfK = 42
sFlagM2 = 8
sOwn = 10
sG2 = 2
sWm = 56
sWbm = 9
sVMp = 64
sPz = 65
sNeed = 62
sFlg1 = 60
sPrb1 = 61
sFlagMw = 51
sTr = 56
sSt = 80
POLLMAX=200000

TORD=[0,2,4,6,8,1,3,5,7]
QKV=[[1,3,7,11,14,18,22,25,28,32],[0,4,8,12,16,20,22,26,28,32],[0,2,6,8,12,16,20,24,28,32],[0,4,8,12,16,18,22,24,28,32]]
QPDEF=1
NZG=0
NREP=4
QKPOS=QKV[0]; QKBUF=[0,1]*5
def operand_map():
    qk_order=[]
    for t in TORD:
        qk_order += [('q',t,0),('q',t,1),('k',t,0),('k',t,1)]
    lds_qk = [qk_order[n] for n in QKPOS]
    lds_o = [('o',0,2),('o',0,3),('o',2,0),('o',3,0),('o',3,1),('o',1,2),('o',1,3),('o',3,3)]
    m={}
    li=0
    for op in lds_o+lds_qk:
        m[op]=('l',li); li+=1
    rest=[op for op in qk_order if op not in m]
    rest+=[('v',t,c) for t in range(9) for c in range(2)]
    rest+=[('o',k,P) for k in range(4) for P in range(4) if ('o',k,P) not in m]
    rest+=[('s',0),('s',1)]
    regs=[('v',80+8*i) for i in range(22)]+[('a',8*i) for i in range(32)]
    assert len(rest)==len(regs)==54
    for op,r in zip(rest,regs): m[op]=r
    return m, qk_order, lds_qk, lds_o

def R(loc,off=0,n=8):
    return vr(loc[1]+off,n,loc[0])
def q4(b): return f'v[{b}:{b+3}]'

def status_loads(A):
    A(f"""
v_mov_b32 v{VX}, 0
global_load_dwordx4 v[64:67], v{VX}, s[66:67] offset:{D_TICK} sc1
global_load_dwordx4 v[68:71], v{VX}, s[66:67] offset:{D_TICK+16} sc1
global_load_dword v64, v{VX}, s[66:67] offset:{D_TICK0} sc1
global_load_dword v{VX+1}, v{VX}, s[66:67] offset:{D_INIT} sc1
buffer_load_dword v{VX+2}, v{VX}, s[4:7], s{sFlagKV} offen sc1
buffer_load_dword v{VX+3}, v{VX}, s[4:7], s{sFlagKV} offen offset:256 sc1
""")

def emit_chain_init(A, m, X=()):
    if 'rdyE' in X: A('s_memrealtime s[90:91]\ns_waitcnt lgkmcnt(0)\ns_mov_b32 s99, s90')
    l,n,g,n7,n8,g1,g2,r4,cc=['v%d'%i for i in range(32,41)]
    t0,t1,t2='v41','v42','v43'
    A(f"""
s_load_dwordx2 s[4:5], s[0:1], {KA['ws']}
s_load_dwordx2 s[56:57], s[0:1], {KA['B_Wq']}
s_load_dwordx2 s[58:59], s[0:1], {KA['B_Wk']}
s_load_dwordx2 s[60:61], s[0:1], {KA['B_Wv']}
s_load_dwordx2 s[62:63], s[0:1], {KA['B_Wo']}
s_load_dwordx2 s[64:65], s[0:1], {KA['B_mem0']}
s_load_dwordx2 s[66:67], s[0:1], {KA['dbg']}
v_and_b32 {l}, 63, v0
v_and_b32 {n}, 15, {l}
v_lshrrev_b32 {g}, 4, {l}
v_lshlrev_b32 v{vL16}, 4, {l}
v_and_b32 {n7}, 7, {n}
v_lshrrev_b32 {n8}, 3, {n}
v_and_b32 {g1}, 1, {g}
v_lshrrev_b32 {g2}, 1, {g}
v_lshrrev_b32 {r4}, 2, {n}
v_and_b32 {cc}, 3, {n}
v_mov_b32 {t0}, 0x4444
v_mov_b32 {t1}, 0xeeee
v_cmp_eq_u32 s[{sHi}:{sHi+1}], 1, {n8}
v_cndmask_b32 v{vIdx}, {t0}, {t1}, s[{sHi}:{sHi+1}]
s_mul_i32 s{sT0}, s{sW}, {WREG}
s_add_u32 s{sT0}, s{sT0}, {L_W}
v_add_u32 v{vWl}, s{sT0}, v{vL16}
s_lshl_b32 s{sT1}, s{sW}, 10
v_add_u32 v{vYw}, s{sT1}, v{vL16}
v_lshlrev_b32 {t0}, 7, {g}
v_lshl_add_u32 {t0}, {n7}, 4, {t0}
v_bfe_u32 v{vOr}, v{vL16}, 2, 7
s_lshl_b32 s{sT1}, s{sW}, 9
v_add_u32 v{vOw}, s{sT1}, {t0}
s_lshl_b32 s{sW256}, s{sW}, 2
s_lshl_b32 s{sW3k}, s{sW}, 10
s_cmp_eq_u32 s{sW}, 2
s_cselect_b32 s{sW3k}, 6144, s{sW3k}
s_cmp_eq_u32 s{sW}, 3
s_cselect_b32 s{sW3k}, 4096, s{sW3k}
s_lshr_b32 s{sT1}, s{sW3k}, 1
v_add_u32 v{vMw}, s{sT1}, v{vL16}
; vH1st = (16w + l/8)*4096 + h*128 + (l%8)*16
v_lshrrev_b32 {t0}, 3, {l}
v_lshlrev_b32 {t0}, 12, {t0}
v_lshl_add_u32 {t0}, {n7}, 4, {t0}
s_lshl_b32 s{sT1}, s{sW}, 16
s_lshl_b32 s{sT2}, s{sH}, 7
s_add_u32 s{sT1}, s{sT1}, s{sT2}
v_add_u32 v{vH1st}, s{sT1}, {t0}
; vH1s1 = (64 + 2w + n8)*4096 + h*128 + n7*16 + g1*8
v_lshlrev_b32 {t0}, 12, {n8}
v_lshl_add_u32 {t0}, {n7}, 4, {t0}
v_lshl_add_u32 {t0}, {g1}, 3, {t0}
s_lshl_b32 s{sT1}, s{sW}, 13
s_add_u32 s{sT1}, s{sT1}, s{sT2}
s_add_u32 s{sT1}, s{sT1}, {64*4096}
v_add_u32 v{vH1s1}, s{sT1}, {t0}
s_lshr_b32 s{sU}, s{sH}, 3
s_lshl_b32 s{sU}, s{sU}, 4
s_and_b32 s{sT1}, s{sH}, 7
s_add_u32 s{sU}, s{sU}, s{sT1}
s_lshl_b32 s{sT1}, s{sW}, 3
s_add_u32 s{sU}, s{sU}, s{sT1}
s_add_u32 s{sT1}, s{sH}, 64
s_cmp_eq_u32 s{sW}, 2
s_cselect_b32 s{sU}, s{sT1}, s{sU}
s_cmp_eq_u32 s{sW}, 3
s_cselect_b32 s{sU}, 72, s{sU}
v_lshlrev_b32 {t0}, 4, {n7}
v_lshl_add_u32 {t0}, {g1}, 3, {t0}
v_lshl_add_u32 {t0}, {g2}, 2, {t0}
s_lshl_b32 s{sT1}, s{sU}, 7
v_add_u32 v{vH2st}, s{sT1}, {t0}
s_lshr_b32 s{sT1}, s{sH}, 2
s_add_u32 s{sT1}, s{sT1}, 64
s_lshl_b32 s{sT1}, s{sT1}, 7
s_and_b32 s{sT2}, s{sH}, 3
s_lshl_b32 s{sT2}, s{sT2}, 2
s_add_u32 s{sT1}, s{sT1}, s{sT2}
v_lshlrev_b32 {t0}, 4, {n7}
v_add_u32 {t0}, s{sT1}, {t0}
s_cmp_eq_u32 s{sW}, 2
s_cselect_b64 vcc, -1, 0
v_cndmask_b32 v{vH2st}, v{vH2st}, {t0}, vcc
s_lshl_b32 s{sT1}, s{sW}, 11
v_lshlrev_b32 {t0}, 9, {g}
v_add_u32 {t0}, s{sT1}, {t0}
v_lshl_add_u32 {t1}, {n}, 4, {t0}
v_mov_b32 v{vKx}, {t1}
s_lshl_b32 s{sT1}, s{sW}, 10
v_add_u32 v{vMl_}, s{sT1}, v{vL16}
; selector value + masks
v_mov_b32 {t0}, 0x3f80
v_mov_b32 {t1}, 0x3f800000
v_and_b32 {t2}, 1, {n}
v_cmp_eq_u32 vcc, 0, {t2}
v_cndmask_b32 v{vSel}, {t1}, {t0}, vcc
v_lshrrev_b32 {t2}, 1, {n7}
v_cmp_eq_u32 s[{sMask}:{sMask+1}], 0, {t2}
v_cmp_eq_u32 s[{sMask+2}:{sMask+3}], 1, {t2}
v_cmp_eq_u32 s[{sMask+4}:{sMask+5}], 2, {t2}
v_cmp_eq_u32 s[{sMask+6}:{sMask+7}], 3, {t2}
v_mov_b32 v{vCon}, {L_C}
v_lshlrev_b32 {t0}, 1, {g1}
v_cmp_eq_u32 vcc, {t0}, {t2}
v_cndmask_b32 v{vS16}, 0, v{vSel}, vcc
v_add_u32 {t0}, 1, {t0}
v_cmp_eq_u32 vcc, {t0}, {t2}
v_cndmask_b32 v{vS16b}, 0, v{vSel}, vcc
; init-only address regs: v16 dma voffset qkv ; v17..v19 tr bases ; v20,v21 mem0 ; v71..v79 Wo dma voffsets
v_lshlrev_b32 {t0}, 1, {g1}
v_xor_b32 {t0}, {t0}, {n}
v_lshlrev_b32 {t0}, 4, {t0}
v_lshl_add_u32 {t0}, {g}, 13, {t0}
s_lshl_b32 s{sT1}, s{sH}, 8
v_add_u32 v16, s{sT1}, {t0}
v_xor_b32 v28, 64, v16
v_xor_b32 v29, 128, v16
v_xor_b32 v30, 192, v16
v_lshrrev_b32 {t1}, 1, {r4}
v_and_b32 {t2}, 1, {r4}
v_lshlrev_b32 {t0}, 2, {g1}
v_lshl_add_u32 {t0}, {t1}, 3, {t0}
v_add_u32 {t0}, {t0}, {t2}
v_lshlrev_b32 {t0}, 8, {t0}
v_lshl_add_u32 {t0}, {cc}, 3, {t0}
v_lshl_add_u32 v17, {g1}, 1, {t2}
v_lshl_add_u32 v17, {t1}, 2, v17
s_lshl_b32 s{sT1}, s{sW}, 1
v_xor_b32 v17, s{sT1}, v17
v_lshl_add_u32 {t0}, v17, 5, {t0}
v_xor_b32 v23, 32, {t0}
v_mul_u32_u24 v22, {WREG}, {g2}
v_add_u32 v22, {L_W}, v22
v_add_u32 v17, {t0}, v22
v_add_u32 v23, v23, v22
v_add_u32 v22, {2*WREG}, v17
v_add_u32 v31, {2*WREG}, v23
v_lshlrev_b32 {t0}, 4, {g1}
v_lshl_add_u32 {t0}, {g2}, 2, {t0}
v_add_u32 {t0}, {t0}, {t2}
v_mul_u32_u24 {t0}, 288, {t0}
v_lshl_add_u32 {t0}, {t1}, 6, {t0}
v_lshl_add_u32 {t0}, {cc}, 3, {t0}
v_add_u32 v18, s{sT0}, {t0}
v_lshl_add_u32 {t0}, {g}, 2, {r4}
v_mul_u32_u24 {t0}, 288, {t0}
v_lshl_add_u32 {t0}, {cc}, 3, {t0}
v_add_u32 {t0}, 256, {t0}
v_add_u32 v19, s{sT0}, {t0}
""")
    for ii in range(9):
        A(f"""
v_add_u32 {t0}, {64*ii}, {l}
v_mul_u32_u24 {t1}, 3641, {t0}
v_lshrrev_b32 {t1}, 16, {t1}
v_mul_u32_u24 {t2}, 18, {t1}
v_sub_u32 {t2}, {t0}, {t2}
v_mul_u32_u24 {t1}, 1152, {t1}
v_lshl_add_u32 v{71+ii}, {t2}, 4, {t1}""")
    A(f"""
v_mul_u32_u24 {t0}, 1152, {n7}
v_lshl_add_u32 {t0}, {n8}, 4, {t0}
v_lshl_add_u32 v20, {g}, 5, {t0}
v_mul_u32_u24 {t1}, 288, {g}
v_add_u32 v21, {t0}, {t1}
s_waitcnt lgkmcnt(0)
s_mov_b32 s6, {WS_BYTES}
s_mov_b32 s7, 0x20000
s_mov_b32 s10, {0 if 'nodata' in X else 576*8192}
s_mov_b32 s11, 0x20000
s_mov_b32 s68, s{sT0}
s_lshl_b32 s{sH1ld}, s{sU}, 12
s_cmp_lt_u32 s{sU}, 72
s_cselect_b32 s{sH1ld}, s{sH1ld}, {WS_BYTES}
s_cmp_lt_u32 s{sW}, 3
s_cselect_b32 s{sH2pz}, 0, {WS_BYTES}
v_mov_b32 v44, 0
v_mov_b32 v45, 0
v_mov_b32 v46, 0
v_mov_b32 v47, 0
v_mov_b32 v48, 0x3f803f80
v_mov_b32 v49, 0x3f803f80
v_mov_b32 v50, 0x3f803f80
v_mov_b32 v51, 0x3f803f80
v_mov_b32 v52, 0x3f003f00
v_mov_b32 v53, 0x3f003f00
v_mov_b32 v54, -1
""")
    lab=A.label('CI')
    A(f"""
ds_write_b128 v{vCon}, v[44:47]
ds_write_b128 v{vCon}, v[48:51] offset:16
ds_write_b64 v{vCon}, v[52:53] offset:32
v_cndmask_b32 v44, 0, v{vSel}, s[{sMask}:{sMask+1}]
v_cndmask_b32 v45, 0, v{vSel}, s[{sMask+2}:{sMask+3}]
v_cndmask_b32 v46, 0, v{vSel}, s[{sMask+4}:{sMask+5}]
v_cndmask_b32 v47, 0, v{vSel}, s[{sMask+6}:{sMask+7}]
ds_write_b128 v{vL16}, v[44:47] offset:{L_S}
v_and_b32 v{vSel}, {NREP-1}, {l}
v_lshlrev_b32 v{vSel}, 8, v{vSel}
""")
    HELP='help' in X
    HL=([x[1] for x in X if isinstance(x,tuple) and x[0]=='hl'] or [5])[0]
    if HELP:
        A(f"""
s_and_b32 s{sT1}, s{sH}, 3
s_add_u32 s{sT2}, s{sT1}, -1
s_cselect_b32 s{sT2}, s{sT2}, 0
s_lshl_b32 s{sT2}, s{sT2}, 2
s_add_u32 s{sT2}, s{sT2}, s{sW}
s_mul_i32 s{sT2}, s{sT2}, 11
s_cmp_eq_u32 s{sT1}, 1
s_cselect_b32 s{sT2}, 128, s{sT2}
v_lshrrev_b32 v60, 4, v{vL16}
v_add_u32 v61, s{sT2}, v60
v_lshrrev_b32 v62, 1, v61
v_lshlrev_b32 v62, 13, v62
v_and_b32 v63, 1, v61
v_lshl_add_u32 v62, v63, 7, v62
s_and_b32 s{sT2}, s{sH}, 28
s_add_u32 s{sT2}, s{sT2}, 1
s_lshl_b32 s{sT2}, s{sT2}, 8
v_add_u32 v62, s{sT2}, v62
v_cmp_gt_u32 s[{sT2-sT2%2}:{sT2-sT2%2+1}], {HL}, v60
v_cmp_gt_u32 vcc, 128, v61
s_and_b64 vcc, vcc, s[{sT2-sT2%2}:{sT2-sT2%2+1}]
v_mov_b32 v63, 0x10000000
v_cndmask_b32 v62, v63, v62, vcc
""")
    sRow,sRow8=sTag,sKVc
    A(f's_mul_i32 s{sRow}, s{sW}, {16*8192}\ns_mul_i32 s{sRow8}, s{sW}, {144*8192}')
    chunks=[]
    def qkv_chunk(mat,t):
        return dict(kind='w',mat=mat,t=t,size=4096,n=4+(1 if HELP and t<8 else 0))
    qk=[qkv_chunk(mm,t) for t in range(9) for mm in 'qk']
    oc=[dict(kind='o',k=k,size=9216,n=9) for k in range(4)]
    for grp in ([x[1] for x in X if isinstance(x,tuple) and x[0]=='ord'] or ['qoqqoqoqoq'])[0]:
        if grp=='q': chunks+= [qk.pop(0) for _ in range(3)]
        elif grp in 'QK':
            sel_=[c_ for c_ in qk if c_['mat']==grp.lower()][:3]
            for c_ in sel_: qk.remove(c_)
            chunks+=sel_
        else: chunks.append(oc.pop(0))
    for t in range(9): chunks.append(qkv_chunk('v',t))
    ptr={'q':56,'k':58,'v':60,'o':62}
    cur_srd=[None]
    def set_srd(mat):
        if cur_srd[0]!=mat:
            A(f's_mov_b32 s8, s{ptr[mat]}\ns_mov_b32 s9, s{ptr[mat]+1}')
            cur_srd[0]=mat
    def issue(c):
        if c['kind']=='w':
            set_srd(c['mat']); t=c['t']
            d = (144*(t//2)+64*(t%2)) if t<8 else 128
            A(f's_add_u32 m0, s68, {c["addr"]}')
            if HELP and t<8: A(f's_mov_b32 s{sT1}, {d*8192}\nbuffer_load_dword v63, v62, s[8:11], s{sT1} offen')
            for ii in range(4):
                A(f's_add_u32 s{sT1}, s{sRow8 if t==8 else sRow}, {d*8192+ii*(4*8192-1024)}')
                A(f'buffer_load_dwordx4 v{(16,28,29,30)[ii]}, s[8:11], s{sT1} offen offset:{1024*ii} lds')
        else:
            set_srd('o'); k=c['k']
            A(f's_xor_b32 s{sT1}, s{sW}, {k}\ns_lshl_b32 s{sT1}, s{sT1}, 5\ns_lshl_b32 s{sT2}, s{sH}, 7\ns_add_u32 s{sT1}, s{sT1}, s{sT2}\ns_mul_i32 s{sT1}, s{sT1}, 1152\ns_mul_i32 s{sT2}, s{sW}, 288\ns_add_u32 s{sT1}, s{sT1}, s{sT2}')
            for ii in range(9):
                A(f's_add_u32 m0, s68, {c["addr"]+1024*ii}')
                A(f'buffer_load_dwordx4 v{71+ii}, s[8:11], s{sT1} offen {"nt" if "nt" in X else ""} lds')
    def ops_of(c):
        if c['kind']=='w': return [(c['mat'],c['t'],0),(c['mat'],c['t'],1)]
        return [('o',c['k'],P) for P in range(4)]+[('sx',c['k'])]
    def tr_reads(c,op,loc):
        f,b=loc
        if 'notr' in X: return
        if c['kind']=='w':
            for jh in range(2):
                for jl in (0,2):
                    off=c['addr']+jl*256
                    A(f'ds_read_b64_tr_b16 {vr(b+4*jh+jl,2,f)}, v{((17,22),(23,31))[op[2]][jh]} offset:{off}')
        elif op[0]=='o':
            P=op[2]; PP,q=P//2,P%2
            for jh in range(2):
                for jl in (0,2):
                    off=c['addr']+(8*jh+jl)*288+(64*PP+16*q)*2
                    A(f'ds_read_b64_tr_b16 {vr(b+4*jh+jl,2,f)}, v18 offset:{off}')
        else:
            for a in range(2):
                A(f'ds_read_b64_tr_b16 {vr(b+2*a,2,f)}, v19 offset:{c["addr"]+16*a*288}')
    parkregs=[('v',32),('v',40)]+[m[('v',t,c)] for t in range(1,9) for c in range(2)]
    parked={}
    live=[]; nissued=0; nslot=[0]
    def alloc(c):
        a = (nslot[0]%9)*4096
        if any(not (x['addr']+x['size']<=a or x['addr']>=a+c['size']) for x in live): return None
        nslot[0]+= 3 if c['kind']=='o' else 1
        return a
    def flush(loc,addr):
        op=parked.pop(loc); m[op]=('l',addr//2048)
        for j in range(2): A(f'ds_write_b128 v{vWl}, {R(loc,4*j,4)} offset:{addr+1024*j}')
    def early():
        A(f's_mov_b32 s8, s64\ns_mov_b32 s9, s65\ns_mov_b32 s10, 9216')
        for j in range(3):
            A(f"""
s_mul_i32 s{sT1}, s{sW}, 6
s_add_u32 s{sT1}, s{sT1}, {2*j}
s_add_u32 s{sT2}, s{sT1}, -9
s_cmp_gt_u32 s{sT1}, 8
s_cselect_b32 s{sT1}, s{sT2}, s{sT1}
s_lshr_b32 s{sT2}, s{sT1}, 1
s_mul_i32 s{sT2}, s{sT2}, 288
s_and_b32 s{sT3}, s{sT1}, 1
s_lshl_b32 s{sT3}, s{sT3}, 7
s_add_u32 s{sT2}, s{sT2}, s{sT3}
""")
            if j==1:
                A(f"""
s_cmp_eq_u32 s{sT1}, 8
s_cselect_b32 s{sT2}, 256, s{sT2}
s_cselect_b64 vcc, -1, 0
v_cndmask_b32 v21, v20, v21, vcc
""")
            A(f'buffer_load_dwordx4 v[{T(16)+4*j}:{T(19)+4*j}], v{21 if j==1 else 20}, s[8:11], s{sT2} offen')
        A(f's_lshl_b32 s{sT1}, s{sH}, 9\ns_add_u32 s{sFlagKV}, s{sT1}, {F_KV}')
        A(f'v_readfirstlane_b32 s{sStep1}, v61')
        status_loads(A)
        return 3+6
    pending_reads=False; extra=0
    def its(k):
        if 'itrace' in X: A(f's_memtime s[{sSt+2}:{sSt+3}]\ns_waitcnt lgkmcnt(0)\ns_sub_u32 s{sSt+4+k}, s{sSt+2}, s72')
    its(0)
    if 'rdyS' in X: A('s_memrealtime s[90:91]\ns_waitcnt lgkmcnt(0)\ns_mov_b32 s99, s90')
    def issue_more():
        nonlocal nissued
        while nissued<len(chunks):
            nc=chunks[nissued]
            if sum(x['n'] for x in live)+nc['n']>52: break
            a=alloc(nc)
            if a is None: break
            nc['addr']=a
            issue(nc); live.append(nc); nissued+=1
    issue_more(); its(1)
    prev=None
    for ci,c in enumerate(chunks):
        assert c in live
        if ci==10: A(f'v_mov_b32 v60, 0\nglobal_load_dword v61, v60, s[66:67] offset:{D_INIT} sc1')
        younger=sum(x['n'] for x in live if x is not c and x is not prev)+extra
        A(f's_waitcnt vmcnt({younger}) lgkmcnt(0)')
        if 'nobar' not in X: A('s_barrier')
        if ci in (8,16,22): its((0,0,8,16,22).index(ci,2))
        if ci==30: its(5)
        if prev is not None:
            live.remove(prev)
            issue_more()
            if nissued==len(chunks) and not extra: extra=early()
            if prev['kind']=='w' and prev['mat']=='v':
                for j in range(2): flush(m[('v',c['t'],j)],prev['addr']+2048*j)
        for op in ops_of(c):
            if op[0]=='sx':
                k=op[1]; loc=m[('s',k//2)]; tr_reads(c,op,(loc[0],loc[1]+4*(k%2)))
            elif m[op][0]!='l':
                assert m[op] not in parked
                tr_reads(c,op,m[op])
            else:
                loc=parkregs.pop(0); parked[loc]=op
                tr_reads(c,op,loc)
        prev=c
    A('s_waitcnt lgkmcnt(0)\ns_barrier')
    for j,loc in enumerate([('v',32),('v',40)]): flush(loc,prev['addr']+2048*j)
    assert not parked and not parkregs
    if 'rdy0' in X: A('s_memrealtime s[90:91]\ns_waitcnt lgkmcnt(0)\ns_mov_b32 s99, s90')
    c = math.log2(math.e)/math.sqrt(128.0)
    cb = struct.unpack('<I',struct.pack('<f',c))[0]
    A(f"""
s_mov_b32 s{sSc2}, {cb:#x}
s_mov_b32 s{sSc2+1}, {cb:#x}
s_mov_b32 s{sLo20}, 0x35800000
s_mov_b32 s{sHi20}, {0x49800000-0x35800000:#x}
s_mov_b32 s{sStep}, 0
s_mov_b32 s{sTag}, 1
s_mov_b32 s{s32k}, 32768
s_lshl_b32 s{sLate}, s{sW}, 11
s_add_u32 s{sLate}, s{sLate}, 1024
s_mov_b32 s{sH2c}, {WS_H2}
s_mov_b32 s{sH2n}, {WS_H2+H2SZ}
s_mov_b32 s{sH2p}, {WS_H2+2*H2SZ}
s_lshl_b32 s{sT1}, s{sH}, 14
s_add_u32 s{sKVc}, s{sT1}, {WS_KV}
s_add_u32 s{sKn}, s{sKVc}, {32*16384}
s_lshl_b32 s{sT2}, s{sW}, 11
s_add_u32 s{sPf}, s{sKn}, s{sT2}
s_add_u32 s{sPf}, s{sPf}, 8192
s_mov_b32 m0, {L_W+4*WREG}
s_lshl_b32 s{sT1}, s{sH}, 11
s_add_u32 s{sKMo}, s{sT1}, {WS_KM}
s_lshl_b32 s{sT1}, s{sH}, 12
s_add_u32 s{sVMo}, s{sT1}, {WS_VM}
s_lshl_b32 s{sT1}, s{sW}, 10
s_add_u32 s{sVMo}, s{sVMo}, s{sT1}
s_lshl_b32 s{sT1}, s{sH}, 7
s_add_u32 s{sFlagM}, s{sT1}, {F_M}
s_lshr_b32 s{sT1}, s{sH}, 2
s_add_u32 s{sT1}, s{sT1}, 64
s_lshl_b32 s{sT1}, s{sT1}, 12
s_and_b32 s{sT2}, s{sH}, 3
s_lshl_b32 s{sT2}, s{sT2}, 5
s_add_u32 s{sT1}, s{sT1}, s{sT2}
s_cmp_eq_u32 s{sW}, 2
s_cselect_b32 s{sH1ld}, s{sT1}, s{sH1ld}
s_sub_u32 s{sFlagMw}, s{sFlagM}, {L_C}
s_mov_b32 s{sT1}, {WS_BYTES}
s_cmp_eq_u32 s{sW}, 3
s_cselect_b32 s{sFlagMw}, s{sFlagMw}, s{sT1}
s_add_u32 s{sPrb}, s{sH}, s{sW}
s_and_b32 s{sPrb}, s{sPrb}, {NREP-1}
s_lshl_b32 s{sPrb}, s{sPrb}, 8
s_add_u32 s{sPrb}, s{sPrb}, {WS_F1}
s_lshl_b32 s{sFlg}, s{sH}, 2
s_add_u32 s{sFlg}, s{sFlg}, {WS_F1}
s_cmp_ge_u32 s{sW}, {0 if NZG else 3}
s_cselect_b32 s{sPrb}, s{sPrb}, s{sT1}
s_cmp_eq_u32 s{sW}, 1
s_cselect_b32 s{sFlg}, s{sFlg}, s{sT1}
""")

def emit_wait_kv(A, need_sreg, fail, tmp):
    lp=A.label('KVW'); ok=A.label('KVOK')
    A(f"""
s_cmp_ge_u32 s{sKVok}, s{need_sreg}
s_cbranch_scc1 {ok}
s_mov_b32 s{sPoll}, 0
{lp}:
v_mov_b32 v{tmp}, 0
buffer_load_dword v{tmp+1}, v{tmp}, s[4:7], s{sFlagKV} offen offset:256 sc1
buffer_load_dword v{tmp}, v{tmp}, s[4:7], s{sFlagKV} offen sc1
s_add_u32 s{sPoll}, s{sPoll}, 1
s_cmp_gt_u32 s{sPoll}, {POLLMAX}
s_cbranch_scc1 {fail}
v_min_u32 v{tmp}, v{tmp}, v{tmp+1}
v_readfirstlane_b32 s{sKVok}, v{tmp}
s_cmp_lt_u32 s{sKVok}, s{need_sreg}
s_cbranch_scc1 {lp}
{ok}:
""")

def emit_chain_loop(A, m, qk_order, lds_qk, lds_o, st, tag, fail, done, D1=0, D2=2, stamps=(), X=()):
    def stamp(i):
        if ('tr',i) in X:
            k=[x for x in X if isinstance(x,tuple) and x[0]=='tr'].index(('tr',i))
            sk=A.label('TR')
            A(f's_cmp_gt_u32 s{sStep}, {31 if i in (8,7,13) or (i==0 and k>0) else 30}\ns_cbranch_scc1 {sk}\ns_memtime s[{sTr+2*k}:{sTr+2*k+1}]\n{sk}:')
        if i in stamps:
            k=stamps.index(i)
            A(f's_memtime s[{sSt+2}:{sSt+3}]\ns_waitcnt lgkmcnt(0)')
            if k==0: A(f's_mov_b32 s{sSt}, s{sSt+2}')
            else: A(f's_sub_u32 s{sSt+3}, s{sSt+2}, s{sSt}\ns_add_u32 s{sSt+4+k}, s{sSt+4+k}, s{sSt+3}')
    def pad(i):
        for _ in range((Dl['pad']>>(2*i))&3): A('s_nop 0')
    def delay(n):
        if Dl['sl'] and n>=24:
            k=(n-4)//16; A(f's_sleep {k}'); n-=16*k+Dl['sl']-1
        while n>0:
            c=min(n,16); A(f's_nop {c-1}'); n-=c
    Dl=dict(a1=4,a2=25,g=38,al=20,b1=58,b2=74,c1=0,c2=30,d1=88,nl=10,fl=2,vl=16,v4=0,fm=23,z0=0,z1=0,pr=(7,9,11,13),sp=2,se=2,kx2=0,ow=0,pk=0,pf=20,xo=1,a0=-1,c0=0,vp=11,vq=0,ne=0,yo=0,po=1,lb=0,oo=0,r1=1,ho=1,pad=0,sl=0,vo=1,sm=0,sd=0,nz=0,lay=(16,17,19,20,23,24,18,22,16,(25,26,27,28,30,31,32,33))); Dl.update(D1 if isinstance(D1,dict) else {})
    KS='' if 'kplain' in X else ('sc1 nt' if 'knt' in X else ('sc0 sc1' if 'ksys' in X else 'sc1'))
    SM='v_smfmac_f32_16x16x64_bf16'
    M32='v_mfma_f32_16x16x32_bf16'; M16='v_mfma_f32_16x16x16_bf16'
    accq=[T(0),T(4)]; acck=[T(8),T(12)]; ring=[T(16),T(20),T(24)]; stg=[T(28),T(36),VX]
    def ldsop(op,buf):
        A(f'ds_read_b128 {q4(buf)}, v{vWl} offset:{m[op][1]*2048}')
        A(f'ds_read_b128 {q4(buf+4)}, v{vWl} offset:{m[op][1]*2048+1024}')
    def zero(b): A(f'ds_read_b128 {q4(b)}, v{vCon}')
    Q=[]
    def qop(op,buf):
        Q.append(f'ds_read_b128 {q4(buf)}, v{vWl} offset:{m[op][1]*2048}')
        Q.append(f'ds_read_b128 {q4(buf+4)}, v{vWl} offset:{m[op][1]*2048+1024}')
    def pop(k=1):
        for _ in range(k):
            if Q: A(Q.pop(0))
    top=f'CSTEP_{tag}'; p2=f'CP2_{tag}'; barA=f'CBA_{tag}'
    def scal():
        A(f's_add_u32 s{sStep1}, s{sStep}, 1\ns_add_u32 s{sPz}, s{sH2p}, s{sH2pz}\ns_add_u32 s{sNeed}, s{sStep}, 8\ns_lshr_b32 s{sNeed}, s{sNeed}, 2\ns_min_u32 s{sNeed}, s{sNeed}, 16')
    late=T(44); vMl=vMl_; lateL=A.label('LATE')
    A(f'{top}_prep:')
    for i in range(16): A(f'v_mov_b32 v{T(i)}, 0')
    for j in range(2): ldsop(lds_qk[j],stg[j])
    scal()
    pw=A.label('PW')
    A(f's_cmp_eq_u32 s{sW}, 3\ns_cbranch_scc1 {pw}')
    A(f's_mul_i32 s{sT1}, s{sW}, 3072\nv_add_u32 v{T(45)}, s{sT1}, v{vL16}')
    for j in range(3): A(f'ds_write_b128 v{T(45)}, {q4(T(16)+4*j)} offset:{L_M+1024*j}')
    A(f'{pw}:')
    A('s_waitcnt lgkmcnt(0)\ns_barrier')
    A(f'ds_read_b128 {q4(late)}, v{vMl} offset:{L_M+5120}')
    A('.p2align 8')
    for _ in range(Dl['ho']): A('s_nop 0')
    A(f'{barA}:')
    if Dl['vp']==5: A(f'buffer_store_dwordx4 {q4(T(24))}, v{vL16}, s[4:7], s{sVMo} offen {KS}')
    A('s_waitcnt lgkmcnt(0)\ns_barrier')
    if Dl['vp']==6: A(f'buffer_store_dwordx4 {q4(T(24))}, v{vL16}, s[4:7], s{sVMo} offen {KS}')
    stamp(0)
    if 'hist' in X:
        A(f's_memtime s[{sSt+2}:{sSt+3}]\ns_waitcnt lgkmcnt(0)\ns_sub_u32 s{sSt+3}, s{sSt+2}, s{sSt}\ns_mov_b32 s{sSt}, s{sSt+2}')
        for i,th in enumerate((4000,4100,4200,4300,4450,4700)):
            A(f's_cmp_lt_u32 s{sSt+3}, {th}\ns_addc_u32 s{sSt+4+i}, s{sSt+4+i}, 0')
    for x in X:
        if isinstance(x,tuple) and x[0]=='at':
            sk=A.label('AT'); A(f's_cmp_lg_u32 s{sStep}, {x[1]}\ns_cbranch_scc1 {sk}\ns_memrealtime s[90:91]\ns_waitcnt lgkmcnt(0)\ns_mov_b32 s99, s90\ns_mov_b32 s90, 0\ns_mov_b32 s91, 0\n{sk}:')
    def mtxt(pos): return f'ds_read_b128 {q4(ring[pos%3])}, v{vL16} offset:{L_M+1024*(pos%9)}'
    def mread(pos): A(mtxt(pos))
    mread(0); mread(1); Q.append(mtxt(2))
    accv=[T(44),T(28)]
    li=0
    cold=[]
    NL=Dl['nl']; late_vm=[]
    for n,op in enumerate(qk_order):
        pos=n//4; acc=(accq if op[0]=='q' else acck)[op[2]]
        if m[op][0]=='l':
            b=stg[QKBUF[li]]; B=f'v[{b}:{b+7}]'
        else: B=R(m[op])
        A(f'{SM} {q4(acc)}, {q4(ring[pos%3])}, {B}, v{vIdx}')
        if m[op][0]=='l':
            nx=[j for j in range(li+1,len(lds_qk)) if QKBUF[j]==QKBUF[li]]
            if nx: qop(lds_qk[nx[0]],b)
            li+=1
        if n==NL:
            ck=late; ok=A.label('LOK')
            A(f'ds_write_b128 v{vMl}, {q4(late)} offset:{L_M+5120}'); wpos=len(A.items)
        if n==NL+1: A(f'v_max3_u32 v{ck}, v{late}, v{late+1}, v{late+2}')
        if n==NL+2: A(f'v_max_u32 v{ck}, v{ck}, v{late+3}')
        if n==NL+3:
            A(f'v_cmp_eq_u32 vcc, -1, v{ck}\ns_cbranch_vccnz {lateL}\n{ok}:')
            def c(ok=ok,ck=ck):
                A(f'{lateL}:')
                A(f'buffer_load_dwordx4 {q4(late)}, v{vL16}, s[4:7], s{sT3} offen sc1')
                A(f's_add_u32 s{sPoll}, s{sPoll}, 1\ns_add_u32 s{sSt+12}, s{sSt+12}, 1\ns_cmp_gt_u32 s{sPoll}, {POLLMAX}\ns_cbranch_scc1 {fail}')
                A(f'ds_write_b128 v{vMl}, {q4(late)} offset:{L_M+5120}')
                A(f's_nop 1\nv_max3_u32 v{ck}, v{late}, v{late+1}, v{late+2}\nv_max_u32 v{ck}, v{ck}, v{late+3}')
                A(f'v_cmp_eq_u32 vcc, -1, v{ck}\ns_cbranch_vccnz {lateL}\ns_waitcnt lgkmcnt(0)\ns_branch {ok}')
            cold.append(c)
        if n%4==3:
            if pos<2: Q.insert(0,mtxt(pos+3))
            elif pos==3:
                A('LGKM_A2\ns_barrier'.replace('LGKM_A2',f's_waitcnt lgkmcnt({sum(1 for it in A.items[wpos:] if isinstance(it,Ins) and it.kind=="ds")})'))
                Q.insert(0,mtxt(5)); Q.insert(1,mtxt(6))
            elif pos>3 and (pos<6 or not Dl['vo']): Q.insert(0,mtxt(pos+3))
        if n!=NL: pop()
        L_=Dl['lay']
        if n==L_[0]: A(f'buffer_load_dwordx4 {q4(VX)}, v{vKx}, s[4:7], s{sKVc} offen sc1')
        if n==L_[1]: A(f'buffer_load_dwordx4 {q4(VX+4)}, v{vKx}, s[4:7], s{sKVc} offen offset:256 sc1')
        if n==L_[6]: A(f'v_mov_b32 v{T(44)}, -1')
        if n==L_[7]: A(f'v_mov_b32 v{T(45)}, s{sStep}')
        if n==L_[8]: A(f'v_lshlrev_b32 v{T(46)}, 3, v{vL16}')
        if n==L_[2]: A(f'buffer_store_dword v{T(44)}, v{vH2st}, s[4:7], s{sPz} offen {st}')
        if n==L_[8]+1 and Dl['pk']: A(f'v_lshrrev_b32 v{T(47)}, 8, v{vL16}')
        if n==L_[8]+2 and Dl['pk']: A(f'v_mad_u32_u24 v{T(46)}, v{T(47)}, s{sPfK}, v{T(46)}')
        if n==L_[3] and 'nopf' not in X: A(f's_mov_b64 exec, {"0xffffffff" if Dl["pk"] else "0xffff"}\nbuffer_load_dword v{T(46)}, s[4:7], s{sPf} offen sc1 lds\ns_mov_b64 exec, -1')
        if n==L_[4]: A(f'buffer_store_dword v{T(45)}, v{vCon}, s[4:7], s{sFlagMw} offen sc1')
        if n==L_[5]:
            kf_=A.label('KVF'); kb_=A.label('KVB')
            A(f's_cmp_lt_u32 s{sKVok}, s{sNeed}\ns_cbranch_scc1 {kf_}\n{kb_}:')
            def c(kf_=kf_,kb_=kb_):
                A(f'{kf_}:\nbuffer_load_dword v{vCon}, s[4:7], s{sFlagKVd} offen offset:256 sc1 lds\nbuffer_load_dword v{vCon}, s[4:7], s{sFlagKVd} offen offset:512 sc1 lds\ns_branch {kb_}')
            cold.append(c)
        if n in L_[9]:
            for j in range(8):
                if L_[9][j]==n: A(f'v_mov_b32 v{(accv[0]+j) if j<4 else (accv[1]+j-4)}, 0')
    stamp(1)
    def vstep(p):
        for c in range(2):
            o_=6 if Dl['vo'] else 0
            A(f'{SM} {q4(accv[c])}, {q4(ring[p%3])}, {R(m[("v",TORD[(p+o_)%9],c)])}, v{vIdx}')
            if c==1 and p+3<9: Q.insert(0,mtxt(p+3+o_))
            pop()
    def cv(d,a): A(f'v_cvt_pk_bf16_f32 v{d}, v{a}, v{a+1}')
    pad(0)
    vstep(0)
    for a in accq: cv(a,a); cv(a+1,a+2)
    tq=[T(32),T(36)]; tk=[T(0),T(4)]
    A(f'{M16} {q4(tq[0])}, v[{accq[0]}:{accq[0]+1}], v[{vS16}:{vS16+1}], 0')
    cv(acck[0],acck[0]); cv(acck[0]+1,acck[0]+2)
    A(f'{M16} {q4(tq[1])}, v[{accq[1]}:{accq[1]+1}], v[{vS16}:{vS16+1}], 0')
    cv(acck[1],acck[1]); cv(acck[1]+1,acck[1]+2)
    A(f'{M16} {q4(tk[0])}, v[{acck[0]}:{acck[0]+1}], v[{vS16}:{vS16+1}], 0')
    A(f'{M16} {q4(tk[1])}, v[{acck[1]}:{acck[1]+1}], v[{vS16}:{vS16+1}], 0')
    qf,kf=T(32),T(8)
    A(f'v_add_u32 v{T(40)}, s{sW256}, v{vL16}')
    cv(qf,tq[0]); cv(qf+1,tq[0]+2); cv(qf+2,tq[1]); cv(qf+3,tq[1]+2)
    X0,X1,Mm=T(4),T(12),T(0)
    cv(kf,tk[0]); cv(kf+1,tk[0]+2)
    A(f'{M32} {q4(X1)}, {q4(KX+4)}, {q4(qf)}, 0')
    cv(kf+2,tk[1]); cv(kf+3,tk[1]+2)
    A(f'{M32} {q4(X0)}, {q4(KX)}, {q4(qf)}, 0')
    A(f'{M32} {q4(Mm)}, {q4(kf)}, {q4(qf)}, 0')
    vstep(1)
    if 'nok' not in X: A(f'buffer_load_dwordx4 {q4(KX)}, v{vKx}, s[4:7], s{sKn} offen sc1')
    if Dl['kx2'] or Dl['ow']: A(f'v_cndmask_b32 v{T(41)}, 0, 8, s[{sHi}:{sHi+1}]')
    if Dl['kx2']:
        A(f'v_cndmask_b32 v{kf}, v{kf}, v{kf+2}, s[{sHi}:{sHi+1}]\nv_cndmask_b32 v{kf+1}, v{kf+1}, v{kf+3}, s[{sHi}:{sHi+1}]\nv_add_u32 v{T(42)}, v{T(41)}, v{vOw}')
        A(f'buffer_store_dwordx2 v[{kf}:{kf+1}], v{T(42)}, s[4:7], s{sKMo} offen sc1')
    elif 'nokm' not in X and 'nokm1' not in X: A(f'buffer_store_dwordx4 {q4(kf)}, v{vOw}, s[4:7], s{sKMo} offen {KS}')
    for r in range(4): A(f'v_cndmask_b32 v{X0+r}, v{X0+r}, v{X1+r}, s[{sHi}:{sHi+1}]')
    yw=f'ds_write_b128 v{vYw}, {q4(X0)} offset:{L_QK}'
    k2=f'buffer_load_dwordx4 {q4(KX+4)}, v{vKx}, s[4:7], s{sKn} offen offset:256 sc1'
    ms=f'v_cndmask_b32 v{Mm}, v{Mm}, v{Mm+1}, s[{sHi}:{sHi+1}]\nv_cndmask_b32 v{Mm+2}, v{Mm+2}, v{Mm+3}, s[{sHi}:{sHi+1}]\nv_cndmask_b32 v{Mm}, v{Mm}, v{Mm+2}, s[{sG2}:{sG2+1}]'
    mw=f'ds_write_b32 v{T(40)}, v{Mm} offset:{L_MX}'
    if 'nok' in X: k2='s_nop 0'
    for t_ in ([yw,k2,ms,mw],[ms,yw,k2,mw],[k2,ms,yw,mw])[Dl['yo']]: A(t_)
    wp=len(A.items)
    vstep(2); vstep(3)
    if Dl['v4']: vstep(4)
    A(f's_waitcnt lgkmcnt({sum(1 for it in A.items[wp:] if isinstance(it,Ins) and it.kind=="ds")})\ns_barrier')
    stamp(2)
    pad(1)
    Y=[T(0),T(4),T(8),T(12)]; Mp=[T(16)]
    A(f'ds_read_b128 {q4(Y[0])}, v{vL16} offset:{L_QK}')
    for j in range(1,4): Q.append(f'ds_read_b128 {q4(Y[j])}, v{vL16} offset:{L_QK+1024*j}')
    Q.append(f'ds_read_b128 {q4(T(36))}, v{vCon} offset:16'); Q.append(f'ds_read_b64 v[{T(40)}:{T(41)}], v{vCon} offset:32')
    if not Dl['v4']: vstep(4)
    vstep(5); vstep(6)
    Q.insert(0,f'ds_read_b128 {q4(Mp[0])}, v{vL16} offset:{L_MX}')
    vstep(7); vstep(8)
    pop(len(Q))
    def padd(a,b):
        A(f'v_pk_add_f32 v[{a}:{a+1}], v[{a}:{a+1}], v[{b}:{b+1}]\nv_pk_add_f32 v[{a+2}:{a+3}], v[{a+2}:{a+3}], v[{b+2}:{b+3}]')
    def pmul(a):
        for o in (0,2): A(f'v_pk_mul_f32 v[{a+o}:{a+o+1}], v[{a+o}:{a+o+1}], s[{sSc2}:{sSc2+1}]')
    Ys,Ms=Y[0],Mp[0]
    vm=T(32); P=T(12); ones,half=T(36),T(40)
    accO=[T(16),T(20),T(24),T(28)]; accS=T(44)
    O0,O1,Lr=T(0),T(4),T(44)
    def softpv(fast):
        for r in range(4):
            A(f'v_exp_f32 v{Ys+r}, v{Ys+r}')
            if fast and r==2: vmk(1)
        if fast: A(f'v_pk_add_f32 v[{Ms}:{Ms+1}], v[{Ms}:{Ms+1}], v[{Ms+2}:{Ms+3}]')
        A(f'v_cvt_pk_bf16_f32 v{P}, v{Ys}, v{Ys+1}\nv_cvt_pk_bf16_f32 v{P+2}, v{Ys}, v{Ys+1}')
        A(f'v_cvt_pk_bf16_f32 v{P+1}, v{Ys+2}, v{Ys+3}\nv_cvt_pk_bf16_f32 v{P+3}, v{Ys+2}, v{Ys+3}')
        if fast: vmk(2); A(f'v_add_f32 v{Ms}, v{Ms}, v{Ms+1}')
        A(f'v_mov_b32_dpp v{P}, v{P+2} row_ror:8 row_mask:0xf bank_mask:0xc')
        if fast: A(f'v_mul_f32 v{Ms}, s{sSc2}, v{Ms}')
        A(f'v_mov_b32_dpp v{P+1}, v{P+3} row_ror:8 row_mask:0xf bank_mask:0xc')
        A(f'v_mov_b32_dpp v{P+2}, v{P+2} row_ror:8 row_mask:0xf bank_mask:0x3')
        A(f'v_mov_b32_dpp v{P+3}, v{P+3} row_ror:8 row_mask:0xf bank_mask:0x3')
        A(f'v_exp_f32 v{Ms}, v{Ms}\nv_exp_f32 v{Ms+1}, v{Ms} ;dup'.replace(f'v_exp_f32 v{Ms}, v{Ms}\nv_exp_f32 v{Ms+1}, v{Ms} ;dup',f'v_exp_f32 v{Ms+1}, v{Ms}'))
        if fast: vmk(3)
        A(f'{M32} {q4(Lr)}, {q4(ones)}, {q4(P)}, 0')
        A(f'v_mov_b32 v{Ms}, v{Ms+1}')
        A(f'{M32} {q4(O0)}, {q4(VX)}, {q4(P)}, 0')
        A(f'v_mov_b32_dpp v{Ms}, v{Ms+1} row_ror:8 row_mask:0xf bank_mask:0xc')
        A(f'v_mov_b32_dpp v{Ms+1}, v{Ms+1} row_ror:8 row_mask:0xf bank_mask:0x3')
        A(f'{M32} {q4(O1)}, {q4(VX+4)}, {q4(P)}, 0')
        Pm=T(8)
        A(f'v_cvt_pk_bf16_f32 v{Pm}, v{Ms}, v{Ms+1}\nv_cvt_pk_bf16_f32 v{Pm+1}, v{Ms}, v{Ms+1}')
        z=lambda b,lo,hi: [A(f'v_mov_b32 v{b+i}, 0') for i in range(lo,hi)]
        if fast: vmk(4)
        z(accO[0],0,2)
        A(f'v_permlane32_swap_b32 v{Pm}, v{Pm+1}')
        z(accO[0],2,4)
        A(f'{M16} {q4(Lr)}, v[{half}:{half+1}], v[{Pm}:{Pm+1}], {q4(Lr)}')
        zero(accO[1])
        A(f'{M16} {q4(O0)}, v[{vm}:{vm+1}], v[{Pm}:{Pm+1}], {q4(O0)}')
        zero(accO[2])
        A(f'{M16} {q4(O1)}, v[{vm+2}:{vm+3}], v[{Pm}:{Pm+1}], {q4(O1)}')
    pad(2)
    padd(Y[0],Y[1]); padd(Y[2],Y[3]); padd(Y[0],Y[2])
    pmul(Ys)
    for c in range(2): cv(vm+2*c,accv[c]); cv(vm+2*c+1,accv[c]+2)
    vmst=f'buffer_store_dwordx4 {q4(vm)}, v{vL16}, s[4:7], s{sVMo} offen {KS}'
    def vmk(k):
        if Dl['vp']==3 and k<4: A(f's_mov_b64 exec, s[{sWm+2*k}:{sWm+2*k+1}]\n{vmst}\ns_mov_b64 exec, -1')
        if Dl['vp']==10+k: A(vmst)
        if Dl['vp']==4 and k%2==0: A(f's_mov_b64 exec, s[{sWm+8+k}:{sWm+9+k}]\n{vmst}\ns_mov_b64 exec, -1')
    if Dl['vp']==0: A(vmst)
    if Dl['vp']==9:
        vl_=A.label('VMI'); vr_=A.label('VMR')
        A(f's_cmp_ge_u32 s{sStep}, 60\ns_cbranch_scc1 {vl_}\n{vr_}:')
        def c(vl_=vl_,vr_=vr_): A(f'{vl_}:\n{vmst}\ns_cmp_eq_u32 s{sStep}, 63\ns_cbranch_scc1 {done}\ns_branch {vr_}')
        cold.append(c)
    vmk(0)
    if Dl['vp']!=9: A(f's_cmp_eq_u32 s{sStep}, 63\ns_cbranch_scc1 {done}')
    stamp(3)
    if Dl['vp']==16: A(vmst)
    softpv(True)
    ostg=[VX,T(36)]
    ra=[T(0),T(4),T(8)]
    rl=T(10); m1,m2=T(42),T(43)
    sm_slow=A.label('SMX'); sm_ok=A.label('SMK')
    vmk(5)
    A(f'v_xor_b32 v{ra[2]}, 1536, v{vOw}')
    A(f'v_subrev_u32 v{m1}, s{sLo20}, v{Lr}\nv_rcp_f32 v{rl}, v{Lr}')
    A(f'v_cmp_lt_u32 vcc, s{sHi20}, v{m1}')
    if 'forceslow' in X: A(f's_branch {sm_slow}')
    else: A(f's_cbranch_vccnz {sm_slow}')
    A(f'{sm_ok}:')
    def c():
        A(f'{sm_slow}:')
        tm=[T(4),T(20),T(24),T(28)]
        for j in range(4): A(f'ds_read_b128 {q4(tm[j])}, v{vL16} offset:{L_QK+1024*j}')
        A(f'ds_read_b128 {q4(Ms)}, v{vL16} offset:{L_MX}')
        padd(tm[0],tm[1]); padd(tm[2],tm[3]); padd(tm[0],tm[2])
        for r in range(4): A(f'v_mov_b32 v{Ys+r}, v{T(4)+r}')
        pmul(Ys)
        A(f"""
v_pk_add_f32 v[{Ms}:{Ms+1}], v[{Ms}:{Ms+1}], v[{Ms+2}:{Ms+3}]
v_add_f32 v{Ms}, v{Ms}, v{Ms+1}
v_mul_f32 v{Ms}, s{sSc2}, v{Ms}
v_max3_f32 v{m1}, v{Ys}, v{Ys+1}, v{Ys+2}
v_max3_f32 v{m1}, v{m1}, v{Ms}, v{Ys+3}
v_max_f32_dpp v{m1}, v{m1}, v{m1} row_ror:8 row_mask:0xf bank_mask:0xf
v_mov_b32 v{m2}, v{m1}
v_permlane32_swap_b32 v{m1}, v{m2}
v_max_f32 v{m1}, v{m1}, v{m2}
v_mov_b32 v{m2}, v{m1}
v_permlane16_swap_b32 v{m1}, v{m2}
v_max_f32 v{m1}, v{m1}, v{m2}
v_sub_f32 v{Ms}, v{Ms}, v{m1}
""")
        for r in range(4): A(f'v_sub_f32 v{Ys+r}, v{Ys+r}, v{m1}')
        softpv(False)
        A(f'v_xor_b32 v{ra[2]}, 1536, v{vOw}\nv_rcp_f32 v{rl}, v{Lr}\ns_branch {sm_ok}')
    cold.append(c)
    vmpos=len(A.items)
    zero(accO[3])
    Q.clear(); qop(lds_o[0],ostg[0]); qop(lds_o[1],ostg[1])
    own=T(12)
    for i,b in enumerate((O0,O0+2,O1,O1+2)):
        A(f'v_pk_mul_f32 v[{b}:{b+1}], v[{b}:{b+1}], v[{rl}:{rl+1}] op_sel_hi:[1,0]')
    for i,b in enumerate((O0,O0+2,O1,O1+2)):
        A(f'v_cvt_pk_bf16_f32 v{own+i}, v{b}, v{b+1}')
    if Dl['oo']: A(f'v_xor_b32 v{ra[0]}, 512, v{vOw}\nv_xor_b32 v{ra[1]}, 1024, v{vOw}')
    A(f'ds_write_b128 v{vOw}, {q4(own)} offset:{L_O}')
    wp=len(A.items); pop()
    if Dl['vp']==1: A(vmst)
    vP,vPa,vFa,vFd=T(32),vOr,(vCon if Dl['r1'] else vSel),T(35)
    def flag(): A(f'buffer_store_dword v{vFd}, v{vFa}, s[4:7], s{sFlg1 if Dl["r1"] else sFlg} offen {st}')
    def probe(): A(f'buffer_load_dword v{vP}, v{vPa}, s[4:7], s{sPrb1 if Dl["r1"] else sPrb} offen sc1 ;nw')
    if Dl['fl']==-2:
        A(f's_add_u32 s{sStep1}, s{sStep}, 1\nv_bfe_u32 v{T(0)}, v{vL16}, 0, 6\nv_mov_b32 v{T(1)}, s{sStep1}\nv_lshlrev_b32 v{T(0)}, 4, v{T(0)}')
        A(f'buffer_store_dword v{T(1)}, v{T(0)}, s[4:7], s{sFlg} offen {st}')
    stamp(4)
    fr=[own,T(0),T(4),T(8)]
    def osm(k,P):
        op=('o',k,P)
        if m[op][0]=='l':
            i=lds_o.index(op); b=ostg[i%2]; B=f'v[{b}:{b+7}]'
        else: B=R(m[op])
        A(f'{SM} {q4(accO[P])}, {q4(fr[k])}, {B}, v{vIdx}')
        if m[op][0]=='l' and i+2<len(lds_o): qop(lds_o[i+2],ostg[i%2])
        pop()
    def osg(k):
        loc=m[('s',k//2)]
        A(f'{M32} {q4(accS)}, {q4(fr[k])}, {R(loc,4*(k%2),4)}, {"0" if k==0 else q4(accS)}')
        pop()
    osg(0)
    if not Dl['oo']: A(f'v_xor_b32 v{ra[0]}, 512, v{vOw}\nv_xor_b32 v{ra[1]}, 1024, v{vOw}')
    osm(0,0); osm(0,1)
    if Dl['vp']==2: A(vmst)
    A(f's_waitcnt lgkmcnt({sum(1 for it in A.items[wp:] if isinstance(it,Ins) and it.kind=="ds")})\ns_barrier')
    for k in range(1,4): A(f'ds_read_b128 {q4(fr[k])}, v{ra[k-1]} offset:{L_O}')
    if Dl['vp']==9: A(f'ds_write_b128 v{vYw}, {q4(vm)} offset:{L_QK}')
    osm(0,2); osm(0,3)
    stamp(5)
    pad(3)
    def tagit(r): A(f'v_and_or_b32 v{r}, v{r}, -2, s{sTag}')
    def pack(x,y,so,last=False):
        A(f'v_cvt_pk_bf16_f32 v{x}, v{x}, v{x+1}\nv_cvt_pk_bf16_f32 v{x+1}, v{x+2}, v{x+3}')
        A(f'v_cvt_pk_bf16_f32 v{x+3}, v{y+2}, v{y+3}\nv_cvt_pk_bf16_f32 v{x+2}, v{y}, v{y+1}')
        if last and 15 in Dl['pr']: probe()
        tagit(x+2); tagit(x)
        A(f'v_permlane16_swap_b32 v{x+1}, v{x+3}\nv_permlane16_swap_b32 v{x}, v{x+2}')
        A(f'buffer_store_dwordx4 {q4(x)}, v{vH1st}, s[4:7], {so} offen {st}')
    A(f'v_mov_b32 v{vFd}, s{sStep1}')
    if Dl['fl']==-1: flag()
    A(f'v_mov_b32 v{vP}, 0')
    cnt=[0]
    def tick():
        if cnt[0]==Dl['fl']: flag()
        if cnt[0] in Dl['pr']: probe()
        cnt[0]+=1
    for k in range(1,4): osg(k); tick()
    for k in range(1,4): osm(k,0); tick()
    sst=f'buffer_store_dwordx2 v[{accS}:{accS+1}], v{vH1s1}, s[4:7], 0 offen {st}'
    if not Dl['ne'] and not Dl['sd']: sst=f's_mov_b64 exec, 0xffffffff\n{sst}\ns_mov_b64 exec, -1'
    if Dl['se']:
        A(f'v_cvt_pk_bf16_f32 v{accS}, v{accS}, v{accS+1}')
        osm(1,1); tick(); A(f'v_cvt_pk_bf16_f32 v{accS+1}, v{accS+2}, v{accS+3}')
        osm(2,1); tick(); tagit(accS)
        osm(3,1); tick(); A(sst)
        if Dl['se']==2: osm(1,2); tick()
    else:
        for k in range(1,4): osm(k,1); tick()
        A(f'v_cvt_pk_bf16_f32 v{accS}, v{accS}, v{accS+1}\nv_cvt_pk_bf16_f32 v{accS+1}, v{accS+2}, v{accS+3}')
        tagit(accS); A(sst)
    pack(accO[0],accO[1],'0')
    sel=T(44); D=T(16)
    def mksel(): A(f'ds_read_b128 {q4(sel)}, v{vL16} offset:{L_S}')
    for _ in range(Dl['po']): A('s_nop 0')
    for k in range(2 if Dl['se']==2 else 1,4): osm(k,2); tick()
    for k in range(1,4): osm(k,3); tick()
    A(f's_cmp_lg_u32 s{sW}, 3')
    pack(accO[2],accO[3],f's{s32k}',True)
    stamp(6)
    if 6 in stamps or ('tr',6) in X: A(f's_cmp_lg_u32 s{sW}, 3')
    nyoung=sum(1 for it in A.items[vmpos:] if isinstance(it,Ins) and it.vm)
    f1=sum((((a^c)|(b^c))<<(a*4+b*2+c)) for a in (0,1) for b in (0,1) for c in (0,1))
    f2=sum(((a|(b^c))<<(a*4+b*2+c)) for a in (0,1) for b in (0,1) for c in (0,1))
    def zacc(lo=0,hi=16,w=False):
        for i in range(lo,hi): A(f'v_mov_b32 v{T(i)}, 0')
    def h1loads(hd):
        for j in range(4): A(f'buffer_load_dwordx4 {q4(hd+4*j)}, v{vL16}, s[4:7], s{sH1ld} offen offset:{1024*j} sc1')
    def rbody(hd):
        ck=T(20)
        for j in range(4):
            A(f'{M32} {q4(D)}, {q4(hd+4*j)}, {q4(sel)}, {q4(D) if j else "0"}')
            if j==0: A(f'v_bitop3_b32 v{ck}, v{hd}, v{hd+2}, s{sTag} bitop3:{f1:#x}')
            else:
                A(f'v_bitop3_b32 v{ck}, v{ck}, v{hd+4*j}, s{sTag} bitop3:{f2:#x}')
                A(f'v_bitop3_b32 v{ck}, v{ck}, v{hd+4*j+2}, s{sTag} bitop3:{f2:#x}')
        A(f'v_and_b32 v{ck}, 1, v{ck}\nv_cmp_ne_u32 vcc, 0, v{ck}')
    def reduce(between=None,pre=False):
        p1=A.label('P1'); ok=A.label('P1K'); sec=A.label('P1S')
        hd=T(28)
        stamp(10)
        h1loads(hd)
        if between: between()
        rbody(T(0) if pre else hd); A(f's_cbranch_vccnz {sec if pre else p1}')
        A(f'{ok}:')
        A(f'v_permlane32_swap_b32 v{D}, v{D+2}\nv_permlane32_swap_b32 v{D+1}, v{D+3}')
        A(f'v_pk_add_f32 v[{D}:{D+1}], v[{D}:{D+1}], v[{D+2}:{D+3}]\nv_cvt_pk_bf16_f32 v{D}, v{D}, v{D+1}')
        A(f'buffer_store_dword v{D}, v{vH2st}, s[4:7], s{sH2c} offen {st}')
        stamp(11)
        def c():
            if pre:
                A(f'{sec}:\ns_add_u32 s{sSt+8}, s{sSt+8}, 1'); rbody(hd); A(f's_cbranch_vccz {ok}')
            A(f'{p1}:')
            h1loads(hd)
            A(f's_add_u32 s{sPoll}, s{sPoll}, 1\ns_add_u32 s{sSt+13}, s{sSt+13}, 1\ns_cmp_gt_u32 s{sPoll}, {POLLMAX}\ns_cbranch_scc1 {fail}')
            rbody(hd); A(f's_cbranch_vccz {ok}\ns_branch {p1}')
        cold.append(c)
    def prestage():
        for j in range(2): ldsop(lds_qk[j],stg[j])
    def book(ps=True):
        if ps: prestage()
        A(f"""
s_add_u32 s{sH2ld}, s{sH2c}, s{sW3k}
s_add_u32 s{sT3}, s{sH2c}, s{sLate}
s_xor_b32 s{sTag}, s{sTag}, 1
s_mov_b32 s{sT1}, s{sH2p}
s_mov_b32 s{sH2p}, s{sH2n}
s_mov_b32 s{sH2n}, s{sH2c}
s_mov_b32 s{sH2c}, s{sT1}
s_add_u32 s{sKVc}, s{sKn}, 8192
s_add_u32 s{sKn}, s{sKn}, {0 if 'samekv' in X else 32*16384}
s_add_u32 s{sPf}, s{sPf}, {32*16384}
s_add_u32 s{sKMo}, s{sKMo}, {32*2048}
s_mov_b32 s{sVMp}, s{sVMo}
s_add_u32 s{sVMo}, s{sVMo}, {32*4096}
s_add_u32 s{sStep}, s{sStep}, 1
s_mov_b32 s{sPoll}, 0
""")
        scal()
    def l_load(): A(f'buffer_load_dwordx4 {q4(late)}, v{vL16}, s[4:7], s{sT3} offen sc1')
    def gather(ne,g,dl,ps=False):
        p2=A.label('P2'); sec=A.label('P2S')
        regs=[VX,VX+4][:ne]; ck=T(16)
        def e_loads():
            for j in range(ne): A(f'buffer_load_dwordx4 {q4(regs[j])}, v{vL16}, s[4:7], s{sH2ld} offen offset:{2048*j} sc1')
        def body(tgt,nw):
            x=' ;nw' if nw is not None else ''
            for j,r in enumerate(regs):
                if nw is not None: A(f's_waitcnt vmcnt({nw+ne-1-j})')
                if j==0: A(f'v_max3_u32 v{ck}, v{r}, v{r+1}, v{r+2}{x}\nv_max_u32 v{ck}, v{ck}, v{r+3}{x}')
                else: A(f'v_max3_u32 v{ck}, v{ck}, v{r}, v{r+1}{x}\nv_max3_u32 v{ck}, v{ck}, v{r+2}, v{r+3}{x}')
                if j<ne-1: A(f'ds_write_b128 v{vMw}, {q4(r)} offset:{L_M+1024*j}{x}')
            A(f'v_cmp_eq_u32 vcc, -1, v{ck}\ns_cbranch_vccnz {tgt}')
            A(f'ds_write_b128 v{vMw}, {q4(regs[ne-1])} offset:{L_M+1024*(ne-1)}{x}')
            stamp(8)
            A(f's_branch {barA}')
        e_loads(); delay(g); e_loads()
        if ps: prestage()
        delay(dl-(4 if ps else 0)); l_load(); body(sec,ne+1)
        def c():
            A(f'{sec}:\ns_add_u32 s{sSt+9}, s{sSt+9}, 1'); body(p2,1)
            A(f'{p2}:')
            e_loads(); l_load()
            A(f's_add_u32 s{sPoll}, s{sPoll}, 1\ns_add_u32 s{sSt+14}, s{sSt+14}, 1\ns_cmp_gt_u32 s{sPoll}, {POLLMAX}\ns_cbranch_scc1 {fail}')
            body(p2,None)
        cold.append(c)
    W1,W2,W3,W2n=[A.label(x) for x in ('W1','W2','W3','W2X')]
    def setml(): A(f's_mov_b32 s{sPoll}, 0')
    def pchk(tgt,ready):
        A(f'v_cmp_gt_u32 vcc, s{sStep1}, v{vP} ;nw')
        if Dl['xo']: A(f's_andn2_b64 vcc, vcc, s[{sOwn}:{sOwn+1}]\ns_cbranch_scc{0 if ready else 1} {tgt}')
        else: A(f's_cbranch_vcc{"z" if ready else "nz"} {tgt}')
    def spinz():
        sp=A.label('SPIN'); go=A.label('GO')
        pchk(sp,False)
        delay(Dl['z0'])
        A(f'{go}:')
        def c():
            A(f'{sp}:\ns_mov_b32 s{sPoll}, 0\n{sp}_l:')
            for i in range(4):
                probe(); A(f's_add_u32 s{sSt+11}, s{sSt+11}, 1'); delay(Dl['sp'])
                pchk(f'{sp}_d',True)
            A(f's_add_u32 s{sPoll}, s{sPoll}, 1\ns_cmp_lt_u32 s{sPoll}, 32\ns_cbranch_scc1 {sp}_l\n{sp}_d:')
            delay(Dl['z1'])
            A(f's_branch {go}')
        cold.append(c)
    NZ=Dl['nz']
    def barZ():
        if NZ: spinz()
        else: A('s_barrier')
    delay(Dl['lb']); A(f's_cbranch_scc1 {W3}')
    spinz()
    if not NZ: A('s_barrier')
    stamp(9)
    zacc(); setml()
    A(f's_add_u32 s{sT1}, s{sStep}, 3\ns_lshr_b32 s{sT1}, s{sT1}, 2\ns_add_u32 s{sT1}, s{sT1}, 1\ns_min_u32 s{sT1}, s{sT1}, 16')
    A(f'v_mov_b32 v{T(20)}, {L_W+4*WREG}\nds_read2_b32 v[{T(20)}:{T(21)}], v{T(20)} offset0:64 offset1:128')
    A(f'v_min_u32 v{T(20)}, v{T(20)}, v{T(21)}\nv_readfirstlane_b32 s{sT2}, v{T(20)}\ns_max_u32 s{sKVok}, s{sKVok}, s{sT2}')
    emit_wait_kv(A,sT1,fail,T(26))
    delay(Dl['d1']); book(); gather(1,Dl['g'],Dl['al'])
    A(f'{W3}:')
    mksel()
    A(f's_cmp_lg_u32 s{sW}, 0\ns_cbranch_scc1 {W2}')
    if Dl['a0']>=0:
        delay(Dl['a0']); h1loads(T(0)); A('s_barrier'); delay(Dl['a1']); reduce(setml,True); book(False); zacc(w=True); delay(max(0,Dl['a2']-12)); gather(2,Dl['g'],Dl['al'],True)
    else:
        barZ(); delay(Dl['a1']); reduce(lambda: (zacc(),setml())); book(); delay(Dl['a2']); gather(2,Dl['g'],Dl['al'])
    A(f'{W2}:\ns_cmp_lg_u32 s{sW}, 2\ns_cbranch_scc1 {W1}')
    ad=T(21); hq=T(28); cq=T(20); p1=A.label('Q1'); okq=A.label('Q1K')
    A(f'v_lshrrev_b32 v{ad}, 5, v{vL16}\nv_lshlrev_b32 v{ad}, 7, v{ad}\nv_and_or_b32 v{ad}, v{vL16}, 16, v{ad}')
    def q1body(hq=hq):
        A(f'{M32} {q4(D)}, {q4(hq)}, {q4(sel)}, 0')
        A(f'v_bitop3_b32 v{cq}, v{hq}, v{hq+2}, s{sTag} bitop3:{f1:#x}\nv_and_b32 v{cq}, 1, v{cq}\nv_cmp_ne_u32 vcc, 0, v{cq}')
    q1ld=f'buffer_load_dwordx4 {q4(hq)}, v{ad}, s[4:7], s{sH1ld} offen sc1'
    pre=Dl['a0']>=0; secq=A.label('Q1S')
    if pre:
        delay(Dl['c0']); A(q1ld.replace(q4(hq),q4(T(32)))); A('s_barrier'); delay(Dl['c1']); A(q1ld); zacc(); setml(); q1body(T(32))
    else:
        barZ(); delay(Dl['c1']); A(q1ld); zacc(); setml(); q1body()
    A(f's_cbranch_vccnz {secq if pre else p1}\n{okq}:')
    A(f"""
v_pk_add_f32 v[{D}:{D+1}], v[{D}:{D+1}], v[{D+2}:{D+3}]
v_permlane32_swap_b32 v{D}, v{D+1}
v_add_f32 v{D}, v{D}, v{D+1}
v_mov_b32 v{D+1}, v{D}
v_permlane16_swap_b32 v{D}, v{D+1}
v_add_f32 v{D}, v{D}, v{D+1}
v_mov_b32 v{D+1}, v{D}
v_permlane32_swap_b32 v{D}, v{D+1}
v_cvt_pk_bf16_f32 v{D}, v{D}, v{D+1}
buffer_store_dword v{D}, v{vH2st}, s[4:7], s{sH2c} offen {st}
""")
    stamp(11)
    def c():
        if pre:
            A(f'{secq}:\ns_add_u32 s{sSt+8}, s{sSt+8}, 1'); q1body(); A(f's_cbranch_vccz {okq}')
        A(f'{p1}:\n{q1ld}')
        A(f's_add_u32 s{sPoll}, s{sPoll}, 1\ns_add_u32 s{sSt+13}, s{sSt+13}, 1\ns_cmp_gt_u32 s{sPoll}, {POLLMAX}\ns_cbranch_scc1 {fail}')
        q1body(); A(f's_cbranch_vccz {okq}\ns_branch {p1}')
    cold.append(c)
    book(not pre); delay(Dl['c2']+(4 if pre else 0)); gather(2,Dl['g'],Dl['al'],pre)
    A(f'{W1}:')
    if NZ: barZ(); zacc(); setml(); delay(Dl['b1']-16)
    else: zacc(); setml(); barZ(); delay(Dl['b1'])
    reduce(); book(); delay(Dl['b2']); l_load(); stamp(8); A(f's_branch {barA}')
    for c in cold: c()

def emit_chain(A, fail, end, D1=0, D2=2, stamps=(), modes=('',), X=()):
    global QKPOS, NZG, NREP
    NREP=(D1 if isinstance(D1,dict) else {}).get('nr',4)
    NZG=(D1 if isinstance(D1,dict) else {}).get('nz',0)
    QKPOS=QKV[(D1 if isinstance(D1,dict) else {}).get('qp',QPDEF)]
    m, qk_order, lds_qk, lds_o = operand_map()
    emit_chain_init(A, m, X)
    lp=A.label('CB'); ck=A.label('CBC')
    A(f's_mov_b32 s{sPoll}, 0\ns_branch {ck}\n{lp}:')
    status_loads(A)
    A(f"""
s_add_u32 s{sPoll}, s{sPoll}, 1
s_cmp_gt_u32 s{sPoll}, {POLLMAX}
s_cbranch_scc1 {fail}
{ck}:
v_add3_u32 v65, v65, v66, v67
v_add3_u32 v68, v68, v69, v70
v_add3_u32 v65, v65, v68, v71
v_add_u32 v65, v65, v64
v_min_u32 v{VX+2}, v{VX+2}, v{VX+3}
v_readfirstlane_b32 s{sT1}, v{VX+1}
v_readfirstlane_b32 s{sT2}, v64
v_readfirstlane_b32 s{sT3}, v65
v_readfirstlane_b32 s{sKVok}, v{VX+2}
s_cmp_lt_u32 s{sT1}, 8
s_cbranch_scc1 {lp}
s_cmp_lt_u32 s{sT2}, 32
s_cselect_b32 s{sMode}, 1, 0
s_cselect_b32 s{sT3}, s{sT3}, 256
s_cmp_lt_u32 s{sT3}, 256
s_cbranch_scc1 {lp}
s_cmp_ge_u32 s{sStep1}, 8
s_cselect_b32 s{sKVok}, s{sKVok}, 0
s_mov_b32 s{sT1}, 1
""")
    emit_wait_kv(A,sT1,fail,VX)
    A(f'buffer_load_dwordx4 {q4(KX)}, v{vKx}, s[4:7], s{sKVc} offen sc1')
    A(f'buffer_load_dwordx4 {q4(KX+4)}, v{vKx}, s[4:7], s{sKVc} offen offset:256 sc1')
    A(f's_add_u32 s{sKVc}, s{sKVc}, 8192')
    A(f's_xor_b32 s{sWbm}, s{sW}, 3\ns_or_b32 s{sWbm}, s{sWbm}, s{sH}')
    A(f's_mov_b32 s{sVMp}, {WS_BYTES}')
    A(f's_sub_u32 s{sFlg1}, s{sFlg}, {L_C}\ns_and_b32 s{sPrb1}, s{sPrb}, {0xfffff0ff}')
    A(f's_mov_b32 s{sG2}, 0\ns_mov_b32 s{sG2+1}, -1')
    A(f's_lshl_b32 s{sOwn}, 1, s{sH}\ns_mov_b32 s{sOwn+1}, s{sOwn}')
    A(f's_mov_b32 s{sFlagM2}, s{sFlagM}\ns_mov_b32 s{sPfK}, {32*16384-8192-2048}')
    A(f's_sub_u32 s{sFlagKVd}, s{sFlagKV}, {L_C+256}\ns_cmp_eq_u32 s{sW}, 3\ns_cselect_b32 s{sKVok}, s{sKVok}, 16')
    A(f'v_mov_b32 v{VX}, {L_W+4*WREG}\nv_mov_b32 v{VX+1}, 0\nds_write2_b32 v{VX}, v{VX+1}, v{VX+1} offset0:64 offset1:128')
    for i in range(16):
        if not ('itrace' in X and 4<=i<10): A(f's_mov_b32 s{sSt+i}, 0')
    if 'rdy' in X: A('s_memrealtime s[90:91]\ns_waitcnt lgkmcnt(0)\ns_mov_b32 s99, s90\ns_mov_b32 s90, 0\ns_mov_b32 s91, 0')
    if 'initstamp' in X: A(f's_memtime s[{sSt+10}:{sSt+11}]\ns_waitcnt lgkmcnt(0)\ns_sub_u32 s{sSt+10}, s{sSt+10}, s72\ns_mov_b32 s{sSt+11}, 0')
    done=A.label('CDONE')
    trcopy='\n'.join(f's_mov_b32 s{sSt+4+i}, s{sTr+2*i}' for i in range(6))+'\n' if any(isinstance(x,tuple) and x[0]=='tr' for x in X) else ''
    if len(modes)==2:
        A(f's_cmp_lg_u32 s{sMode}, 0\ns_cbranch_scc1 CSTEP_1_prep')
    for i,st in enumerate(modes):
        emit_chain_loop(A, m, qk_order, lds_qk, lds_o, st, i, fail, done, D1, D2, list(stamps), X)
    A(f"""
{done}:
buffer_store_dwordx4 {q4(T(32))}, v{vL16}, s[4:7], s{sVMo} offen sc1
s_waitcnt lgkmcnt(0)
{trcopy}s_waitcnt vmcnt(0)
s_barrier
s_cmp_lg_u32 s{sW}, 3
s_cbranch_scc1 {end}
v_mov_b32 v{T(0)}, 0
v_mov_b32 v{T(1)}, 64
buffer_store_dword v{T(1)}, v{T(0)}, s[4:7], s{sFlagM2} offen sc1
s_branch {end}
""")
```

```python
WS_H1   = 0
H1SZ    = 72*32*128
WS_H2   = H1SZ
H2SZ    = 9216
WS_F1   = 0x50000
WS_FLAGS= 0xE0000
F_KV    = WS_FLAGS
F_M     = WS_FLAGS + 16384
F_O     = WS_FLAGS + 20480
WS_KM   = 0x100000
WS_VM   = 0x500000
WS_KV   = 0x1000000
WS_O    = 0x3000000
WS_AK   = 0x4000000
WS_Q    = 0x5000000
WS_BYTES= 0x10000000
KA = dict(A_x=0,A_wq=8,A_wk=16,A_wv=24,A_wo=32,B_x=40,B_mem0=48,B_Wq=56,B_Wk=64,B_Wv=72,B_Wo=80,B_seg=88,out=96,dbg=104,ws=112)
D_TICK0 = 0
D_OVF   = 64
D_TICK  = 128
D_INIT  = 192
D_AKV   = 224
FLAG_BYTES = 28672
```

```python
from asmgen import *
from common import *
import math, struct

POLLMAX=400000
PROF=False
DEFER=True
PROFSEG=63
THR=0
M32='v_mfma_f32_32x32x16_bf16'
def q4(b,f='v'): return f'{f}[{b}:{b+3}]'
def q16(b,f='v'): return f'{f}[{b}:{b+15}]'
def fbits(x): return struct.unpack('<I',struct.pack('<f',x))[0]

sH,sW = 12,13
sT0,sT1,sT2,sT3=36,37,38,39
sPoll=40

def lane_setup(A):
    A('''
v_and_b32 v1, 63, v0
v_lshlrev_b32 v2, 4, v1
v_and_b32 v3, 31, v1
v_lshrrev_b32 v4, 5, v1
v_bfe_u32 v5, v1, 4, 1
v_bfe_u32 v6, v1, 2, 2
v_and_b32 v7, 3, v1
''')

def wait_init(A, fail, dbg='s[66:67]'):
    lp=A.label('WI')
    A(f'''
s_mov_b32 s{sPoll}, 0
v_mov_b32 v8, 0
{lp}:
global_load_dword v9, v8, {dbg} offset:{D_INIT} sc1
s_add_u32 s{sPoll}, s{sPoll}, 1
s_cmp_gt_u32 s{sPoll}, {POLLMAX}
s_cbranch_scc1 {fail}
v_readfirstlane_b32 s{sT1}, v9
s_cmp_lt_u32 s{sT1}, 8
s_cbranch_scc1 {lp}
''')

def poll_ge(A, fail, soff, need, offs, tmp, cache=None, sleep=4):
    lp=A.label('PG'); ok=A.label('PK')
    if cache is not None: A(f's_cmp_ge_u32 s{cache}, s{need}\ns_cbranch_scc1 {ok}')
    res=cache if cache is not None else sT3
    A(f's_mov_b32 s{sPoll}, 0\nv_mov_b32 v{tmp}, 0\n{lp}:')
    for i,o in enumerate(offs): A(f'buffer_load_dword v{tmp+1+i}, v{tmp}, s[4:7], s{soff} offen offset:{o} sc1')
    A(f's_add_u32 s{sPoll}, s{sPoll}, 1\ns_cmp_gt_u32 s{sPoll}, {POLLMAX}\ns_cbranch_scc1 {fail}')
    for i in range(1,len(offs)): A(f'v_min_u32 v{tmp+1}, v{tmp+1}, v{tmp+1+i}')
    A(f'v_readfirstlane_b32 s{res}, v{tmp+1}\ns_cmp_ge_u32 s{res}, s{need}\ns_cbranch_scc1 {ok}\ns_sleep {sleep}\ns_branch {lp}\n{ok}:')

def defer(A, fail, sidx):
    wait_init(A, fail)
    A(f's_and_b32 s41, s{sidx}, 31\ns_lshl_b32 s41, s41, 9\ns_add_u32 s41, s41, {F_KV}\ns_mov_b32 s42, 1')
    poll_ge(A, fail, 41, 42, [0], 240, sleep=8)

def emit_proj(A, kind, fail, end, X=()):
    wname={'K':'B_Wk','V':'B_Wv','Q':'B_Wq'}[kind]
    A(f"""
s_load_dwordx2 s[4:5], s[0:1], {KA['ws']}
s_load_dwordx2 s[8:9], s[0:1], {KA[wname]}
s_load_dwordx2 s[16:17], s[0:1], {KA['B_x']}
s_load_dwordx2 s[66:67], s[0:1], {KA['dbg']}
""")
    lane_setup(A)
    vA=10; vX=14; vX2=12; vR=16; XB=32; NXB=8; ACC=144; PK=96
    sSeg,sXo,sXs,sRound,sOut,sFl,sKVok,sMok,sFlM,sNeed=20,21,22,23,24,25,26,27,28,29
    SEGX=32*1152
    A(f"""
v_lshrrev_b32 v8, 4, v1
v_and_b32 v9, 15, v1
v_lshlrev_b32 v15, 2, v8
v_xor_b32 v9, v9, v15
v_lshlrev_b32 v9, 4, v9
v_lshl_add_u32 v9, v8, 13, v9
s_lshl_b32 s{sT0}, s{sH}, 8
v_add_u32 v9, s{sT0}, v9
v_lshl_add_u32 v8, v4, 5, v6
v_lshlrev_b32 v8, 8, v8
v_lshl_add_u32 v8, v5, 5, v8
v_lshl_add_u32 v8, v7, 3, v8
v_xor_b32 v15, s{sW}, v6
v_lshl_add_u32 v{vA}, v15, 6, v8
v_lshrrev_b32 v15, 3, v1
v_mul_u32_u24 v{vX}, 1152, v15
v_lshrrev_b32 v15, 4, v1
v_and_b32 v{vX2}, 7, v1
v_xor_b32 v15, v15, v{vX2}
v_xor_b32 v{vX2}, 4, v15
v_lshl_add_u32 v{vX2}, v{vX2}, 4, v{vX}
v_lshl_add_u32 v{vX}, v15, 4, v{vX}
s_lshl_b32 s{sXs}, s{sW}, 12
v_bfe_u32 v15, v3, 1, 3
v_lshlrev_b32 v{vR}, 2, v4
v_xor_b32 v15, v15, v{vR}
v_lshlrev_b32 v{vR+3}, 7, v3
v_lshl_add_u32 v{vR}, v15, 4, v{vR+3}
v_xor_b32 v{vR+1}, 16, v{vR}
v_xor_b32 v{vR+2}, 32, v{vR}
v_xor_b32 v{vR+3}, 48, v{vR}
s_waitcnt lgkmcnt(0)
s_mov_b32 s6, {WS_BYTES}
s_mov_b32 s7, 0x20000
s_mov_b32 s10, {576*8192}
s_mov_b32 s11, 0x20000
s_mov_b32 s18, {2048*1152}
s_mov_b32 s19, 0x20000
""")
    if kind=='Q' and DEFER&1: A('v_mov_b32 v31, v9'); defer(A, fail, sH); A('v_mov_b32 v9, v31')
    A(f's_mul_i32 s{sT0}, s{sW}, {36*1024}\ns_mul_i32 s{sT1}, s{sW}, {36*4*8192}\ns_mov_b32 s{sT2}, 0')
    for k in range(2):
        for j in range(4): A(f'v_add_u32 v{vR+4*(k+1)+j}, {49152*(k+1)}, v{vR+j}')
    lp=A.label('WD')
    A(f"""
{lp}:
s_mov_b32 m0, s{sT0}
s_add_u32 s{sT0}, s{sT0}, 1024
buffer_load_dwordx4 v9, s[8:11], s{sT1} offen lds
s_add_u32 s{sT1}, s{sT1}, {4*8192}
s_add_u32 s{sT2}, s{sT2}, 1
s_cmp_lt_u32 s{sT2}, 36
s_cbranch_scc1 {lp}
""")
    A(f's_lshl_b32 s{sT3}, s{sH}, 2\ns_add_u32 s{sT3}, s{sT3}, s{sW}\ns_mul_i32 s{sT3}, s{sT3}, 18432\nv_lshlrev_b32 v15, 7, v1')
    for i in range(3): A(f'buffer_load_dword v{100+i}, v15, s[16:19], s{sT3} offen\ns_add_u32 s{sT3}, s{sT3}, {8192 if i==0 else 2048}')
    A(f"""
s_mul_i32 s{sXo}, s{sW}, {SEGX}
s_mov_b32 s{sRound}, 0
s_lshl_b32 s{sFl}, s{sH}, 9
s_add_u32 s{sFl}, s{sFl}, {F_KV+(256 if kind=='V' else 0)}
s_lshl_b32 s{sOut}, s{sH}, {13 if kind=='Q' else 14}
s_add_u32 s{sOut}, s{sOut}, {WS_Q if kind=='Q' else WS_KV+(8192 if kind=='V' else 0)}
s_lshl_b32 s{sT0}, s{sW}, 11
s_add_u32 s{sOut}, s{sOut}, s{sT0}
s_waitcnt vmcnt(3)
s_barrier
""")
    for ks in range(36):
        cc,j=ks//4,ks%4
        if ks in (12,24): A(f'v_add_u32 v{vA}, 49152, v{vA}')
        for x in range(2): A(f'ds_read_b64_tr_b16 a[{4*ks+2*x}:{4*ks+2*x+1}], v{vA} offset:{(cc%3)*16384+(8*j+4*x)*256}')
    A('s_waitcnt lgkmcnt(0)\ns_barrier')
    def xdma(cc):
        A(f's_add_u32 m0, s{sXs}, {cc*16384}')
        for i in range(4):
            A(f's_add_u32 s{sT3}, s{sXo}, {i*(9216-1024)}')
            A(f'buffer_load_dwordx4 v{vX2 if i%2 else vX}, s[16:19], s{sT3} offen offset:{1024*i} lds')
        A(f's_add_u32 s{sXo}, s{sXo}, {128 if cc<8 else 4*SEGX-8*128}')
    for cc in range(8): xdma(cc)
    if kind!='Q': wait_init(A, fail)
    def xr(n):
        n%=144; cc,j,sg=n//16,(n%16)//4,n%4
        A(f'ds_read_b128 {q4(XB+4*(n%NXB))}, v{vR+4*(cc//3)+j} offset:{(cc%3)*16384+4096*sg}')
    A('s_waitcnt vmcnt(28)\ns_barrier')
    if PROF: A('s_memrealtime s[90:91]\ns_waitcnt lgkmcnt(0)\ns_mov_b32 s99, s90')
    PD=6
    for n in range(PD): xr(n)
    rnd=A.label('RND'); nf=A.label('NF')
    A(f'{rnd}:')
    for n in range(144):
        cc,j,sg=n//16,(n%16)//4,n%4
        if n%16==8:
            A(f's_waitcnt vmcnt({8 if cc==2 and kind!="Q" else 24})\ns_barrier')
            if cc==2 and kind!='Q':
                A(f's_cmp_lg_u32 s{sW}, 0\ns_cbranch_scc1 {nf}\nv_mov_b32 v8, 0\nv_mov_b32 v9, s{sRound}\nbuffer_store_dword v9, v8, s[4:7], s{sFl} offen sc1\n{nf}:')
            xdma((cc+8)%9)
            if THR: A(f's_sleep {THR}')
        w=q4(4*(4*cc+j),'a'); x=q4(XB+4*(n%NXB)); acc=q16(ACC+16*sg,'a')
        a_,b_=(x,w) if kind=='V' else (w,x)
        A(f'{M32} {acc}, {a_}, {b_}, {"0" if n<4 else acc}')
        xr(n+PD)
    SEGO=32*(8192 if kind=='Q' else 16384)
    for sg in range(4):
        for r in range(16): A(f'v_accvgpr_read_b32 v{128+r}, a{ACC+16*sg+r}')
        for j in range(2):
            for t,a in enumerate((j,j+2)):
                for p in range(2): A(f'v_cvt_pk_bf16_f32 v{PK+8*sg+4*j+2*t+p}, v{128+4*a+2*p}, v{128+4*a+2*p+1}')
            A(f'buffer_store_dwordx4 {q4(PK+8*sg+4*j)}, v2, s[4:7], s{sOut} offen offset:{1024*j} {"" if kind=="Q" else "sc1"}')
        A(f's_add_u32 s{sOut}, s{sOut}, {SEGO}')
    A(f"""
s_add_u32 s{sRound}, s{sRound}, 1
s_cmp_lt_u32 s{sRound}, 16
s_cbranch_scc1 {rnd}
s_waitcnt vmcnt(0) lgkmcnt(0)
s_barrier
""")
    if kind!='Q':
        nf=A.label('NF')
        A(f's_cmp_lg_u32 s{sW}, 0\ns_cbranch_scc1 {nf}\nv_mov_b32 v8, 0\nv_mov_b32 v9, 16\nbuffer_store_dword v9, v8, s[4:7], s{sFl} offen sc1\n{nf}:')
        if kind=='K': A(f's_add_u32 s{sH}, s{sH}, 36\ns_branch L_op')
        else: A(f's_add_u32 s{sH}, s{sH}, 68\ns_cmp_lt_u32 s{sH}, 72\ns_cbranch_scc1 L_op\ns_branch {end}')
        return
    wait_init(A, fail)
    A(f'v_lshlrev_b32 v15, 2, v4\nv_mov_b32 v8, {fbits(-1e30):#x}')
    for r in range(16):
        A(f'v_add_u32 v9, {8*(r//4)+r%4}, v15\nv_cmp_gt_u32 vcc, v9, v3\nv_cndmask_b32 v{80+r}, 0, v8, vcc')
    A(f"""
v_and_b32 v28, 7, v1
v_lshlrev_b32 v28, 4, v28
v_lshl_add_u32 v28, v4, 7, v28
v_and_b32 v29, 15, v1
v_lshlrev_b32 v29, 4, v29
v_lshl_add_u32 v29, v4, 8, v29
v_lshl_add_u32 v29, v5, 3, v29
s_mov_b32 s{sSeg}, s{sW}
s_mov_b32 s{sRound}, 0
s_mov_b32 s{sKVok}, 0
s_mov_b32 s{sMok}, 0
s_lshl_b32 s{sFlM}, s{sH}, 7
s_add_u32 s{sFlM}, s{sFlM}, {F_M}
""")
    seg=A.label('SEG')
    A(f'{seg}:\ns_lshl_b32 s{sOut}, s{sSeg}, 5\ns_add_u32 s{sOut}, s{sOut}, s{sH}')
    A(f's_lshl_b32 s{sT0}, s{sOut}, 13\ns_add_u32 s{sT0}, s{sT0}, {WS_Q}\ns_add_u32 s{sT1}, s{sT0}, 4096')
    for p in range(8): A(f'buffer_load_dwordx4 {q4(PK+4*p)}, v2, s[4:7], s{sT0 if p<4 else sT1} offen offset:{1024*(p%4)} sc1')
    if True:
        c=math.log2(math.e)/math.sqrt(128.0)
        KB=128
        VB=160; VM=192; S=208; SM=224;
        sKVb,sKMb,sVMb,sOb=30,31,32,33
        A(f'''
s_lshl_b32 s{sKVb}, s{sOut}, 14
s_add_u32 s{sKVb}, s{sKVb}, {WS_KV}
s_lshl_b32 s{sKMb}, s{sOut}, 11
s_add_u32 s{sKMb}, s{sKMb}, {WS_KM}
s_lshl_b32 s{sVMb}, s{sOut}, 12
s_add_u32 s{sVMb}, s{sVMb}, {WS_VM}
s_lshl_b32 s{sOb}, s{sOut}, 13
s_add_u32 s{sOb}, s{sOb}, {WS_O}
s_add_u32 s{sNeed}, s{sRound}, 1
''')
        poll_ge(A,fail,sFl,sNeed,[0,256],240,cache=sKVok)
        for p in range(16):
            if p%4==0 and p: A(f's_add_u32 s{sKVb}, s{sKVb}, 4096')
            A(f'buffer_load_dwordx4 {q4(KB+4*p)}, v2, s[4:7], s{sKVb} offen offset:{1024*(p%4)} sc1')
        KM=32
        def mloads():
            for p in range(8): A(f'buffer_load_dwordx4 {q4(KM+4*p)}, v28, s[4:7], s{sKMb} offen offset:{256*p} sc1')
            for E in range(4):
                for hf in range(2): A(f'buffer_load_dwordx2 v[{VM+4*E+2*hf}:{VM+4*E+2*hf+1}], v29, s[4:7], s{sVMb} offen offset:{1024*E+512*hf} sc1')
        def sx():
            for p in range(8): A(f'{M32} {q16(S)}, {q4(KB+4*p)}, {q4(PK+4*p)}, {q16(80) if p==0 else q16(S)}')
        lt=A.label('QL'); jn=A.label('QJ')
        A(f's_add_u32 s{sNeed}, s{sSeg}, 1\ns_cmp_lt_u32 s{sMok}, s{sNeed}\ns_cbranch_scc1 {lt}')
        mloads(); sx()
        A(f's_branch {jn}\n{lt}:')
        sx()
        if PROF: A('s_memrealtime s[90:91]\ns_waitcnt lgkmcnt(0)\ns_mov_b32 s99, s90')
        poll_ge(A,fail,sFlM,sNeed,[0],240,cache=sMok,sleep=2)
        mloads()
        A(f'{jn}:')
        mx,t=240,241
        A(f'v_max3_f32 v{mx}, v{S}, v{S+1}, v{S+2}')
        for r in range(3,15,2): A(f'v_max3_f32 v{mx}, v{mx}, v{S+r}, v{S+r+1}')
        A(f'v_max_f32 v{mx}, v{mx}, v{S+15}')
        for p in range(8): A(f'{M32} {q16(SM)}, {q4(KM+4*p)}, {q4(PK+4*p)}, {"0" if p==0 else q16(SM)}')
        A(f'''
s_mov_b32 s{sT0}, {fbits(c):#x}
v_max3_f32 v{mx}, v{mx}, v{SM}, v{SM+1}
v_max3_f32 v{mx}, v{mx}, v{SM+2}, v{SM+3}
v_mov_b32 v{t}, v{mx}
v_permlane32_swap_b32 v{mx}, v{t}
v_max_f32 v{mx}, v{mx}, v{t}
v_mul_f32 v{mx}, s{sT0}, v{mx}
''')
        regs=[S+r for r in range(16)]+[SM+r for r in range(4)]
        for r in regs: A(f'v_fma_f32 v{r}, v{r}, s{sT0}, -v{mx}')
        for r in regs: A(f'v_exp_f32 v{r}, v{r}')
        P=KB
        for j in range(2):
            for tt,a in enumerate((j,j+2)):
                for p in range(2): A(f'v_cvt_pk_bf16_f32 v{P+4*j+2*tt+p}, v{S+4*a+2*p}, v{S+4*a+2*p+1}')
        for tt in range(2):
            for p in range(2): A(f'v_cvt_pk_bf16_f32 v{P+8+2*tt+p}, v{SM+2*p}, v{SM+2*p+1}')
        for E in range(4):
            A(f'{M32} {q16(16*E,"a")}, {q4(VB+8*E)}, {q4(P)}, 0')
            A(f'{M32} {q16(16*E,"a")}, {q4(VB+8*E+4)}, {q4(P+4)}, {q16(16*E,"a")}')
            A(f'{M32} {q16(16*E,"a")}, {q4(VM+4*E)}, {q4(P+8)}, {q16(16*E,"a")}')
            if E==0:
                for r in regs[1:10]: A(f'v_add_f32 v{S}, v{S}, v{r}')
            if E==1:
                for r in regs[10:]: A(f'v_add_f32 v{S}, v{S}, v{r}')
        A(f'v_mov_b32 v{t}, v{S}\nv_permlane32_swap_b32 v{S}, v{t}\nv_add_f32 v{S}, v{S}, v{t}\nv_rcp_f32 v{mx}, v{S}')
        A(f's_add_u32 s{sT0}, s{sOb}, 4096')
        for E in range(4):
            for r in range(16): A(f'v_accvgpr_read_b32 v{S+r}, a{16*E+r}')
            for r in range(16): A(f'v_mul_f32 v{S+r}, v{mx}, v{S+r}')
            for j in range(2):
                for tt,a in enumerate((j,j+2)):
                    for p in range(2): A(f'v_cvt_pk_bf16_f32 v{PK+8*E+4*j+2*tt+p}, v{S+4*a+2*p}, v{S+4*a+2*p+1}')
                p=2*E+j
                A(f'buffer_store_dwordx4 {q4(PK+4*p)}, v2, s[4:7], s{sOb if p<4 else sT0} offen offset:{1024*(p%4)} sc1')
        A(f'''
s_lshl_b32 s{sT0}, s{sOut}, 2
s_add_u32 s{sT0}, s{sT0}, {F_O}
v_mov_b32 v8, 0
v_mov_b32 v9, 1
s_add_u32 s{sRound}, s{sRound}, 1
s_waitcnt vmcnt(0)
buffer_store_dword v9, v8, s[4:7], s{sT0} offen sc1
''')
    A(f"""
s_add_u32 s{sSeg}, s{sSeg}, 4
s_cmp_lt_u32 s{sSeg}, 64
s_cbranch_scc1 {seg}
s_branch {end}
""")

def emit_outproj(A, fail, end):
    M16='v_mfma_f32_16x16x32_bf16'
    A(f"""
s_load_dwordx2 s[4:5], s[0:1], {KA['ws']}
s_load_dwordx2 s[8:9], s[0:1], {KA['B_Wo']}
s_load_dwordx2 s[16:17], s[0:1], {KA['out']}
s_load_dwordx2 s[66:67], s[0:1], {KA['dbg']}
""")
    lane_setup(A)
    sZ,sNb,sSeg,sSrc,sLb,sPar,sFl=20,21,22,23,24,25,26
    sInc,sJmp,sF1,sF2,sG=27,28,29,30,31
    S0=0
    A(f"""
s_cmp_ge_u32 s{sH}, 36
s_cselect_b32 s{sG}, 1, 0
s_cselect_b32 s{sT0}, 36, 0
s_sub_u32 s{sH}, s{sH}, s{sT0}
s_cmp_ge_u32 s{sH}, 18
s_cselect_b32 s{sZ}, 1, 0
s_mul_i32 s{sT0}, s{sZ}, 18
s_sub_u32 s{sNb}, s{sH}, s{sT0}
v_lshrrev_b32 v8, 2, v1
v_mul_u32_u24 v8, 1152, v8
v_lshl_add_u32 v8, v7, 4, v8
s_lshl_b32 s{sT0}, s{sNb}, 6
v_add_u32 v8, s{sT0}, v8
s_mul_i32 s{sLb}, s{sW}, 32768
v_lshrrev_b32 v15, 4, v1
v_lshl_add_u32 v9, v15, 2, v6
v_lshlrev_b32 v9, 6, v9
v_lshl_add_u32 v9, v7, 3, v9
v_add_u32 v9, s{sLb}, v9
s_waitcnt lgkmcnt(0)
s_mov_b32 s6, {WS_BYTES}
s_mov_b32 s7, 0x20000
s_mov_b32 s10, {4096*1152}
s_mov_b32 s11, 0x20000
s_mov_b32 s18, {2048*2304}
s_mov_b32 s19, 0x20000
s_mul_i32 s{sSrc}, s{sW}, {1024*1152}
""")
    if DEFER&2:
        A('v_mov_b32 v30, v8\nv_mov_b32 v31, v9'); defer(A, fail, sH); A('v_mov_b32 v8, v30\nv_mov_b32 v9, v31')
    def dma(hd):
        for i in range(8):
            A(f's_add_u32 m0, s{sLb}, {(hd%4)*8192+1024*i}\nbuffer_load_dwordx4 v8, s[8:11], s{sSrc} offen lds\ns_add_u32 s{sSrc}, s{sSrc}, {16*1152}')
    for hd in range(4): dma(hd)
    for hd in range(8):
        A(f's_waitcnt vmcnt({8*min(3,7-hd)})')
        for E in range(4):
            for c in range(2):
                for x in range(2):
                    r=((hd*4+E)*2+c)*4+2*x
                    A(f'ds_read_b64_tr_b16 a[{r}:{r+1}], v9 offset:{(hd%4)*8192+(32*E+16*x)*64+32*c}')
        if hd+4<8:
            A('s_waitcnt lgkmcnt(0)'); dma(hd+4)
    A(f"""
v_and_b32 v14, 15, v1
s_lshl_b32 s{sT0}, s{sZ}, 8
v_lshlrev_b32 v28, 9, v15
v_lshl_add_u32 v28, v14, 4, v28
v_add_u32 v28, s{sT0}, v28
s_lshl_b32 s{sT0}, s{sW}, 11
v_add_u32 v11, s{sT0}, v2
s_lshl_b32 s{sT0}, s{sW}, 9
v_lshlrev_b32 v12, 3, v1
v_add_u32 v12, s{sT0}, v12
v_bfe_u32 v10, v1, 1, 4
v_mul_u32_u24 v10, 2304, v10
v_lshl_add_u32 v10, v4, 3, v10
v_and_b32 v14, 1, v1
v_lshl_add_u32 v10, v14, 2, v10
s_lshl_b32 s{sT0}, s{sNb}, 6
s_lshl_b32 s{sT1}, s{sW}, 4
s_add_u32 s{sT0}, s{sT0}, s{sT1}
s_mul_i32 s{sT1}, s{sZ}, {16*2304}
s_add_u32 s{sT0}, s{sT0}, s{sT1}
s_add_u32 s{sT0}, s{sT0}, 1152
v_add_u32 v10, s{sT0}, v10
v_and_b32 v13, 7, v1
v_lshlrev_b32 v13, 2, v13
s_lshl_b32 s{sT0}, s{sW}, 5
v_add_u32 v13, s{sT0}, v13
s_mul_i32 s{sSeg}, s{sG}, {S0+1}
""")
    wait_init(A, fail)
    A('s_waitcnt lgkmcnt(0)\ns_barrier')
    seg=A.label('OSEG'); lp=A.label('OP'); ok=A.label('OK'); go=A.label('OGO'); plain=A.label('OPL')
    OB=32; ACC=16; RB=160
    def ld(k):
        A(f'buffer_load_dwordx4 {q4(OB+4*k)}, v28, s[4:7], s{sSrc} offen offset:{2048*(k%2)} sc1')
        if k%2 and k<31: A(f's_add_u32 s{sSrc}, s{sSrc}, 4096')
    def epi():
        for c in range(2): A(f'ds_write_b128 v11, {q4(ACC+4*c)} offset:{1024*c}')
        A('s_waitcnt lgkmcnt(0)\ns_barrier')
        for w in range(4): A(f'ds_read_b64 v[{RB+2*w}:{RB+2*w+1}], v12 offset:{2048*w}')
        for w in range(1,4):
            for b in range(2): A(f'v_add_f32 v{RB+b}, v{RB+b}, v{RB+2*w+b}')
        A(f"""
v_cvt_pk_bf16_f32 v{RB}, v{RB}, v{RB+1}
s_mul_i32 s{sT0}, s{sSeg}, {32*2304}
buffer_store_dword v{RB}, v10, s[16:19], s{sT0} offen
v_xor_b32 v11, 8192, v11
v_xor_b32 v12, 8192, v12
s_mov_b32 s{sSeg}, s{sInc}
""")
    def nxt(d,src):
        A(f's_cmp_ge_u32 s{src}, {S0}\ns_cselect_b32 s{d}, 2, 1\ns_add_u32 s{d}, s{d}, s{src}')
    def src(sg): A(f's_lshl_b32 s{sSrc}, s{sg}, 18\ns_lshl_b32 s{sT0}, s{sW}, 16\ns_add_u32 s{sSrc}, s{sSrc}, s{sT0}\ns_add_u32 s{sSrc}, s{sSrc}, {WS_O}')
    def flg(d,sg): A(f's_lshl_b32 s{d}, s{sg}, 7\ns_add_u32 s{d}, s{d}, {F_O}')
    A(f'{seg}:')
    nxt(sInc,sSeg); flg(sFl,sSeg); flg(sF1,sInc); src(sSeg)
    A(f"""
s_mov_b32 s{sPoll}, 0
{lp}:
buffer_load_dword v14, v13, s[4:7], s{sFl} offen sc1
buffer_load_dword v15, v13, s[4:7], s{sF1} offen sc1
s_add_u32 s{sPoll}, s{sPoll}, 1
s_cmp_gt_u32 s{sPoll}, {POLLMAX}
s_cbranch_scc1 {fail}
v_cmp_eq_u32 vcc, 0, v14
s_cbranch_vccz {ok}
s_sleep 1
s_branch {lp}
{ok}:
""")
    for k in range(32): ld(k)
    prof=f's_cmp_lg_u32 s{sSeg}, {PROFSEG}\ns_cbranch_scc1 {go}_p\ns_memrealtime s[90:91]\ns_waitcnt lgkmcnt(0)\ns_mov_b32 s99, s90\n{go}_p:' if PROF else ''
    A(f"""
{go}:
{prof}
""")
    nxt(sInc,sSeg); nxt(sF2,sInc); flg(sF2,sF2); src(sInc)
    A(f"""
v_cmp_eq_u32 vcc, 0, v15
s_cmp_ge_u32 s{sInc}, 64
s_cbranch_scc1 {plain}
s_cbranch_vccnz {plain}
buffer_load_dword v15, v13, s[4:7], s{sF2} offen sc1
""")
    for k in range(32):
        for c in range(2): A(f'{M16} {q4(ACC+4*c)}, {q4(8*k+4*c,"a")}, {q4(OB+4*k)}, {"0" if k==0 else q4(ACC+4*c)}')
        ld(k)
    epi()
    A(f's_branch {go}\n{plain}:')
    for k in range(32):
        for c in range(2): A(f'{M16} {q4(ACC+4*c)}, {q4(8*k+4*c,"a")}, {q4(OB+4*k)}, {"0" if k==0 else q4(ACC+4*c)}')
    epi()
    A(f's_cmp_lt_u32 s{sSeg}, 64\ns_cbranch_scc1 {seg}\ns_branch {end}')

def emit_flaginit(A, end):
    lp=A.label('FI')
    assert WS_H2==72*4096 and WS_H2+3*H2SZ<=79*4096 and WS_F1==80*4096 and FLAG_BYTES==7*4096
    A(f"""
s_load_dwordx2 s[4:5], s[0:1], {KA['ws']}
s_load_dwordx2 s[66:67], s[0:1], {KA['dbg']}
v_lshlrev_b32 v2, 4, v0
s_mul_i32 s20, s{sH}, 11
s_add_u32 s21, s20, 11
s_waitcnt lgkmcnt(0)
s_mov_b32 s6, {WS_BYTES}
s_mov_b32 s7, 0x20000
{lp}:
s_lshl_b32 s22, s20, 12
s_add_u32 s23, s22, {WS_FLAGS-81*4096}
s_cmp_ge_u32 s20, 81
s_cselect_b32 s22, s23, s22
s_sub_u32 s23, s20, 72
s_cmp_lt_u32 s23, 7
s_cselect_b32 s23, -1, 0
v_mov_b32 v4, s23
v_mov_b32 v5, s23
v_mov_b32 v6, s23
v_mov_b32 v7, s23
buffer_store_dwordx4 v[4:7], v2, s[4:7], s22 offen sc1
s_add_u32 s20, s20, 1
s_cmp_lt_u32 s20, s21
s_cbranch_scc1 {lp}
s_waitcnt vmcnt(0)
s_barrier
s_cmp_lg_u32 s{sW}, 0
s_cbranch_scc1 {end}
v_mov_b32 v4, 0
v_mov_b32 v5, 1
s_mov_b64 exec, 1
global_atomic_add v4, v5, s[66:67] offset:{D_INIT}
s_branch {end}
""")
```

```python
import sys, os
sys.path.insert(0, os.path.dirname(__file__))
from asmgen import *
from common import *
import chain, workb
NAME='concat_heads__grouped_kv_mqa__memory_aug_recurrent_mem_tr__prompt'

def build(chain_kw=None, with_a=True, prof=False, XK=(), XV=(), warm=False, defer=0, pseg=63, touch=False, fakexcc=0, ml=70, thr=0, perm='CLOQAKBV'):
    A=Asm()
    workb.PROF=prof; workb.DEFER=defer; workb.PROFSEG=pseg; workb.THR=thr
    sH,sW=12,13
    fake={0:'',1:'s_min_u32 s20, s20, 5',2:'s_lshr_b32 s21, s2, 3\ns_and_b32 s21, s21, 1\ns_cmp_eq_u32 s20, 0\ns_cselect_b32 s21, s21, 0\ns_add_u32 s20, s20, s21',3:'s_max_u32 s20, s20, 1',4:'s_sub_u32 s21, 8, s20\ns_cmp_eq_u32 s20, 0\ns_cselect_b32 s20, 0, s21'}[fakexcc]
    A(f'''
s_cmp_ge_u32 s2, 256
s_cbranch_scc1 L_exit
s_load_dwordx2 s[66:67], s[0:1], {KA['dbg']}
s_getreg_b32 s20, hwreg(HW_REG_XCC_ID)
s_and_b32 s20, s20, 7
{fake}
v_lshrrev_b32 v1, 6, v0
v_readfirstlane_b32 s{sW}, v1
s_mov_b32 s{chain.sMode}, 0
''')
    if prof: A('s_memrealtime s[96:97]\ns_memtime s[100:101]')
    if warm:
        A(f'''
s_cmp_lt_u32 s20, 4
s_cbranch_scc1 L_nowarm
s_load_dwordx2 s[24:25], s[0:1], {KA['B_Wq']}
s_load_dwordx2 s[28:29], s[0:1], {KA['B_Wk']}
s_load_dwordx2 s[32:33], s[0:1], {KA['B_Wv']}
s_sub_u32 s21, s20, 4
s_lshl_b32 s21, s21, 5
s_lshr_b32 s22, s2, 3
s_add_u32 s21, s21, s22
s_lshl_b32 s21, s21, 2
s_add_u32 s21, s21, s{sW}
s_mul_i32 s21, s21, 9216
v_and_b32 v2, 63, v0
v_lshlrev_b32 v2, 6, v2
s_mov_b32 s26, {576*8192}
s_mov_b32 s27, 0x20000
s_mov_b32 s30, {576*8192}
s_mov_b32 s31, 0x20000
s_mov_b32 s34, {576*8192}
s_mov_b32 s35, 0x20000
s_add_u32 s22, s21, 4096
s_add_u32 s23, s21, 5120
s_waitcnt lgkmcnt(0)
''')
        for i,srd in enumerate(('s[24:27]','s[28:31]','s[32:35]')):
            for j,so in enumerate((21,22,23)): A(f'buffer_load_dword v{240+3*i+j}, v2, {srd}, s{so} offen')
        A('L_nowarm:')
    if touch:
        A(f'''
s_cmp_lg_u32 s20, 0
s_cbranch_scc1 L_notouch
s_cmp_eq_u32 s{sW}, 0
s_cbranch_scc1 L_notouch
s_load_dwordx4 s[24:27], s[0:1], {KA['B_Wq']}
s_load_dwordx4 s[28:31], s[0:1], {KA['B_Wv']}
v_and_b32 v2, 63, v0
v_mul_u32_u24 v2, 24576, v2
s_add_u32 s21, s{sW}, -1
s_mul_i32 s21, s21, {64*24576}
v_add_u32 v2, s21, v2
s_waitcnt lgkmcnt(0)
global_load_dword v240, v2, s[24:25]
global_load_dword v241, v2, s[26:27]
global_load_dword v242, v2, s[28:29]
global_load_dword v243, v2, s[30:31]
L_notouch:
''')
    A(f'''
s_waitcnt lgkmcnt(0)
s_cmp_lg_u32 s{sW}, 0
s_cbranch_scc1 L_gotrole
s_mov_b64 exec, 1
s_lshl_b32 s21, s20, 2
s_add_u32 s21, s21, {D_TICK}
s_cmp_eq_u32 s20, 0
s_cselect_b32 s21, {D_TICK0}, s21
v_mov_b32 v2, s21
v_mov_b32 v3, 1
global_atomic_add v4, v2, v3, s[66:67] sc0
v_readfirstlane_b32 s22, v4
s_cmp_lt_u32 s22, 32
s_cbranch_scc1 L_tk
v_mov_b32 v2, 0
global_atomic_add v4, v2, v3, s[66:67] offset:{D_OVF} sc0
v_readfirstlane_b32 s23, v4
s_mov_b32 s40, 0
L_ovf:
global_load_dwordx4 v[4:7], v2, s[66:67] offset:{D_TICK} sc1
global_load_dwordx4 v[8:11], v2, s[66:67] offset:{D_TICK+16} sc1
global_load_dword v4, v2, s[66:67] offset:{D_TICK0} sc1
s_add_u32 s40, s40, 1
s_cmp_gt_u32 s40, 400000
s_cbranch_scc1 L_norole
''')
    for i in range(8): A(f'v_readfirstlane_b32 s{24+i}, v{4+i}')
    A('s_mov_b32 s32, 0')
    for i in range(8): A(f's_add_u32 s32, s32, s{24+i}')
    A('s_cmp_lt_u32 s32, 256\ns_cbranch_scc1 L_ovf')
    for i in range(8):
        nx=f'L_ovf{i}'
        A(f'''
s_min_u32 s33, s{24+i}, 32
s_sub_u32 s34, 32, s33
s_cmp_ge_u32 s23, s34
s_cbranch_scc1 {nx}
s_mov_b32 s20, {i}
s_add_u32 s22, s33, s23
s_branch L_tk
{nx}:
s_sub_u32 s23, s23, s34
''')
    A(f'''
L_norole:
s_mov_b32 s20, 1
s_mov_b32 s22, 31
L_tk:
s_lshl_b32 s20, s20, 5
s_add_u32 s20, s20, s22
v_mov_b32 v2, 0
v_mov_b32 v3, s20
ds_write_b32 v2, v3
s_mov_b64 exec, -1
s_waitcnt lgkmcnt(0)
L_gotrole:
s_barrier
v_mov_b32 v2, 0
ds_read_b32 v3, v2
v_readfirstlane_b32 s20, v3
s_barrier
s_mov_b32 s98, s20
s_and_b32 s{sH}, s20, 31
s_lshr_b32 s21, s20, 5
''')
    for x,blk in enumerate(perm):
        A(f's_cmp_eq_u32 s21, {x}\ns_cbranch_scc1 L_blk_{blk}')
    A(f'''
s_branch L_end
L_blk_L:
s_add_u32 s{sH}, s{sH}, 32
s_cmp_lt_u32 s{sH}, 36
s_cbranch_scc1 L_op
s_sub_u32 s{sH}, s{sH}, 36
s_cmp_lt_u32 s{sH}, 8
s_cbranch_scc1 L_fi
s_branch L_end
L_blk_B:
s_add_u32 s{sH}, s{sH}, 32
s_branch L_a
''')
    A('L_fi:'); workb.emit_flaginit(A,'L_end')
    A('L_blk_K:'); workb.emit_proj(A,'K','L_fail','L_end',XK)
    A('L_blk_V:'); workb.emit_proj(A,'V','L_fail','L_end',XV)
    A('L_blk_Q:'); workb.emit_proj(A,'Q','L_fail','L_end')
    A('L_blk_O:\nL_op:'); workb.emit_outproj(A,'L_fail','L_end')
    A('L_blk_A:\nL_a:')
    if with_a:
        import worka
        worka.emit_a(A,'L_fail','L_end')
    else: A('s_branch L_end')
    A('L_blk_C:')
    A.merge_lat=ml; A.merge_from=len(A.items)
    kw=dict(modes=('','sc1'),X=('rdy',) if prof else ()); kw.update(chain_kw or {})
    chain.emit_chain(A,'L_fail','L_end',**kw)
    A('L_fail:\nL_end:')
    if prof:
        A(f'''
s_memrealtime s[94:95]
s_memtime s[92:93]
s_load_dwordx2 s[4:5], s[0:1], {KA['ws']}
s_mov_b64 exec, 1
s_waitcnt lgkmcnt(0)
s_lshl_b32 s98, s98, 2
s_add_u32 s98, s98, s{sW}
s_lshl_b32 s98, s98, 4
s_sub_u32 s92, s92, s100
s_add_u32 s98, s98, 0x8000000
v_mov_b32 v0, s98
v_mov_b32 v2, s96
v_mov_b32 v3, s94
v_mov_b32 v4, s92
v_mov_b32 v5, s99
global_store_dwordx4 v0, v[2:5], s[4:5]
''')
    A('L_exit:\ns_endpgm')
    body=A.finalize()
    hdr=open(os.path.join(os.path.dirname(__file__),'..','cdna_kernels',NAME+'.s.ref')).read().split('; Override launch')[0]
    txt=hdr+f'''; One persistent launch: 256 workgroups, one per CU, roles chosen at run time (see gen/ comments in the body).
; @launch grid=(256,1,1) block=(256,1,1) lds=163840
.amdgcn_target "amdgcn-amd-amdhsa--gfx950"
.text
.globl {NAME}_kernel
.p2align 8
.type {NAME}_kernel,@function
{NAME}_kernel:
{body}
.section .rodata,"a"
.p2align 6
.amdhsa_kernel {NAME}_kernel
  .amdhsa_next_free_vgpr 512
  .amdhsa_next_free_sgpr 102
  .amdhsa_accum_offset 256
  .amdhsa_group_segment_fixed_size 0
  .amdhsa_kernarg_size 120
  .amdhsa_user_sgpr_count 2
  .amdhsa_user_sgpr_kernarg_segment_ptr 1
  .amdhsa_system_sgpr_workgroup_id_x 1
.end_amdhsa_kernel
'''
    return txt, A.stats

if __name__=='__main__':
    txt,st=build(with_a=os.path.exists(os.path.join(os.path.dirname(__file__),'worka.py')))
    out=sys.argv[1] if len(sys.argv)>1 else os.path.join(os.path.dirname(__file__),'..','cdna_kernels',NAME+'.s')
    open(out,'w').write(txt); print(st, len(txt))
```

```python
from asmgen import *
from common import *
import math, struct

L_M  = 0
L_O  = 7168
L_QK = 9216
L_MX = L_QK+4096
L_C  = L_MX+1024
L_S  = L_C+64
L_W  = L_S+1024
WREG = 36864
assert L_W+4*WREG<=163840

vL16,vIdx,vS16,vS16b,vWl,vYw,vOw,vOr,vMw,vH1st,vH1s1,vH2st,vKx,vMl_,vSel,vCon = range(16)
vPfa = vOr
KX = 16
VX = 24
T = lambda i: 32+i
sH,sW,sStep,sU = 12,13,14,15
sTag,sH1ld,sKVc = 16,17,18
sH2c,sH2n,sH2p = 19,20,21
sKn,sKMo,sVMo = 24,25,26
sScale = 27
sMask = 28
sT0,sT1,sT2,sT3 = 36,37,38,39
sPoll = 40
sH2ld = 41
sFlagM = 42
sFlagKV = 43
sKVok = 44
sH2pz = 45
sHi = 46
sW3k = 48
s32k = 49
sMode = 50
sW256 = 52
sStep1 = 53
sPrb = 54
sFlg = 55
sLate = 22
sSc2 = 70
sLo20 = 69
sHi20 = 23
sPf = 27
sFlagKVd = 68
sPfK = 42
sFlagM2 = 8
sOwn = 10
sG2 = 2
sWm = 56
sWbm = 9
sVMp = 64
sPz = 65
sNeed = 62
sFlg1 = 60
sPrb1 = 61
sFlagMw = 51
sTr = 56
sSt = 80
POLLMAX=200000

TORD=[0,2,4,6,8,1,3,5,7]
QKV=[[1,3,7,11,14,18,22,25,28,32],[0,4,8,12,16,20,22,26,28,32],[0,2,6,8,12,16,20,24,28,32],[0,4,8,12,16,18,22,24,28,32]]
QPDEF=1
NZG=0
NREP=4
QKPOS=QKV[0]; QKBUF=[0,1]*5
def operand_map():
    qk_order=[]
    for t in TORD:
        qk_order += [('q',t,0),('q',t,1),('k',t,0),('k',t,1)]
    lds_qk = [qk_order[n] for n in QKPOS]
    lds_o = [('o',0,2),('o',0,3),('o',2,0),('o',3,0),('o',3,1),('o',1,2),('o',1,3),('o',3,3)]
    m={}
    li=0
    for op in lds_o+lds_qk:
        m[op]=('l',li); li+=1
    rest=[op for op in qk_order if op not in m]
    rest+=[('v',t,c) for t in range(9) for c in range(2)]
    rest+=[('o',k,P) for k in range(4) for P in range(4) if ('o',k,P) not in m]
    rest+=[('s',0),('s',1)]
    regs=[('v',80+8*i) for i in range(22)]+[('a',8*i) for i in range(32)]
    assert len(rest)==len(regs)==54
    for op,r in zip(rest,regs): m[op]=r
    return m, qk_order, lds_qk, lds_o

def R(loc,off=0,n=8):
    return vr(loc[1]+off,n,loc[0])
def q4(b): return f'v[{b}:{b+3}]'

def status_loads(A):
    A(f"""
v_mov_b32 v{VX}, 0
global_load_dwordx4 v[64:67], v{VX}, s[66:67] offset:{D_TICK} sc1
global_load_dwordx4 v[68:71], v{VX}, s[66:67] offset:{D_TICK+16} sc1
global_load_dword v64, v{VX}, s[66:67] offset:{D_TICK0} sc1
global_load_dword v{VX+1}, v{VX}, s[66:67] offset:{D_INIT} sc1
buffer_load_dword v{VX+2}, v{VX}, s[4:7], s{sFlagKV} offen sc1
buffer_load_dword v{VX+3}, v{VX}, s[4:7], s{sFlagKV} offen offset:256 sc1
""")

def emit_chain_init(A, m, X=()):
    if 'rdyE' in X: A('s_memrealtime s[90:91]\ns_waitcnt lgkmcnt(0)\ns_mov_b32 s99, s90')
    l,n,g,n7,n8,g1,g2,r4,cc=['v%d'%i for i in range(32,41)]
    t0,t1,t2='v41','v42','v43'
    A(f"""
s_load_dwordx2 s[4:5], s[0:1], {KA['ws']}
s_load_dwordx2 s[56:57], s[0:1], {KA['B_Wq']}
s_load_dwordx2 s[58:59], s[0:1], {KA['B_Wk']}
s_load_dwordx2 s[60:61], s[0:1], {KA['B_Wv']}
s_load_dwordx2 s[62:63], s[0:1], {KA['B_Wo']}
s_load_dwordx2 s[64:65], s[0:1], {KA['B_mem0']}
s_load_dwordx2 s[66:67], s[0:1], {KA['dbg']}
v_and_b32 {l}, 63, v0
v_and_b32 {n}, 15, {l}
v_lshrrev_b32 {g}, 4, {l}
v_lshlrev_b32 v{vL16}, 4, {l}
v_and_b32 {n7}, 7, {n}
v_lshrrev_b32 {n8}, 3, {n}
v_and_b32 {g1}, 1, {g}
v_lshrrev_b32 {g2}, 1, {g}
v_lshrrev_b32 {r4}, 2, {n}
v_and_b32 {cc}, 3, {n}
v_mov_b32 {t0}, 0x4444
v_mov_b32 {t1}, 0xeeee
v_cmp_eq_u32 s[{sHi}:{sHi+1}], 1, {n8}
v_cndmask_b32 v{vIdx}, {t0}, {t1}, s[{sHi}:{sHi+1}]
s_mul_i32 s{sT0}, s{sW}, {WREG}
s_add_u32 s{sT0}, s{sT0}, {L_W}
v_add_u32 v{vWl}, s{sT0}, v{vL16}
s_lshl_b32 s{sT1}, s{sW}, 10
v_add_u32 v{vYw}, s{sT1}, v{vL16}
v_lshlrev_b32 {t0}, 7, {g}
v_lshl_add_u32 {t0}, {n7}, 4, {t0}
v_bfe_u32 v{vOr}, v{vL16}, 2, 7
s_lshl_b32 s{sT1}, s{sW}, 9
v_add_u32 v{vOw}, s{sT1}, {t0}
s_lshl_b32 s{sW256}, s{sW}, 2
s_lshl_b32 s{sW3k}, s{sW}, 10
s_cmp_eq_u32 s{sW}, 2
s_cselect_b32 s{sW3k}, 6144, s{sW3k}
s_cmp_eq_u32 s{sW}, 3
s_cselect_b32 s{sW3k}, 4096, s{sW3k}
s_lshr_b32 s{sT1}, s{sW3k}, 1
v_add_u32 v{vMw}, s{sT1}, v{vL16}
; vH1st = (16w + l/8)*4096 + h*128 + (l%8)*16
v_lshrrev_b32 {t0}, 3, {l}
v_lshlrev_b32 {t0}, 12, {t0}
v_lshl_add_u32 {t0}, {n7}, 4, {t0}
s_lshl_b32 s{sT1}, s{sW}, 16
s_lshl_b32 s{sT2}, s{sH}, 7
s_add_u32 s{sT1}, s{sT1}, s{sT2}
v_add_u32 v{vH1st}, s{sT1}, {t0}
; vH1s1 = (64 + 2w + n8)*4096 + h*128 + n7*16 + g1*8
v_lshlrev_b32 {t0}, 12, {n8}
v_lshl_add_u32 {t0}, {n7}, 4, {t0}
v_lshl_add_u32 {t0}, {g1}, 3, {t0}
s_lshl_b32 s{sT1}, s{sW}, 13
s_add_u32 s{sT1}, s{sT1}, s{sT2}
s_add_u32 s{sT1}, s{sT1}, {64*4096}
v_add_u32 v{vH1s1}, s{sT1}, {t0}
s_lshr_b32 s{sU}, s{sH}, 3
s_lshl_b32 s{sU}, s{sU}, 4
s_and_b32 s{sT1}, s{sH}, 7
s_add_u32 s{sU}, s{sU}, s{sT1}
s_lshl_b32 s{sT1}, s{sW}, 3
s_add_u32 s{sU}, s{sU}, s{sT1}
s_add_u32 s{sT1}, s{sH}, 64
s_cmp_eq_u32 s{sW}, 2
s_cselect_b32 s{sU}, s{sT1}, s{sU}
s_cmp_eq_u32 s{sW}, 3
s_cselect_b32 s{sU}, 72, s{sU}
v_lshlrev_b32 {t0}, 4, {n7}
v_lshl_add_u32 {t0}, {g1}, 3, {t0}
v_lshl_add_u32 {t0}, {g2}, 2, {t0}
s_lshl_b32 s{sT1}, s{sU}, 7
v_add_u32 v{vH2st}, s{sT1}, {t0}
s_lshr_b32 s{sT1}, s{sH}, 2
s_add_u32 s{sT1}, s{sT1}, 64
s_lshl_b32 s{sT1}, s{sT1}, 7
s_and_b32 s{sT2}, s{sH}, 3
s_lshl_b32 s{sT2}, s{sT2}, 2
s_add_u32 s{sT1}, s{sT1}, s{sT2}
v_lshlrev_b32 {t0}, 4, {n7}
v_add_u32 {t0}, s{sT1}, {t0}
s_cmp_eq_u32 s{sW}, 2
s_cselect_b64 vcc, -1, 0
v_cndmask_b32 v{vH2st}, v{vH2st}, {t0}, vcc
s_lshl_b32 s{sT1}, s{sW}, 11
v_lshlrev_b32 {t0}, 9, {g}
v_add_u32 {t0}, s{sT1}, {t0}
v_lshl_add_u32 {t1}, {n}, 4, {t0}
v_mov_b32 v{vKx}, {t1}
s_lshl_b32 s{sT1}, s{sW}, 10
v_add_u32 v{vMl_}, s{sT1}, v{vL16}
; selector value + masks
v_mov_b32 {t0}, 0x3f80
v_mov_b32 {t1}, 0x3f800000
v_and_b32 {t2}, 1, {n}
v_cmp_eq_u32 vcc, 0, {t2}
v_cndmask_b32 v{vSel}, {t1}, {t0}, vcc
v_lshrrev_b32 {t2}, 1, {n7}
v_cmp_eq_u32 s[{sMask}:{sMask+1}], 0, {t2}
v_cmp_eq_u32 s[{sMask+2}:{sMask+3}], 1, {t2}
v_cmp_eq_u32 s[{sMask+4}:{sMask+5}], 2, {t2}
v_cmp_eq_u32 s[{sMask+6}:{sMask+7}], 3, {t2}
v_mov_b32 v{vCon}, {L_C}
v_lshlrev_b32 {t0}, 1, {g1}
v_cmp_eq_u32 vcc, {t0}, {t2}
v_cndmask_b32 v{vS16}, 0, v{vSel}, vcc
v_add_u32 {t0}, 1, {t0}
v_cmp_eq_u32 vcc, {t0}, {t2}
v_cndmask_b32 v{vS16b}, 0, v{vSel}, vcc
; init-only address regs: v16 dma voffset qkv ; v17..v19 tr bases ; v20,v21 mem0 ; v71..v79 Wo dma voffsets
v_lshlrev_b32 {t0}, 1, {g1}
v_xor_b32 {t0}, {t0}, {n}
v_lshlrev_b32 {t0}, 4, {t0}
v_lshl_add_u32 {t0}, {g}, 13, {t0}
s_lshl_b32 s{sT1}, s{sH}, 8
v_add_u32 v16, s{sT1}, {t0}
v_xor_b32 v28, 64, v16
v_xor_b32 v29, 128, v16
v_xor_b32 v30, 192, v16
v_lshrrev_b32 {t1}, 1, {r4}
v_and_b32 {t2}, 1, {r4}
v_lshlrev_b32 {t0}, 2, {g1}
v_lshl_add_u32 {t0}, {t1}, 3, {t0}
v_add_u32 {t0}, {t0}, {t2}
v_lshlrev_b32 {t0}, 8, {t0}
v_lshl_add_u32 {t0}, {cc}, 3, {t0}
v_lshl_add_u32 v17, {g1}, 1, {t2}
v_lshl_add_u32 v17, {t1}, 2, v17
s_lshl_b32 s{sT1}, s{sW}, 1
v_xor_b32 v17, s{sT1}, v17
v_lshl_add_u32 {t0}, v17, 5, {t0}
v_xor_b32 v23, 32, {t0}
v_mul_u32_u24 v22, {WREG}, {g2}
v_add_u32 v22, {L_W}, v22
v_add_u32 v17, {t0}, v22
v_add_u32 v23, v23, v22
v_add_u32 v22, {2*WREG}, v17
v_add_u32 v31, {2*WREG}, v23
v_lshlrev_b32 {t0}, 4, {g1}
v_lshl_add_u32 {t0}, {g2}, 2, {t0}
v_add_u32 {t0}, {t0}, {t2}
v_mul_u32_u24 {t0}, 288, {t0}
v_lshl_add_u32 {t0}, {t1}, 6, {t0}
v_lshl_add_u32 {t0}, {cc}, 3, {t0}
v_add_u32 v18, s{sT0}, {t0}
v_lshl_add_u32 {t0}, {g}, 2, {r4}
v_mul_u32_u24 {t0}, 288, {t0}
v_lshl_add_u32 {t0}, {cc}, 3, {t0}
v_add_u32 {t0}, 256, {t0}
v_add_u32 v19, s{sT0}, {t0}
""")
    for ii in range(9):
        A(f"""
v_add_u32 {t0}, {64*ii}, {l}
v_mul_u32_u24 {t1}, 3641, {t0}
v_lshrrev_b32 {t1}, 16, {t1}
v_mul_u32_u24 {t2}, 18, {t1}
v_sub_u32 {t2}, {t0}, {t2}
v_mul_u32_u24 {t1}, 1152, {t1}
v_lshl_add_u32 v{71+ii}, {t2}, 4, {t1}""")
    A(f"""
v_mul_u32_u24 {t0}, 1152, {n7}
v_lshl_add_u32 {t0}, {n8}, 4, {t0}
v_lshl_add_u32 v20, {g}, 5, {t0}
v_mul_u32_u24 {t1}, 288, {g}
v_add_u32 v21, {t0}, {t1}
s_waitcnt lgkmcnt(0)
s_mov_b32 s6, {WS_BYTES}
s_mov_b32 s7, 0x20000
s_mov_b32 s10, {0 if 'nodata' in X else 576*8192}
s_mov_b32 s11, 0x20000
s_mov_b32 s68, s{sT0}
s_lshl_b32 s{sH1ld}, s{sU}, 12
s_cmp_lt_u32 s{sU}, 72
s_cselect_b32 s{sH1ld}, s{sH1ld}, {WS_BYTES}
s_cmp_lt_u32 s{sW}, 3
s_cselect_b32 s{sH2pz}, 0, {WS_BYTES}
v_mov_b32 v44, 0
v_mov_b32 v45, 0
v_mov_b32 v46, 0
v_mov_b32 v47, 0
v_mov_b32 v48, 0x3f803f80
v_mov_b32 v49, 0x3f803f80
v_mov_b32 v50, 0x3f803f80
v_mov_b32 v51, 0x3f803f80
v_mov_b32 v52, 0x3f003f00
v_mov_b32 v53, 0x3f003f00
v_mov_b32 v54, -1
""")
    lab=A.label('CI')
    A(f"""
ds_write_b128 v{vCon}, v[44:47]
ds_write_b128 v{vCon}, v[48:51] offset:16
ds_write_b64 v{vCon}, v[52:53] offset:32
v_cndmask_b32 v44, 0, v{vSel}, s[{sMask}:{sMask+1}]
v_cndmask_b32 v45, 0, v{vSel}, s[{sMask+2}:{sMask+3}]
v_cndmask_b32 v46, 0, v{vSel}, s[{sMask+4}:{sMask+5}]
v_cndmask_b32 v47, 0, v{vSel}, s[{sMask+6}:{sMask+7}]
ds_write_b128 v{vL16}, v[44:47] offset:{L_S}
v_lshl_add_u32 v{vSel}, {n8}, 3, v{vOw}
""")
    HELP='help' in X
    HL=([x[1] for x in X if isinstance(x,tuple) and x[0]=='hl'] or [5])[0]
    if HELP:
        A(f"""
s_and_b32 s{sT1}, s{sH}, 3
s_add_u32 s{sT2}, s{sT1}, -1
s_cselect_b32 s{sT2}, s{sT2}, 0
s_lshl_b32 s{sT2}, s{sT2}, 2
s_add_u32 s{sT2}, s{sT2}, s{sW}
s_mul_i32 s{sT2}, s{sT2}, 11
s_cmp_eq_u32 s{sT1}, 1
s_cselect_b32 s{sT2}, 128, s{sT2}
v_lshrrev_b32 v60, 4, v{vL16}
v_add_u32 v61, s{sT2}, v60
v_lshrrev_b32 v62, 1, v61
v_lshlrev_b32 v62, 13, v62
v_and_b32 v63, 1, v61
v_lshl_add_u32 v62, v63, 7, v62
s_and_b32 s{sT2}, s{sH}, 28
s_add_u32 s{sT2}, s{sT2}, 1
s_lshl_b32 s{sT2}, s{sT2}, 8
v_add_u32 v62, s{sT2}, v62
v_cmp_gt_u32 s[{sT2-sT2%2}:{sT2-sT2%2+1}], {HL}, v60
v_cmp_gt_u32 vcc, 128, v61
s_and_b64 vcc, vcc, s[{sT2-sT2%2}:{sT2-sT2%2+1}]
v_mov_b32 v63, 0x10000000
v_cndmask_b32 v62, v63, v62, vcc
""")
    sRow,sRow8=sTag,sKVc
    A(f's_mul_i32 s{sRow}, s{sW}, {16*8192}\ns_mul_i32 s{sRow8}, s{sW}, {144*8192}')
    chunks=[]
    def qkv_chunk(mat,t):
        return dict(kind='w',mat=mat,t=t,size=4096,n=4+(1 if HELP and t<8 else 0))
    qk=[qkv_chunk(mm,t) for t in range(9) for mm in 'qk']
    oc=[dict(kind='o',k=k,size=9216,n=9) for k in range(4)]
    for grp in ([x[1] for x in X if isinstance(x,tuple) and x[0]=='ord'] or ['qoqqoqoqoq'])[0]:
        if grp=='q': chunks+= [qk.pop(0) for _ in range(3)]
        elif grp in 'QK':
            sel_=[c_ for c_ in qk if c_['mat']==grp.lower()][:3]
            for c_ in sel_: qk.remove(c_)
            chunks+=sel_
        else: chunks.append(oc.pop(0))
    for t in range(9): chunks.append(qkv_chunk('v',t))
    ptr={'q':56,'k':58,'v':60,'o':62}
    cur_srd=[None]
    def set_srd(mat):
        if cur_srd[0]!=mat:
            A(f's_mov_b32 s8, s{ptr[mat]}\ns_mov_b32 s9, s{ptr[mat]+1}')
            cur_srd[0]=mat
    def issue(c):
        if c['kind']=='w':
            set_srd(c['mat']); t=c['t']
            d = (144*(t//2)+64*(t%2)) if t<8 else 128
            A(f's_add_u32 m0, s68, {c["addr"]}')
            if HELP and t<8: A(f's_mov_b32 s{sT1}, {d*8192}\nbuffer_load_dword v63, v62, s[8:11], s{sT1} offen')
            for ii in range(4):
                A(f's_add_u32 s{sT1}, s{sRow8 if t==8 else sRow}, {d*8192+ii*(4*8192-1024)}')
                A(f'buffer_load_dwordx4 v{(16,28,29,30)[ii]}, s[8:11], s{sT1} offen offset:{1024*ii} lds')
        else:
            set_srd('o'); k=c['k']
            A(f's_xor_b32 s{sT1}, s{sW}, {k}\ns_lshl_b32 s{sT1}, s{sT1}, 5\ns_lshl_b32 s{sT2}, s{sH}, 7\ns_add_u32 s{sT1}, s{sT1}, s{sT2}\ns_mul_i32 s{sT1}, s{sT1}, 1152\ns_mul_i32 s{sT2}, s{sW}, 288\ns_add_u32 s{sT1}, s{sT1}, s{sT2}')
            for ii in range(9):
                A(f's_add_u32 m0, s68, {c["addr"]+1024*ii}')
                A(f'buffer_load_dwordx4 v{71+ii}, s[8:11], s{sT1} offen {"nt" if "nt" in X else ""} lds')
    def ops_of(c):
        if c['kind']=='w': return [(c['mat'],c['t'],0),(c['mat'],c['t'],1)]
        return [('o',c['k'],P) for P in range(4)]+[('sx',c['k'])]
    def tr_reads(c,op,loc):
        f,b=loc
        if 'notr' in X: return
        if c['kind']=='w':
            for jh in range(2):
                for jl in (0,2):
                    off=c['addr']+jl*256
                    A(f'ds_read_b64_tr_b16 {vr(b+4*jh+jl,2,f)}, v{((17,22),(23,31))[op[2]][jh]} offset:{off}')
        elif op[0]=='o':
            P=op[2]; PP,q=P//2,P%2
            for jh in range(2):
                for jl in (0,2):
                    off=c['addr']+(8*jh+jl)*288+(64*PP+16*q)*2
                    A(f'ds_read_b64_tr_b16 {vr(b+4*jh+jl,2,f)}, v18 offset:{off}')
        else:
            for a in range(2):
                A(f'ds_read_b64_tr_b16 {vr(b+2*a,2,f)}, v19 offset:{c["addr"]+16*a*288}')
    parkregs=[('v',32),('v',40)]+[m[('v',t,c)] for t in range(1,9) for c in range(2)]
    parked={}
    live=[]; nissued=0; nslot=[0]
    def alloc(c):
        a = (nslot[0]%9)*4096
        if any(not (x['addr']+x['size']<=a or x['addr']>=a+c['size']) for x in live): return None
        nslot[0]+= 3 if c['kind']=='o' else 1
        return a
    def flush(loc,addr):
        op=parked.pop(loc); m[op]=('l',addr//2048)
        for j in range(2): A(f'ds_write_b128 v{vWl}, {R(loc,4*j,4)} offset:{addr+1024*j}')
    def early():
        A(f's_mov_b32 s8, s64\ns_mov_b32 s9, s65\ns_mov_b32 s10, 9216')
        for j in range(3):
            A(f"""
s_mul_i32 s{sT1}, s{sW}, 6
s_add_u32 s{sT1}, s{sT1}, {2*j}
s_add_u32 s{sT2}, s{sT1}, -9
s_cmp_gt_u32 s{sT1}, 8
s_cselect_b32 s{sT1}, s{sT2}, s{sT1}
s_lshr_b32 s{sT2}, s{sT1}, 1
s_mul_i32 s{sT2}, s{sT2}, 288
s_and_b32 s{sT3}, s{sT1}, 1
s_lshl_b32 s{sT3}, s{sT3}, 7
s_add_u32 s{sT2}, s{sT2}, s{sT3}
""")
            if j==1:
                A(f"""
s_cmp_eq_u32 s{sT1}, 8
s_cselect_b32 s{sT2}, 256, s{sT2}
s_cselect_b64 vcc, -1, 0
v_cndmask_b32 v21, v20, v21, vcc
""")
            A(f'buffer_load_dwordx4 v[{T(16)+4*j}:{T(19)+4*j}], v{21 if j==1 else 20}, s[8:11], s{sT2} offen')
        A(f's_lshl_b32 s{sT1}, s{sH}, 9\ns_add_u32 s{sFlagKV}, s{sT1}, {F_KV}')
        A(f'v_readfirstlane_b32 s{sStep1}, v61')
        status_loads(A)
        return 3+6
    pending_reads=False; extra=0
    def its(k):
        if 'itrace' in X: A(f's_memtime s[{sSt+2}:{sSt+3}]\ns_waitcnt lgkmcnt(0)\ns_sub_u32 s{sSt+4+k}, s{sSt+2}, s72')
    its(0)
    if 'rdyS' in X: A('s_memrealtime s[90:91]\ns_waitcnt lgkmcnt(0)\ns_mov_b32 s99, s90')
    def issue_more():
        nonlocal nissued
        while nissued<len(chunks):
            nc=chunks[nissued]
            if sum(x['n'] for x in live)+nc['n']>52: break
            a=alloc(nc)
            if a is None: break
            nc['addr']=a
            issue(nc); live.append(nc); nissued+=1
    issue_more(); its(1)
    prev=None
    for ci,c in enumerate(chunks):
        assert c in live
        if ci==10: A(f'v_mov_b32 v60, 0\nglobal_load_dword v61, v60, s[66:67] offset:{D_INIT} sc1')
        younger=sum(x['n'] for x in live if x is not c and x is not prev)+extra
        A(f's_waitcnt vmcnt({younger}) lgkmcnt(0)')
        if 'nobar' not in X: A('s_barrier')
        if ci in (8,16,22): its((0,0,8,16,22).index(ci,2))
        if ci==30: its(5)
        if prev is not None:
            live.remove(prev)
            issue_more()
            if nissued==len(chunks) and not extra: extra=early()
            if prev['kind']=='w' and prev['mat']=='v':
                for j in range(2): flush(m[('v',c['t'],j)],prev['addr']+2048*j)
        for op in ops_of(c):
            if op[0]=='sx':
                k=op[1]; loc=m[('s',k//2)]; tr_reads(c,op,(loc[0],loc[1]+4*(k%2)))
            elif m[op][0]!='l':
                assert m[op] not in parked
                tr_reads(c,op,m[op])
            else:
                loc=parkregs.pop(0); parked[loc]=op
                tr_reads(c,op,loc)
        prev=c
    A('s_waitcnt lgkmcnt(0)\ns_barrier')
    for j,loc in enumerate([('v',32),('v',40)]): flush(loc,prev['addr']+2048*j)
    assert not parked and not parkregs
    if 'rdy0' in X: A('s_memrealtime s[90:91]\ns_waitcnt lgkmcnt(0)\ns_mov_b32 s99, s90')
    c = math.log2(math.e)/math.sqrt(128.0)
    cb = struct.unpack('<I',struct.pack('<f',c))[0]
    A(f"""
s_mov_b32 s{sSc2}, {cb:#x}
s_mov_b32 s{sSc2+1}, {cb:#x}
s_mov_b32 s{sLo20}, 0x35800000
s_mov_b32 s{sHi20}, {0x49800000-0x35800000:#x}
s_mov_b32 s{sStep}, 0
s_mov_b32 s{sTag}, 1
s_mov_b32 s{s32k}, 32768
s_lshl_b32 s{sLate}, s{sW}, 11
s_add_u32 s{sLate}, s{sLate}, 1024
s_mov_b32 s{sH2c}, {WS_H2}
s_mov_b32 s{sH2n}, {WS_H2+H2SZ}
s_mov_b32 s{sH2p}, {WS_H2+2*H2SZ}
s_lshl_b32 s{sT1}, s{sH}, 14
s_add_u32 s{sKVc}, s{sT1}, {WS_KV}
s_add_u32 s{sKn}, s{sKVc}, {32*16384}
s_lshl_b32 s{sT2}, s{sW}, 11
s_add_u32 s{sPf}, s{sKn}, s{sT2}
s_add_u32 s{sPf}, s{sPf}, 8192
s_mov_b32 m0, {L_W+4*WREG}
s_lshl_b32 s{sT1}, s{sH}, 11
s_add_u32 s{sKMo}, s{sT1}, {WS_KM}
s_lshl_b32 s{sT1}, s{sH}, 12
s_add_u32 s{sVMo}, s{sT1}, {WS_VM}
s_lshl_b32 s{sT1}, s{sW}, 10
s_add_u32 s{sVMo}, s{sVMo}, s{sT1}
s_lshl_b32 s{sT1}, s{sH}, 7
s_add_u32 s{sFlagM}, s{sT1}, {F_M}
s_lshr_b32 s{sT1}, s{sH}, 2
s_add_u32 s{sT1}, s{sT1}, 64
s_lshl_b32 s{sT1}, s{sT1}, 12
s_and_b32 s{sT2}, s{sH}, 3
s_lshl_b32 s{sT2}, s{sT2}, 5
s_add_u32 s{sT1}, s{sT1}, s{sT2}
s_cmp_eq_u32 s{sW}, 2
s_cselect_b32 s{sH1ld}, s{sT1}, s{sH1ld}
s_sub_u32 s{sFlagMw}, s{sFlagM}, {L_C}
s_mov_b32 s{sT1}, {WS_BYTES}
s_cmp_eq_u32 s{sW}, 3
s_cselect_b32 s{sFlagMw}, s{sFlagMw}, s{sT1}
s_add_u32 s{sPrb}, s{sH}, s{sW}
s_and_b32 s{sPrb}, s{sPrb}, {NREP-1}
s_lshl_b32 s{sPrb}, s{sPrb}, 8
s_add_u32 s{sPrb}, s{sPrb}, {WS_F1}
s_lshl_b32 s{sFlg}, s{sH}, 2
s_add_u32 s{sFlg}, s{sFlg}, {WS_F1}
s_cmp_ge_u32 s{sW}, {0 if NZG else 3}
s_cselect_b32 s{sPrb}, s{sPrb}, s{sT1}
s_cmp_eq_u32 s{sW}, 1
s_cselect_b32 s{sFlg}, s{sFlg}, s{sT1}
""")

def emit_wait_kv(A, need_sreg, fail, tmp):
    lp=A.label('KVW'); ok=A.label('KVOK')
    A(f"""
s_cmp_ge_u32 s{sKVok}, s{need_sreg}
s_cbranch_scc1 {ok}
s_mov_b32 s{sPoll}, 0
{lp}:
v_mov_b32 v{tmp}, 0
buffer_load_dword v{tmp+1}, v{tmp}, s[4:7], s{sFlagKV} offen offset:256 sc1
buffer_load_dword v{tmp}, v{tmp}, s[4:7], s{sFlagKV} offen sc1
s_add_u32 s{sPoll}, s{sPoll}, 1
s_cmp_gt_u32 s{sPoll}, {POLLMAX}
s_cbranch_scc1 {fail}
v_min_u32 v{tmp}, v{tmp}, v{tmp+1}
v_readfirstlane_b32 s{sKVok}, v{tmp}
s_cmp_lt_u32 s{sKVok}, s{need_sreg}
s_cbranch_scc1 {lp}
{ok}:
""")

def emit_chain_loop(A, m, qk_order, lds_qk, lds_o, st, tag, fail, done, D1=0, D2=2, stamps=(), X=()):
    def stamp(i):
        if ('tr',i) in X:
            k=[x for x in X if isinstance(x,tuple) and x[0]=='tr'].index(('tr',i))
            sk=A.label('TR')
            A(f's_cmp_gt_u32 s{sStep}, {31 if i in (8,7,13) or (i==0 and k>0) else 30}\ns_cbranch_scc1 {sk}\ns_memtime s[{sTr+2*k}:{sTr+2*k+1}]\n{sk}:')
        if i in stamps:
            k=stamps.index(i)
            A(f's_memtime s[{sSt+2}:{sSt+3}]\ns_waitcnt lgkmcnt(0)')
            if k==0: A(f's_mov_b32 s{sSt}, s{sSt+2}')
            else: A(f's_sub_u32 s{sSt+3}, s{sSt+2}, s{sSt}\ns_add_u32 s{sSt+4+k}, s{sSt+4+k}, s{sSt+3}')
    def pad(i):
        for _ in range((Dl['pad']>>(2*i))&3): A('s_nop 0')
    def delay(n):
        if Dl['sl'] and n>=24:
            k=(n-4)//16; A(f's_sleep {k}'); n-=16*k+Dl['sl']-1
        while n>0:
            c=min(n,16); A(f's_nop {c-1}'); n-=c
    Dl=dict(a1=4,a2=25,g=38,al=20,b1=58,b2=74,c1=0,c2=30,d1=88,nl=10,fl=2,vl=16,v4=0,fm=23,z0=0,z1=0,pr=(7,9,11,13),sp=2,se=2,kx2=0,ow=0,pk=0,pf=20,xo=1,a0=-1,c0=0,vp=11,vq=0,ne=0,yo=0,po=1,lb=0,oo=0,r1=1,ho=1,pad=0,sl=0,vo=1,sm=0,sd=0,nz=0,ob=0,so=0,lay=(16,17,19,20,23,24,18,22,16,(25,26,27,28,30,31,32,33))); Dl.update(D1 if isinstance(D1,dict) else {})
    KS='' if 'kplain' in X else ('sc1 nt' if 'knt' in X else ('sc0 sc1' if 'ksys' in X else 'sc1'))
    SM='v_smfmac_f32_16x16x64_bf16'
    M32='v_mfma_f32_16x16x32_bf16'; M16='v_mfma_f32_16x16x16_bf16'
    accq=[T(0),T(4)]; acck=[T(8),T(12)]; ring=[T(16),T(20),T(24)]; stg=[T(28),T(36),VX]
    def ldsop(op,buf):
        A(f'ds_read_b128 {q4(buf)}, v{vWl} offset:{m[op][1]*2048}')
        A(f'ds_read_b128 {q4(buf+4)}, v{vWl} offset:{m[op][1]*2048+1024}')
    def zero(b): A(f'ds_read_b128 {q4(b)}, v{vCon}')
    Q=[]
    def qop(op,buf):
        Q.append(f'ds_read_b128 {q4(buf)}, v{vWl} offset:{m[op][1]*2048}')
        Q.append(f'ds_read_b128 {q4(buf+4)}, v{vWl} offset:{m[op][1]*2048+1024}')
    def pop(k=1):
        for _ in range(k):
            if Q: A(Q.pop(0))
    top=f'CSTEP_{tag}'; p2=f'CP2_{tag}'; barA=f'CBA_{tag}'
    def scal():
        A(f's_add_u32 s{sStep1}, s{sStep}, 1\ns_add_u32 s{sPz}, s{sH2p}, s{sH2pz}\ns_add_u32 s{sNeed}, s{sStep}, 8\ns_lshr_b32 s{sNeed}, s{sNeed}, 2\ns_min_u32 s{sNeed}, s{sNeed}, 16')
    late=T(44); vMl=vMl_; lateL=A.label('LATE')
    A(f'{top}_prep:')
    for i in range(16): A(f'v_mov_b32 v{T(i)}, 0')
    for j in range(2): ldsop(lds_qk[j],stg[j])
    scal()
    pw=A.label('PW')
    A(f's_cmp_eq_u32 s{sW}, 3\ns_cbranch_scc1 {pw}')
    A(f's_mul_i32 s{sT1}, s{sW}, 3072\nv_add_u32 v{T(45)}, s{sT1}, v{vL16}')
    for j in range(3): A(f'ds_write_b128 v{T(45)}, {q4(T(16)+4*j)} offset:{L_M+1024*j}')
    A(f'{pw}:')
    A('s_waitcnt lgkmcnt(0)\ns_barrier')
    A(f'ds_read_b128 {q4(late)}, v{vMl} offset:{L_M+5120}')
    A('.p2align 8')
    for _ in range(Dl['ho']): A('s_nop 0')
    A(f'{barA}:')
    if Dl['vp']==5: A(f'buffer_store_dwordx4 {q4(T(24))}, v{vL16}, s[4:7], s{sVMo} offen {KS}')
    A('s_waitcnt lgkmcnt(0)\ns_barrier')
    if Dl['vp']==6: A(f'buffer_store_dwordx4 {q4(T(24))}, v{vL16}, s[4:7], s{sVMo} offen {KS}')
    stamp(0)
    if 'hist' in X:
        A(f's_memtime s[{sSt+2}:{sSt+3}]\ns_waitcnt lgkmcnt(0)\ns_sub_u32 s{sSt+3}, s{sSt+2}, s{sSt}\ns_mov_b32 s{sSt}, s{sSt+2}')
        for i,th in enumerate((4000,4100,4200,4300,4450,4700)):
            A(f's_cmp_lt_u32 s{sSt+3}, {th}\ns_addc_u32 s{sSt+4+i}, s{sSt+4+i}, 0')
    for x in X:
        if isinstance(x,tuple) and x[0]=='at':
            sk=A.label('AT'); A(f's_cmp_lg_u32 s{sStep}, {x[1]}\ns_cbranch_scc1 {sk}\ns_memrealtime s[90:91]\ns_waitcnt lgkmcnt(0)\ns_mov_b32 s99, s90\ns_mov_b32 s90, 0\ns_mov_b32 s91, 0\n{sk}:')
    def mtxt(pos): return f'ds_read_b128 {q4(ring[pos%3])}, v{vL16} offset:{L_M+1024*(pos%9)}'
    def mread(pos): A(mtxt(pos))
    mread(0); mread(1); Q.append(mtxt(2))
    accv=[T(44),T(28)]
    li=0
    cold=[]
    NL=Dl['nl']; late_vm=[]
    for n,op in enumerate(qk_order):
        pos=n//4; acc=(accq if op[0]=='q' else acck)[op[2]]
        if m[op][0]=='l':
            b=stg[QKBUF[li]]; B=f'v[{b}:{b+7}]'
        else: B=R(m[op])
        A(f'{SM} {q4(acc)}, {q4(ring[pos%3])}, {B}, v{vIdx}')
        if m[op][0]=='l':
            nx=[j for j in range(li+1,len(lds_qk)) if QKBUF[j]==QKBUF[li]]
            if nx: qop(lds_qk[nx[0]],b)
            li+=1
        if n==NL:
            ck=late; ok=A.label('LOK')
            A(f'ds_write_b128 v{vMl}, {q4(late)} offset:{L_M+5120}'); wpos=len(A.items)
        if n==NL+1: A(f'v_max3_u32 v{ck}, v{late}, v{late+1}, v{late+2}')
        if n==NL+2: A(f'v_max_u32 v{ck}, v{ck}, v{late+3}')
        if n==NL+3:
            A(f'v_cmp_eq_u32 vcc, -1, v{ck}\ns_cbranch_vccnz {lateL}\n{ok}:')
            def c(ok=ok,ck=ck):
                A(f'{lateL}:')
                A(f'buffer_load_dwordx4 {q4(late)}, v{vL16}, s[4:7], s{sT3} offen sc1')
                A(f's_add_u32 s{sPoll}, s{sPoll}, 1\ns_add_u32 s{sSt+12}, s{sSt+12}, 1\ns_cmp_gt_u32 s{sPoll}, {POLLMAX}\ns_cbranch_scc1 {fail}')
                A(f'ds_write_b128 v{vMl}, {q4(late)} offset:{L_M+5120}')
                A(f's_nop 1\nv_max3_u32 v{ck}, v{late}, v{late+1}, v{late+2}\nv_max_u32 v{ck}, v{ck}, v{late+3}')
                A(f'v_cmp_eq_u32 vcc, -1, v{ck}\ns_cbranch_vccnz {lateL}\ns_waitcnt lgkmcnt(0)\ns_branch {ok}')
            cold.append(c)
        if n%4==3:
            if pos<2: Q.insert(0,mtxt(pos+3))
            elif pos==3:
                A('LGKM_A2\ns_barrier'.replace('LGKM_A2',f's_waitcnt lgkmcnt({sum(1 for it in A.items[wpos:] if isinstance(it,Ins) and it.kind=="ds")})'))
                Q.insert(0,mtxt(5)); Q.insert(1,mtxt(6))
            elif pos>3 and (pos<6 or not Dl['vo']): Q.insert(0,mtxt(pos+3))
        if n!=NL: pop()
        L_=Dl['lay']
        if n==L_[0]: A(f'buffer_load_dwordx4 {q4(VX)}, v{vKx}, s[4:7], s{sKVc} offen sc1')
        if n==L_[1]: A(f'buffer_load_dwordx4 {q4(VX+4)}, v{vKx}, s[4:7], s{sKVc} offen offset:256 sc1')
        if n==L_[6]: A(f'v_mov_b32 v{T(44)}, -1')
        if n==L_[7]: A(f'v_mov_b32 v{T(45)}, s{sStep}')
        if n==L_[8]: A(f'v_lshlrev_b32 v{T(46)}, 3, v{vL16}')
        if n==L_[2]: A(f'buffer_store_dword v{T(44)}, v{vH2st}, s[4:7], s{sPz} offen {st}')
        if n==L_[8]+1 and Dl['pk']: A(f'v_lshrrev_b32 v{T(47)}, 8, v{vL16}')
        if n==L_[8]+2 and Dl['pk']: A(f'v_mad_u32_u24 v{T(46)}, v{T(47)}, s{sPfK}, v{T(46)}')
        if n==L_[3] and 'nopf' not in X: A(f's_mov_b64 exec, {"0xffffffff" if Dl["pk"] else "0xffff"}\nbuffer_load_dword v{T(46)}, s[4:7], s{sPf} offen sc1 lds\ns_mov_b64 exec, -1')
        if n==L_[4]: A(f'buffer_store_dword v{T(45)}, v{vCon}, s[4:7], s{sFlagMw} offen sc1')
        if n==L_[5]:
            kf_=A.label('KVF'); kb_=A.label('KVB')
            A(f's_cmp_lt_u32 s{sKVok}, s{sNeed}\ns_cbranch_scc1 {kf_}\n{kb_}:')
            def c(kf_=kf_,kb_=kb_):
                A(f'{kf_}:\nbuffer_load_dword v{vCon}, s[4:7], s{sFlagKVd} offen offset:256 sc1 lds\nbuffer_load_dword v{vCon}, s[4:7], s{sFlagKVd} offen offset:512 sc1 lds\ns_branch {kb_}')
            cold.append(c)
        if n in L_[9]:
            for j in range(8):
                if L_[9][j]==n: A(f'v_mov_b32 v{(accv[0]+j) if j<4 else (accv[1]+j-4)}, 0')
    stamp(1)
    def vstep(p):
        for c in range(2):
            o_=6 if Dl['vo'] else 0
            A(f'{SM} {q4(accv[c])}, {q4(ring[p%3])}, {R(m[("v",TORD[(p+o_)%9],c)])}, v{vIdx}')
            if c==1 and p+3<9: Q.insert(0,mtxt(p+3+o_))
            pop()
    def cv(d,a): A(f'v_cvt_pk_bf16_f32 v{d}, v{a}, v{a+1}')
    pad(0)
    vstep(0)
    for a in accq: cv(a,a); cv(a+1,a+2)
    tq=[T(32),T(36)]; tk=[T(0),T(4)]
    A(f'{M16} {q4(tq[0])}, v[{accq[0]}:{accq[0]+1}], v[{vS16}:{vS16+1}], 0')
    cv(acck[0],acck[0]); cv(acck[0]+1,acck[0]+2)
    A(f'{M16} {q4(tq[1])}, v[{accq[1]}:{accq[1]+1}], v[{vS16}:{vS16+1}], 0')
    cv(acck[1],acck[1]); cv(acck[1]+1,acck[1]+2)
    A(f'{M16} {q4(tk[0])}, v[{acck[0]}:{acck[0]+1}], v[{vS16}:{vS16+1}], 0')
    A(f'{M16} {q4(tk[1])}, v[{acck[1]}:{acck[1]+1}], v[{vS16}:{vS16+1}], 0')
    qf,kf=T(32),T(8)
    A(f'v_add_u32 v{T(40)}, s{sW256}, v{vL16}')
    cv(qf,tq[0]); cv(qf+1,tq[0]+2); cv(qf+2,tq[1]); cv(qf+3,tq[1]+2)
    X0,X1,Mm=T(4),T(12),T(0)
    cv(kf,tk[0]); cv(kf+1,tk[0]+2)
    A(f'{M32} {q4(X1)}, {q4(KX+4)}, {q4(qf)}, 0')
    cv(kf+2,tk[1]); cv(kf+3,tk[1]+2)
    A(f'{M32} {q4(X0)}, {q4(KX)}, {q4(qf)}, 0')
    A(f'{M32} {q4(Mm)}, {q4(kf)}, {q4(qf)}, 0')
    vstep(1)
    if 'nok' not in X: A(f'buffer_load_dwordx4 {q4(KX)}, v{vKx}, s[4:7], s{sKn} offen sc1')
    if Dl['kx2']:
        A(f'v_cndmask_b32 v{kf}, v{kf}, v{kf+2}, s[{sHi}:{sHi+1}]\nv_cndmask_b32 v{kf+1}, v{kf+1}, v{kf+3}, s[{sHi}:{sHi+1}]')
        A(f'buffer_store_dwordx2 v[{kf}:{kf+1}], v{vSel}, s[4:7], s{sKMo} offen sc1')
    elif 'nokm' not in X and 'nokm1' not in X: A(f'buffer_store_dwordx4 {q4(kf)}, v{vOw}, s[4:7], s{sKMo} offen {KS}')
    for r in range(4): A(f'v_cndmask_b32 v{X0+r}, v{X0+r}, v{X1+r}, s[{sHi}:{sHi+1}]')
    yw=f'ds_write_b128 v{vYw}, {q4(X0)} offset:{L_QK}'
    k2=f'buffer_load_dwordx4 {q4(KX+4)}, v{vKx}, s[4:7], s{sKn} offen offset:256 sc1'
    ms=f'v_cndmask_b32 v{Mm}, v{Mm}, v{Mm+1}, s[{sHi}:{sHi+1}]\nv_cndmask_b32 v{Mm+2}, v{Mm+2}, v{Mm+3}, s[{sHi}:{sHi+1}]\nv_cndmask_b32 v{Mm}, v{Mm}, v{Mm+2}, s[{sG2}:{sG2+1}]'
    mw=f'ds_write_b32 v{T(40)}, v{Mm} offset:{L_MX}'
    if 'nok' in X: k2='s_nop 0'
    for t_ in ([yw,k2,ms,mw],[ms,yw,k2,mw],[k2,ms,yw,mw])[Dl['yo']]: A(t_)
    wp=len(A.items)
    vstep(2); vstep(3)
    if Dl['v4']: vstep(4)
    A(f's_waitcnt lgkmcnt({sum(1 for it in A.items[wp:] if isinstance(it,Ins) and it.kind=="ds")})\ns_barrier')
    stamp(2)
    pad(1)
    Y=[T(0),T(4),T(8),T(12)]; Mp=[T(16)]
    A(f'ds_read_b128 {q4(Y[0])}, v{vL16} offset:{L_QK}')
    for j in range(1,4): Q.append(f'ds_read_b128 {q4(Y[j])}, v{vL16} offset:{L_QK+1024*j}')
    Q.append(f'ds_read_b128 {q4(T(36))}, v{vCon} offset:16'); Q.append(f'ds_read_b64 v[{T(40)}:{T(41)}], v{vCon} offset:32')
    if not Dl['v4']: vstep(4)
    vstep(5); vstep(6)
    Q.insert(0,f'ds_read_b128 {q4(Mp[0])}, v{vL16} offset:{L_MX}')
    vstep(7); vstep(8)
    pop(len(Q))
    def padd(a,b):
        A(f'v_pk_add_f32 v[{a}:{a+1}], v[{a}:{a+1}], v[{b}:{b+1}]\nv_pk_add_f32 v[{a+2}:{a+3}], v[{a+2}:{a+3}], v[{b+2}:{b+3}]')
    def pmul(a):
        for o in (0,2): A(f'v_pk_mul_f32 v[{a+o}:{a+o+1}], v[{a+o}:{a+o+1}], s[{sSc2}:{sSc2+1}]')
    Ys,Ms=Y[0],Mp[0]
    vm=T(32); P=T(12); ones,half=T(36),T(40)
    accO=[T(16),T(20),T(24),T(28)]; accS=T(44)
    O0,O1,Lr=T(0),T(4),T(44)
    def softpv(fast):
        for r in range(4):
            A(f'v_exp_f32 v{Ys+r}, v{Ys+r}')
            if fast and r==2: vmk(1)
        if fast: A(f'v_pk_add_f32 v[{Ms}:{Ms+1}], v[{Ms}:{Ms+1}], v[{Ms+2}:{Ms+3}]')
        A(f'v_cvt_pk_bf16_f32 v{P}, v{Ys}, v{Ys+1}\nv_cvt_pk_bf16_f32 v{P+2}, v{Ys}, v{Ys+1}')
        A(f'v_cvt_pk_bf16_f32 v{P+1}, v{Ys+2}, v{Ys+3}\nv_cvt_pk_bf16_f32 v{P+3}, v{Ys+2}, v{Ys+3}')
        if fast: vmk(2); A(f'v_add_f32 v{Ms}, v{Ms}, v{Ms+1}')
        A(f'v_mov_b32_dpp v{P}, v{P+2} row_ror:8 row_mask:0xf bank_mask:0xc')
        if fast: A(f'v_mul_f32 v{Ms}, s{sSc2}, v{Ms}')
        A(f'v_mov_b32_dpp v{P+1}, v{P+3} row_ror:8 row_mask:0xf bank_mask:0xc')
        A(f'v_mov_b32_dpp v{P+2}, v{P+2} row_ror:8 row_mask:0xf bank_mask:0x3')
        A(f'v_mov_b32_dpp v{P+3}, v{P+3} row_ror:8 row_mask:0xf bank_mask:0x3')
        A(f'v_exp_f32 v{Ms}, v{Ms}\nv_exp_f32 v{Ms+1}, v{Ms} ;dup'.replace(f'v_exp_f32 v{Ms}, v{Ms}\nv_exp_f32 v{Ms+1}, v{Ms} ;dup',f'v_exp_f32 v{Ms+1}, v{Ms}'))
        if fast: vmk(3)
        A(f'{M32} {q4(Lr)}, {q4(ones)}, {q4(P)}, 0')
        A(f'v_mov_b32 v{Ms}, v{Ms+1}')
        A(f'{M32} {q4(O0)}, {q4(VX)}, {q4(P)}, 0')
        A(f'v_mov_b32_dpp v{Ms}, v{Ms+1} row_ror:8 row_mask:0xf bank_mask:0xc')
        A(f'v_mov_b32_dpp v{Ms+1}, v{Ms+1} row_ror:8 row_mask:0xf bank_mask:0x3')
        A(f'{M32} {q4(O1)}, {q4(VX+4)}, {q4(P)}, 0')
        Pm=T(8)
        A(f'v_cvt_pk_bf16_f32 v{Pm}, v{Ms}, v{Ms+1}\nv_cvt_pk_bf16_f32 v{Pm+1}, v{Ms}, v{Ms+1}')
        z=lambda b,lo,hi: [A(f'v_mov_b32 v{b+i}, 0') for i in range(lo,hi)]
        if fast: vmk(4)
        z(accO[0],0,2)
        A(f'v_permlane32_swap_b32 v{Pm}, v{Pm+1}')
        z(accO[0],2,4)
        A(f'{M16} {q4(Lr)}, v[{half}:{half+1}], v[{Pm}:{Pm+1}], {q4(Lr)}')
        zero(accO[1])
        A(f'{M16} {q4(O0)}, v[{vm}:{vm+1}], v[{Pm}:{Pm+1}], {q4(O0)}')
        zero(accO[2])
        A(f'{M16} {q4(O1)}, v[{vm+2}:{vm+3}], v[{Pm}:{Pm+1}], {q4(O1)}')
    pad(2)
    padd(Y[0],Y[1]); padd(Y[2],Y[3]); padd(Y[0],Y[2])
    pmul(Ys)
    for c in range(2): cv(vm+2*c,accv[c]); cv(vm+2*c+1,accv[c]+2)
    vmst=f'buffer_store_dwordx4 {q4(vm)}, v{vL16}, s[4:7], s{sVMo} offen {KS}'
    def vmk(k):
        if Dl['vp']==3 and k<4: A(f's_mov_b64 exec, s[{sWm+2*k}:{sWm+2*k+1}]\n{vmst}\ns_mov_b64 exec, -1')
        if Dl['vp']==10+k: A(vmst)
        if Dl['vp']==4 and k%2==0: A(f's_mov_b64 exec, s[{sWm+8+k}:{sWm+9+k}]\n{vmst}\ns_mov_b64 exec, -1')
    if Dl['vp']==0: A(vmst)
    if Dl['vp']==9:
        vl_=A.label('VMI'); vr_=A.label('VMR')
        A(f's_cmp_ge_u32 s{sStep}, 60\ns_cbranch_scc1 {vl_}\n{vr_}:')
        def c(vl_=vl_,vr_=vr_): A(f'{vl_}:\n{vmst}\ns_cmp_eq_u32 s{sStep}, 63\ns_cbranch_scc1 {done}\ns_branch {vr_}')
        cold.append(c)
    vmk(0)
    if Dl['vp']!=9: A(f's_cmp_eq_u32 s{sStep}, 63\ns_cbranch_scc1 {done}')
    stamp(3)
    if Dl['vp']==16: A(vmst)
    softpv(True)
    ostg=[VX,T(36)]
    ra=[T(0),T(4),T(8)]
    rl=T(10); m1,m2=T(42),T(43)
    sm_slow=A.label('SMX'); sm_ok=A.label('SMK')
    vmk(5)
    A(f'v_xor_b32 v{ra[2]}, 1536, v{vOw}')
    A(f'v_subrev_u32 v{m1}, s{sLo20}, v{Lr}\nv_rcp_f32 v{rl}, v{Lr}')
    A(f'v_cmp_lt_u32 vcc, s{sHi20}, v{m1}')
    if 'forceslow' in X: A(f's_branch {sm_slow}')
    else: A(f's_cbranch_vccnz {sm_slow}')
    A(f'{sm_ok}:')
    def c():
        A(f'{sm_slow}:')
        tm=[T(4),T(20),T(24),T(28)]
        for j in range(4): A(f'ds_read_b128 {q4(tm[j])}, v{vL16} offset:{L_QK+1024*j}')
        A(f'ds_read_b128 {q4(Ms)}, v{vL16} offset:{L_MX}')
        padd(tm[0],tm[1]); padd(tm[2],tm[3]); padd(tm[0],tm[2])
        for r in range(4): A(f'v_mov_b32 v{Ys+r}, v{T(4)+r}')
        pmul(Ys)
        A(f"""
v_pk_add_f32 v[{Ms}:{Ms+1}], v[{Ms}:{Ms+1}], v[{Ms+2}:{Ms+3}]
v_add_f32 v{Ms}, v{Ms}, v{Ms+1}
v_mul_f32 v{Ms}, s{sSc2}, v{Ms}
v_max3_f32 v{m1}, v{Ys}, v{Ys+1}, v{Ys+2}
v_max3_f32 v{m1}, v{m1}, v{Ms}, v{Ys+3}
v_max_f32_dpp v{m1}, v{m1}, v{m1} row_ror:8 row_mask:0xf bank_mask:0xf
v_mov_b32 v{m2}, v{m1}
v_permlane32_swap_b32 v{m1}, v{m2}
v_max_f32 v{m1}, v{m1}, v{m2}
v_mov_b32 v{m2}, v{m1}
v_permlane16_swap_b32 v{m1}, v{m2}
v_max_f32 v{m1}, v{m1}, v{m2}
v_sub_f32 v{Ms}, v{Ms}, v{m1}
""")
        for r in range(4): A(f'v_sub_f32 v{Ys+r}, v{Ys+r}, v{m1}')
        softpv(False)
        A(f'v_xor_b32 v{ra[2]}, 1536, v{vOw}\nv_rcp_f32 v{rl}, v{Lr}\ns_branch {sm_ok}')
    cold.append(c)
    vmpos=len(A.items)
    zero(accO[3])
    Q.clear(); qop(lds_o[0],ostg[0]); qop(lds_o[1],ostg[1])
    own=T(12)
    for i,b in enumerate((O0,O0+2,O1,O1+2)):
        A(f'v_pk_mul_f32 v[{b}:{b+1}], v[{b}:{b+1}], v[{rl}:{rl+1}] op_sel_hi:[1,0]')
    for i,b in enumerate((O0,O0+2,O1,O1+2)):
        A(f'v_cvt_pk_bf16_f32 v{own+i}, v{b}, v{b+1}')
    if Dl['oo']: A(f'v_xor_b32 v{ra[0]}, 512, v{vOw}\nv_xor_b32 v{ra[1]}, 1024, v{vOw}')
    if Dl['ob']:
        A(f'v_cndmask_b32 v{T(2)}, v{own}, v{own+2}, s[{sHi}:{sHi+1}]\nv_cndmask_b32 v{T(3)}, v{own+1}, v{own+3}, s[{sHi}:{sHi+1}]')
        A(f'ds_write_b64 v{vSel}, v[{T(2)}:{T(3)}] offset:{L_O}')
    else: A(f'ds_write_b128 v{vOw}, {q4(own)} offset:{L_O}')
    wp=len(A.items); pop()
    if Dl['vp']==1: A(vmst)
    vP,vPa,vFa,vFd=T(32),vOr,(vCon if Dl['r1'] else vSel),T(35)
    def flag(): A(f'buffer_store_dword v{vFd}, v{vFa}, s[4:7], s{sFlg1 if Dl["r1"] else sFlg} offen {st}')
    def probe(): A(f'buffer_load_dword v{vP}, v{vPa}, s[4:7], s{sPrb1 if Dl["r1"] else sPrb} offen sc1 ;nw')
    if Dl['fl']==-2:
        A(f's_add_u32 s{sStep1}, s{sStep}, 1\nv_bfe_u32 v{T(0)}, v{vL16}, 0, 6\nv_mov_b32 v{T(1)}, s{sStep1}\nv_lshlrev_b32 v{T(0)}, 4, v{T(0)}')
        A(f'buffer_store_dword v{T(1)}, v{T(0)}, s[4:7], s{sFlg} offen {st}')
    stamp(4)
    fr=[own,T(0),T(4),T(8)]
    def osm(k,P):
        op=('o',k,P)
        if m[op][0]=='l':
            i=lds_o.index(op); b=ostg[i%2]; B=f'v[{b}:{b+7}]'
        else: B=R(m[op])
        A(f'{SM} {q4(accO[P])}, {q4(fr[k])}, {B}, v{vIdx}')
        if m[op][0]=='l' and i+2<len(lds_o): qop(lds_o[i+2],ostg[i%2])
        pop()
    def osg(k):
        loc=m[('s',k//2)]
        A(f'{M32} {q4(accS)}, {q4(fr[k])}, {R(loc,4*(k%2),4)}, {"0" if k==0 else q4(accS)}')
        pop()
    osg(0)
    if not Dl['oo']: A(f'v_xor_b32 v{ra[0]}, 512, v{vOw}\nv_xor_b32 v{ra[1]}, 1024, v{vOw}')
    osm(0,0); osm(0,1)
    if Dl['vp']==2: A(vmst)
    A(f's_waitcnt lgkmcnt({sum(1 for it in A.items[wp:] if isinstance(it,Ins) and it.kind=="ds")})\ns_barrier')
    for k in range(1,4): A(f'ds_read_b128 {q4(fr[k])}, v{ra[k-1]} offset:{L_O}')
    if Dl['vp']==9: A(f'ds_write_b128 v{vYw}, {q4(vm)} offset:{L_QK}')
    osm(0,2); osm(0,3)
    stamp(5)
    pad(3)
    def tagit(r): A(f'v_and_or_b32 v{r}, v{r}, -2, s{sTag}')
    def pack(x,y,so,last=False):
        A(f'v_cvt_pk_bf16_f32 v{x}, v{x}, v{x+1}\nv_cvt_pk_bf16_f32 v{x+1}, v{x+2}, v{x+3}')
        A(f'v_cvt_pk_bf16_f32 v{x+3}, v{y+2}, v{y+3}\nv_cvt_pk_bf16_f32 v{x+2}, v{y}, v{y+1}')
        if last and 15 in Dl['pr']: probe()
        tagit(x+2); tagit(x)
        A(f'v_permlane16_swap_b32 v{x+1}, v{x+3}\nv_permlane16_swap_b32 v{x}, v{x+2}')
        A(f'buffer_store_dwordx4 {q4(x)}, v{vH1st}, s[4:7], {so} offen {st}')
    A(f'v_mov_b32 v{vFd}, s{sStep1}')
    if Dl['fl']==-1: flag()
    A(f'v_mov_b32 v{vP}, 0')
    cnt=[0]
    def tick():
        if cnt[0]==Dl['fl']: flag()
        if cnt[0] in Dl['pr']: probe()
        cnt[0]+=1
    sst=f'buffer_store_dwordx2 v[{accS}:{accS+1}], v{vH1s1}, s[4:7], 0 offen {st}'
    if not Dl['sd']: sst=f's_mov_b64 exec, 0xffffffff\n{sst}\ns_mov_b64 exec, -1'
    if Dl['so']:
        for k in range(1,4): osm(k,0); tick()
        for k in range(1,4): osm(k,1); tick()
        x,y=accO[0],accO[1]
        osg(1); tick(); cv(x,x); cv(x+1,x+2)
        osg(2); tick(); tagit(x)
        osg(3); tick(); cv(x+3,y+2); cv(x+2,y); tagit(x+2)
        A(f'v_permlane16_swap_b32 v{x+1}, v{x+3}\nv_permlane16_swap_b32 v{x}, v{x+2}')
        A(f'buffer_store_dwordx4 {q4(x)}, v{vH1st}, s[4:7], 0 offen {st}')
        cv(accS,accS); cv(accS+1,accS+2); tagit(accS); A(sst)
    else:
        for k in range(1,4): osg(k); tick()
        for k in range(1,4): osm(k,0); tick()
        if Dl['se']:
            A(f'v_cvt_pk_bf16_f32 v{accS}, v{accS}, v{accS+1}')
            osm(1,1); tick(); A(f'v_cvt_pk_bf16_f32 v{accS+1}, v{accS+2}, v{accS+3}')
            osm(2,1); tick(); tagit(accS)
            osm(3,1); tick(); A(sst)
            if Dl['se']==2: osm(1,2); tick()
        else:
            for k in range(1,4): osm(k,1); tick()
            A(f'v_cvt_pk_bf16_f32 v{accS}, v{accS}, v{accS+1}\nv_cvt_pk_bf16_f32 v{accS+1}, v{accS+2}, v{accS+3}')
            tagit(accS); A(sst)
        pack(accO[0],accO[1],'0')
    sel=T(44); D=T(16)
    def mksel(): A(f'ds_read_b128 {q4(sel)}, v{vL16} offset:{L_S}')
    for _ in range(Dl['po']): A('s_nop 0')
    for k in range(2 if Dl['se']==2 and not Dl['so'] else 1,4): osm(k,2); tick()
    for k in range(1,4): osm(k,3); tick()
    A(f's_cmp_lg_u32 s{sW}, 3')
    pack(accO[2],accO[3],f's{s32k}',True)
    stamp(6)
    if 6 in stamps or ('tr',6) in X: A(f's_cmp_lg_u32 s{sW}, 3')
    nyoung=sum(1 for it in A.items[vmpos:] if isinstance(it,Ins) and it.vm)
    f1=sum((((a^c)|(b^c))<<(a*4+b*2+c)) for a in (0,1) for b in (0,1) for c in (0,1))
    f2=sum(((a|(b^c))<<(a*4+b*2+c)) for a in (0,1) for b in (0,1) for c in (0,1))
    def zacc(lo=0,hi=16,w=False):
        for i in range(lo,hi): A(f'v_mov_b32 v{T(i)}, 0')
    def h1loads(hd):
        for j in range(4): A(f'buffer_load_dwordx4 {q4(hd+4*j)}, v{vL16}, s[4:7], s{sH1ld} offen offset:{1024*j} sc1')
    def rbody(hd):
        ck=T(20)
        for j in range(4):
            A(f'{M32} {q4(D)}, {q4(hd+4*j)}, {q4(sel)}, {q4(D) if j else "0"}')
            if j==0: A(f'v_bitop3_b32 v{ck}, v{hd}, v{hd+2}, s{sTag} bitop3:{f1:#x}')
            else:
                A(f'v_bitop3_b32 v{ck}, v{ck}, v{hd+4*j}, s{sTag} bitop3:{f2:#x}')
                A(f'v_bitop3_b32 v{ck}, v{ck}, v{hd+4*j+2}, s{sTag} bitop3:{f2:#x}')
        A(f'v_and_b32 v{ck}, 1, v{ck}\nv_cmp_ne_u32 vcc, 0, v{ck}')
    def reduce(between=None,pre=False):
        p1=A.label('P1'); ok=A.label('P1K'); sec=A.label('P1S')
        hd=T(28)
        stamp(10)
        h1loads(hd)
        if between: between()
        rbody(T(0) if pre else hd); A(f's_cbranch_vccnz {sec if pre else p1}')
        A(f'{ok}:')
        A(f'v_permlane32_swap_b32 v{D}, v{D+2}\nv_permlane32_swap_b32 v{D+1}, v{D+3}')
        A(f'v_pk_add_f32 v[{D}:{D+1}], v[{D}:{D+1}], v[{D+2}:{D+3}]\nv_cvt_pk_bf16_f32 v{D}, v{D}, v{D+1}')
        A(f'buffer_store_dword v{D}, v{vH2st}, s[4:7], s{sH2c} offen {st}')
        stamp(11)
        def c():
            if pre:
                A(f'{sec}:\ns_add_u32 s{sSt+8}, s{sSt+8}, 1'); rbody(hd); A(f's_cbranch_vccz {ok}')
            A(f'{p1}:')
            h1loads(hd)
            A(f's_add_u32 s{sPoll}, s{sPoll}, 1\ns_add_u32 s{sSt+13}, s{sSt+13}, 1\ns_cmp_gt_u32 s{sPoll}, {POLLMAX}\ns_cbranch_scc1 {fail}')
            rbody(hd); A(f's_cbranch_vccz {ok}\ns_branch {p1}')
        cold.append(c)
    def prestage():
        for j in range(2): ldsop(lds_qk[j],stg[j])
    def book(ps=True):
        if ps: prestage()
        A(f"""
s_add_u32 s{sH2ld}, s{sH2c}, s{sW3k}
s_add_u32 s{sT3}, s{sH2c}, s{sLate}
s_xor_b32 s{sTag}, s{sTag}, 1
s_mov_b32 s{sT1}, s{sH2p}
s_mov_b32 s{sH2p}, s{sH2n}
s_mov_b32 s{sH2n}, s{sH2c}
s_mov_b32 s{sH2c}, s{sT1}
s_add_u32 s{sKVc}, s{sKn}, 8192
s_add_u32 s{sKn}, s{sKn}, {0 if 'samekv' in X else 32*16384}
s_add_u32 s{sPf}, s{sPf}, {32*16384}
s_add_u32 s{sKMo}, s{sKMo}, {32*2048}
s_mov_b32 s{sVMp}, s{sVMo}
s_add_u32 s{sVMo}, s{sVMo}, {32*4096}
s_add_u32 s{sStep}, s{sStep}, 1
s_mov_b32 s{sPoll}, 0
""")
        scal()
    def l_load(): A(f'buffer_load_dwordx4 {q4(late)}, v{vL16}, s[4:7], s{sT3} offen sc1')
    def gather(ne,g,dl,ps=False):
        p2=A.label('P2'); sec=A.label('P2S')
        regs=[VX,VX+4][:ne]; ck=T(16)
        def e_loads():
            for j in range(ne): A(f'buffer_load_dwordx4 {q4(regs[j])}, v{vL16}, s[4:7], s{sH2ld} offen offset:{2048*j} sc1')
        def body(tgt,nw):
            x=' ;nw' if nw is not None else ''
            for j,r in enumerate(regs):
                if nw is not None: A(f's_waitcnt vmcnt({nw+ne-1-j})')
                if j==0: A(f'v_max3_u32 v{ck}, v{r}, v{r+1}, v{r+2}{x}\nv_max_u32 v{ck}, v{ck}, v{r+3}{x}')
                else: A(f'v_max3_u32 v{ck}, v{ck}, v{r}, v{r+1}{x}\nv_max3_u32 v{ck}, v{ck}, v{r+2}, v{r+3}{x}')
                if j<ne-1: A(f'ds_write_b128 v{vMw}, {q4(r)} offset:{L_M+1024*j}{x}')
            A(f'v_cmp_eq_u32 vcc, -1, v{ck}\ns_cbranch_vccnz {tgt}')
            A(f'ds_write_b128 v{vMw}, {q4(regs[ne-1])} offset:{L_M+1024*(ne-1)}{x}')
            stamp(8)
            A(f's_branch {barA}')
        e_loads(); delay(g); e_loads()
        if ps: prestage()
        delay(dl-(4 if ps else 0)); l_load(); body(sec,ne+1)
        def c():
            A(f'{sec}:\ns_add_u32 s{sSt+9}, s{sSt+9}, 1'); body(p2,1)
            A(f'{p2}:')
            e_loads(); l_load()
            A(f's_add_u32 s{sPoll}, s{sPoll}, 1\ns_add_u32 s{sSt+14}, s{sSt+14}, 1\ns_cmp_gt_u32 s{sPoll}, {POLLMAX}\ns_cbranch_scc1 {fail}')
            body(p2,None)
        cold.append(c)
    W1,W2,W3,W2n=[A.label(x) for x in ('W1','W2','W3','W2X')]
    def setml(): A(f's_mov_b32 s{sPoll}, 0')
    def pchk(tgt,ready):
        A(f'v_cmp_gt_u32 vcc, s{sStep1}, v{vP} ;nw')
        if Dl['xo']: A(f's_andn2_b64 vcc, vcc, s[{sOwn}:{sOwn+1}]\ns_cbranch_scc{0 if ready else 1} {tgt}')
        else: A(f's_cbranch_vcc{"z" if ready else "nz"} {tgt}')
    def spinz():
        sp=A.label('SPIN'); go=A.label('GO')
        pchk(sp,False)
        delay(Dl['z0'])
        A(f'{go}:')
        def c():
            A(f'{sp}:\ns_mov_b32 s{sPoll}, 0\n{sp}_l:')
            for i in range(4):
                probe(); A(f's_add_u32 s{sSt+11}, s{sSt+11}, 1'); delay(Dl['sp'])
                pchk(f'{sp}_d',True)
            A(f's_add_u32 s{sPoll}, s{sPoll}, 1\ns_cmp_lt_u32 s{sPoll}, 32\ns_cbranch_scc1 {sp}_l\n{sp}_d:')
            delay(Dl['z1'])
            A(f's_branch {go}')
        cold.append(c)
    NZ=Dl['nz']
    def barZ():
        if NZ: spinz()
        else: A('s_barrier')
    delay(Dl['lb']); A(f's_cbranch_scc1 {W3}')
    spinz()
    if not NZ: A('s_barrier')
    stamp(9)
    zacc(); setml()
    A(f's_add_u32 s{sT1}, s{sStep}, 3\ns_lshr_b32 s{sT1}, s{sT1}, 2\ns_add_u32 s{sT1}, s{sT1}, 1\ns_min_u32 s{sT1}, s{sT1}, 16')
    A(f'v_mov_b32 v{T(20)}, {L_W+4*WREG}\nds_read2_b32 v[{T(20)}:{T(21)}], v{T(20)} offset0:64 offset1:128')
    A(f'v_min_u32 v{T(20)}, v{T(20)}, v{T(21)}\nv_readfirstlane_b32 s{sT2}, v{T(20)}\ns_max_u32 s{sKVok}, s{sKVok}, s{sT2}')
    emit_wait_kv(A,sT1,fail,T(26))
    delay(Dl['d1']); book(); gather(1,Dl['g'],Dl['al'])
    A(f'{W3}:')
    mksel()
    A(f's_cmp_lg_u32 s{sW}, 0\ns_cbranch_scc1 {W2}')
    if Dl['a0']>=0:
        delay(Dl['a0']); h1loads(T(0)); A('s_barrier'); delay(Dl['a1']); reduce(setml,True); book(False); zacc(w=True); delay(max(0,Dl['a2']-12)); gather(2,Dl['g'],Dl['al'],True)
    else:
        barZ(); delay(Dl['a1']); reduce(lambda: (zacc(),setml())); book(); delay(Dl['a2']); gather(2,Dl['g'],Dl['al'])
    A(f'{W2}:\ns_cmp_lg_u32 s{sW}, 2\ns_cbranch_scc1 {W1}')
    ad=T(21); hq=T(28); cq=T(20); p1=A.label('Q1'); okq=A.label('Q1K')
    A(f'v_lshrrev_b32 v{ad}, 5, v{vL16}\nv_lshlrev_b32 v{ad}, 7, v{ad}\nv_and_or_b32 v{ad}, v{vL16}, 16, v{ad}')
    def q1body(hq=hq):
        A(f'{M32} {q4(D)}, {q4(hq)}, {q4(sel)}, 0')
        A(f'v_bitop3_b32 v{cq}, v{hq}, v{hq+2}, s{sTag} bitop3:{f1:#x}\nv_and_b32 v{cq}, 1, v{cq}\nv_cmp_ne_u32 vcc, 0, v{cq}')
    q1ld=f'buffer_load_dwordx4 {q4(hq)}, v{ad}, s[4:7], s{sH1ld} offen sc1'
    pre=Dl['a0']>=0; secq=A.label('Q1S')
    if pre:
        delay(Dl['c0']); A(q1ld.replace(q4(hq),q4(T(32)))); A('s_barrier'); delay(Dl['c1']); A(q1ld); zacc(); setml(); q1body(T(32))
    else:
        barZ(); delay(Dl['c1']); A(q1ld); zacc(); setml(); q1body()
    A(f's_cbranch_vccnz {secq if pre else p1}\n{okq}:')
    A(f"""
v_pk_add_f32 v[{D}:{D+1}], v[{D}:{D+1}], v[{D+2}:{D+3}]
v_permlane32_swap_b32 v{D}, v{D+1}
v_add_f32 v{D}, v{D}, v{D+1}
v_mov_b32 v{D+1}, v{D}
v_permlane16_swap_b32 v{D}, v{D+1}
v_add_f32 v{D}, v{D}, v{D+1}
v_mov_b32 v{D+1}, v{D}
v_permlane32_swap_b32 v{D}, v{D+1}
v_cvt_pk_bf16_f32 v{D}, v{D}, v{D+1}
buffer_store_dword v{D}, v{vH2st}, s[4:7], s{sH2c} offen {st}
""")
    stamp(11)
    def c():
        if pre:
            A(f'{secq}:\ns_add_u32 s{sSt+8}, s{sSt+8}, 1'); q1body(); A(f's_cbranch_vccz {okq}')
        A(f'{p1}:\n{q1ld}')
        A(f's_add_u32 s{sPoll}, s{sPoll}, 1\ns_add_u32 s{sSt+13}, s{sSt+13}, 1\ns_cmp_gt_u32 s{sPoll}, {POLLMAX}\ns_cbranch_scc1 {fail}')
        q1body(); A(f's_cbranch_vccz {okq}\ns_branch {p1}')
    cold.append(c)
    book(not pre); delay(Dl['c2']+(4 if pre else 0)); gather(2,Dl['g'],Dl['al'],pre)
    A(f'{W1}:')
    if NZ: barZ(); zacc(); setml(); delay(Dl['b1']-16)
    else: zacc(); setml(); barZ(); delay(Dl['b1'])
    reduce(); book(); delay(Dl['b2']); l_load(); stamp(8); A(f's_branch {barA}')
    for c in cold: c()

def emit_chain(A, fail, end, D1=0, D2=2, stamps=(), modes=('',), X=()):
    global QKPOS, NZG, NREP
    NREP=(D1 if isinstance(D1,dict) else {}).get('nr',4)
    NZG=(D1 if isinstance(D1,dict) else {}).get('nz',0)
    QKPOS=QKV[(D1 if isinstance(D1,dict) else {}).get('qp',QPDEF)]
    m, qk_order, lds_qk, lds_o = operand_map()
    emit_chain_init(A, m, X)
    lp=A.label('CB'); ck=A.label('CBC')
    A(f's_mov_b32 s{sPoll}, 0\ns_branch {ck}\n{lp}:')
    status_loads(A)
    A(f"""
s_add_u32 s{sPoll}, s{sPoll}, 1
s_cmp_gt_u32 s{sPoll}, {POLLMAX}
s_cbranch_scc1 {fail}
{ck}:
v_add3_u32 v65, v65, v66, v67
v_add3_u32 v68, v68, v69, v70
v_add3_u32 v65, v65, v68, v71
v_add_u32 v65, v65, v64
v_min_u32 v{VX+2}, v{VX+2}, v{VX+3}
v_readfirstlane_b32 s{sT1}, v{VX+1}
v_readfirstlane_b32 s{sT2}, v64
v_readfirstlane_b32 s{sT3}, v65
v_readfirstlane_b32 s{sKVok}, v{VX+2}
s_cmp_lt_u32 s{sT1}, 8
s_cbranch_scc1 {lp}
s_cmp_lt_u32 s{sT2}, 32
s_cselect_b32 s{sMode}, 1, 0
s_cselect_b32 s{sT3}, s{sT3}, 256
s_cmp_lt_u32 s{sT3}, 256
s_cbranch_scc1 {lp}
s_cmp_ge_u32 s{sStep1}, 8
s_cselect_b32 s{sKVok}, s{sKVok}, 0
s_mov_b32 s{sT1}, 1
""")
    emit_wait_kv(A,sT1,fail,VX)
    A(f'buffer_load_dwordx4 {q4(KX)}, v{vKx}, s[4:7], s{sKVc} offen sc1')
    A(f'buffer_load_dwordx4 {q4(KX+4)}, v{vKx}, s[4:7], s{sKVc} offen offset:256 sc1')
    A(f's_add_u32 s{sKVc}, s{sKVc}, 8192')
    A(f's_xor_b32 s{sWbm}, s{sW}, 3\ns_or_b32 s{sWbm}, s{sWbm}, s{sH}')
    A(f's_mov_b32 s{sVMp}, {WS_BYTES}')
    A(f's_sub_u32 s{sFlg1}, s{sFlg}, {L_C}\ns_and_b32 s{sPrb1}, s{sPrb}, {0xfffff0ff}')
    A(f's_mov_b32 s{sG2}, 0\ns_mov_b32 s{sG2+1}, -1')
    A(f's_lshl_b32 s{sOwn}, 1, s{sH}\ns_mov_b32 s{sOwn+1}, s{sOwn}')
    A(f's_mov_b32 s{sFlagM2}, s{sFlagM}\ns_mov_b32 s{sPfK}, {32*16384-8192-2048}')
    A(f's_sub_u32 s{sFlagKVd}, s{sFlagKV}, {L_C+256}\ns_cmp_eq_u32 s{sW}, 3\ns_cselect_b32 s{sKVok}, s{sKVok}, 16')
    A(f'v_mov_b32 v{VX}, {L_W+4*WREG}\nv_mov_b32 v{VX+1}, 0\nds_write2_b32 v{VX}, v{VX+1}, v{VX+1} offset0:64 offset1:128')
    for i in range(16):
        if not ('itrace' in X and 4<=i<10): A(f's_mov_b32 s{sSt+i}, 0')
    if 'rdy' in X: A('s_memrealtime s[90:91]\ns_waitcnt lgkmcnt(0)\ns_mov_b32 s99, s90\ns_mov_b32 s90, 0\ns_mov_b32 s91, 0')
    if 'initstamp' in X: A(f's_memtime s[{sSt+10}:{sSt+11}]\ns_waitcnt lgkmcnt(0)\ns_sub_u32 s{sSt+10}, s{sSt+10}, s72\ns_mov_b32 s{sSt+11}, 0')
    done=A.label('CDONE')
    trcopy='\n'.join(f's_mov_b32 s{sSt+4+i}, s{sTr+2*i}' for i in range(6))+'\n' if any(isinstance(x,tuple) and x[0]=='tr' for x in X) else ''
    if len(modes)==2:
        A(f's_cmp_lg_u32 s{sMode}, 0\ns_cbranch_scc1 CSTEP_1_prep')
    for i,st in enumerate(modes):
        emit_chain_loop(A, m, qk_order, lds_qk, lds_o, st, i, fail, done, D1, D2, list(stamps), X)
    A(f"""
{done}:
buffer_store_dwordx4 {q4(T(32))}, v{vL16}, s[4:7], s{sVMo} offen sc1
s_waitcnt lgkmcnt(0)
{trcopy}s_waitcnt vmcnt(0)
s_barrier
s_cmp_lg_u32 s{sW}, 3
s_cbranch_scc1 {end}
v_mov_b32 v{T(0)}, 0
v_mov_b32 v{T(1)}, 64
buffer_store_dword v{T(1)}, v{T(0)}, s[4:7], s{sFlagM2} offen sc1
s_branch {end}
""")
```

```python
import sys; sys.path.insert(0,'exp'); sys.path.insert(0,'gen'); sys.path.insert(0,'code')
from hx import *
import importlib
from cdna_launch import _hip
import asmgen, common, chain
from common import *
def build_chain(D1=0,D2=2,stamps=(),st='',X=(),al=0,ml=70):
    A = asmgen.Asm(); A.merge_lat=ml; A.align=al; A.align_range=('CBA_','CDONE')
    A(f'''
s_and_b32 s3, s2, 7
s_cmp_lg_u32 s3, 0
s_cbranch_scc1 L_end
s_lshr_b32 s{chain.sH}, s2, 3
s_cmp_ge_u32 s{chain.sH}, 32
s_cbranch_scc1 L_end
v_lshrrev_b32 v1, 6, v0
v_readfirstlane_b32 s{chain.sW}, v1
s_memtime s[72:73]
s_memrealtime s[96:97]
s_waitcnt lgkmcnt(0)
''')
    chain.emit_chain(A, 'L_fail', 'L_fin', D1, D2, stamps, modes=(st,), X=tuple(X)+(() if 'hist' in X else ('initstamp',)))
    A(f'''
L_fail:
s_mov_b32 s{chain.sSt+15}, 0xdead
L_fin:
s_memtime s[74:75]
s_memrealtime s[68:69]
s_load_dwordx2 s[76:77], s[0:1], {KA['out']}
s_waitcnt lgkmcnt(0)
s_sub_u32 s74, s74, s72
s_lshl_b32 s78, s{chain.sH}, 2
s_add_u32 s78, s78, s{chain.sW}
s_lshl_b32 s78, s78, 7
v_mov_b32 v24, s78
v_mov_b32 v25, s74
v_mov_b32 v26, s{chain.sStep}
global_store_dwordx2 v24, v[25:26], s[76:77]
''' .replace('v[25:26]','v[26:27]').replace('v_mov_b32 v26, s','v_mov_b32 v27, s').replace('v_mov_b32 v25, s74','v_mov_b32 v26, s74'))
    A('s_sub_u32 s68, s68, s96\nv_mov_b32 v28, s68\nglobal_store_dword v24, v28, s[76:77] offset:8')
    for i in range(16):
        A(f'v_mov_b32 v28, s{chain.sSt+i}\nglobal_store_dword v24, v28, s[76:77] offset:{16+4*i}')
    A('s_waitcnt vmcnt(0)\nL_end:\ns_endpgm')
    body = A.finalize()
    body = body.rsplit('s_endpgm',1)[0]
    return wrap('tc_kernel', body, 256, 256, 163840, vgpr=512, accum=256)

if __name__=='__main__':
    gpu = os.path.exists('/dev/kfd')
    cfgs = eval(sys.argv[1]) if len(sys.argv)>1 else [dict()]
    if gpu:
        import torch
        m = importlib.import_module('concat_heads__grouped_kv_mqa__memory_aug_recurrent_mem_tr__prompt_np')
        np.random.seed(0); torch.manual_seed(0)
        inp = m.setup_inputs()
        def u16(t): return t.contiguous().view(torch.int16).numpy().view(np.uint16)
        x = inp['B_x'][0].float(); Wq=inp['B_Wq'].float(); Wk=inp['B_Wk'].float(); Wv=inp['B_Wv'].float(); Wo=inp['B_Wo'].float()
        bf = lambda t: t.to(torch.bfloat16)
        Kx = bf(torch.einsum('td,dhe->the', x, Wk)); Vx = bf(torch.einsum('td,dhe->the', x, Wv))
        mem = inp['B_mem0'][0]; kms=[]; vms=[]
        for s in range(64):
            mf = mem.float()
            q = bf(torch.einsum('td,dhe->hte', mf, Wq)); k = bf(torch.einsum('td,dhe->hte', mf, Wk)); v = bf(torch.einsum('td,dhe->hte', mf, Wv))
            kms.append(k); vms.append(v)
            kk = torch.cat([k, Kx[s*32:(s+1)*32].permute(1,0,2)],1).float(); vv = torch.cat([v, Vx[s*32:(s+1)*32].permute(1,0,2)],1).float()
            sc = torch.einsum('hqe,hke->hqk', q.float(), kk)*128**-0.5
            p = bf(torch.softmax(sc,-1)).float()
            o = bf(torch.einsum('hqk,hke->hqe', p, vv)).float()
            mem = bf(torch.einsum('hte,hed->td', o, Wo))
        kms = torch.stack(kms).float().numpy(); vms = torch.stack(vms).float().numpy()
        E,g,c = np.meshgrid(np.arange(4),np.arange(4),np.arange(8),indexing='ij')
        idx = 4*g+(c%4)+16*(c//4)
        eidx = 32*E+idx
        K16 = u16(Kx).reshape(64,32,32,128).transpose(0,2,1,3)
        V16 = u16(Vx).reshape(64,32,32,128).transpose(0,2,1,3)
        Kreg = K16[:,:,:,eidx]
        Kreg = Kreg.transpose(0,1,3,4,2,5).copy()
        Vt = V16.transpose(0,1,3,2).reshape(64,32,4,32,32)
        Vreg = Vt[:,:,:,:,idx[0]]
        Vreg = Vreg.transpose(0,1,2,4,3,5)
        KV = np.concatenate([Kreg.reshape(64,32,4096), Vreg.reshape(64,32,4096)],-1)
        ws = DeviceBuffer(WS_BYTES)
        def h2d(buf, off, arr):
            arr = np.ascontiguousarray(arr)
            hip_check(_hip.hipMemcpy(ctypes.c_void_p(buf.ptr+off), arr.ctypes.data_as(ctypes.c_void_p), arr.nbytes, 1))
        names = ['A_x','A_wq','A_wk','A_wv','A_wo','B_x','B_mem0','B_Wq','B_Wk','B_Wv','B_Wo']
        bufs = [DeviceBuffer.from_numpy(u16(inp[n])) for n in names] + [DeviceBuffer.from_numpy(np.array([32],np.int32))]
        out = DeviceBuffer(2048*1152*2); dbg = DeviceBuffer(256); flushb=DeviceBuffer(1<<28)
        def tof(a): return (a.astype(np.uint32)<<16).view(np.float32)
    def evaluate(D,X=(),n=14):
        D=dict(D); asm = build_chain(D1=D,X=X,ml=D.pop('ml',70))
        co = build(asm, 'tc_kernel', 15, 'tc.co')
        k = AsmKernel(co, 'tc_kernel', check=False)
        pss=[]
        for it in range(n):
            memset(ws, 0x5a, 0x100000); memset(out,0,16384)
            fl = np.zeros(FLAG_BYTES//4,np.uint32); fl[0:4096:128]=16; fl[64:4096:128]=16
            h2d(ws, WS_FLAGS, fl); hz=np.zeros(81*1024,np.uint32); hz[72*1024:79*1024]=0xffffffff; h2d(ws,0,hz)
            d = np.zeros(64,np.uint32); d[D_INIT//4]=8; d[0]=32; h2d(dbg,0,d)
            if os.environ.get('COLD'): memset(flush, it)
            sync()
            k.launch((256,1,1),(256,1,1), pack_ptr_kernargs([b.ptr for b in bufs]+[out.ptr,dbg.ptr,ws.ptr]), 163840)
            sync()
            r = out.to_numpy(np.uint32,(128,32)); pss.append((r[:,0].max()-r[:,14].max())/63.4 if r[:,1].min()==63 else 1e9)
        k.unload()
        return float(np.mean(sorted(pss[1:])[:-1]))
    if os.environ.get('OPT'):
        flush=DeviceBuffer(1<<28)
        h2d(ws, WS_KV, KV)
        spec=eval(os.environ['OPT']); cur=dict(spec['start']); t0=time.time()
        best=evaluate(cur); print('start',best,flush=True)
        improved=True
        while improved and time.time()-t0<spec.get('secs',400):
            improved=False
            for name,moves in spec['moves']:
                for mv in moves:
                    if time.time()-t0>spec.get('secs',400): break
                    c=dict(cur)
                    if isinstance(mv,dict):
                        for kk,dv in mv.items(): c[kk]=c[kk]+dv
                        if any(c[kk]<0 for kk in mv if kk not in ('fl','al')): continue
                    else:
                        if c.get(name)==mv: continue
                        c[name]=mv
                    try: v=evaluate(c)
                    except Exception as e: print('skip',c,e); continue
                    if v<best-4:
                        v2=evaluate(c)
                        if (v+v2)/2<best-3:
                            best=(v+v2)/2; cur=c; improved=True; print('  better',int(best),name,mv,flush=True)
            best=evaluate(cur); print('round',int(best),cur,flush=True)
        print('FINAL',int(best),cur)
        raise SystemExit
    for cfg in cfgs:
        asm = build_chain(**cfg)
        co = build(asm, 'tc_kernel', 15, 'tc.co')
        if not gpu: continue
        k = AsmKernel(co, 'tc_kernel')
        pss=[]; ins=[]; uss=[]
        for it in range(int(os.environ.get('NREP','3'))):
            memset(ws, 0x5a, 0x1000000); memset(out,0); memset(dbg,0)
            if it==0: h2d(ws, WS_KV, KV)
            fl = np.zeros(FLAG_BYTES//4,np.uint32); fl[0:4096:128]=16; fl[64:4096:128]=16
            h2d(ws, WS_FLAGS, fl); hz=np.zeros(81*1024,np.uint32); hz[72*1024:79*1024]=0xffffffff; h2d(ws,0,hz)
            d = np.zeros(64,np.uint32); d[D_INIT//4]=8; d[0]=32; h2d(dbg,0,d)
            if os.environ.get('COLD'): memset(flushb, it)
            sync()
            k.launch((256,1,1),(256,1,1), pack_ptr_kernargs([b.ptr for b in bufs]+[out.ptr,dbg.ptr,ws.ptr]), 163840)
            sync()
            r = out.to_numpy(np.uint32,(128,32)); pss.append((r[:,0].max()-r[:,14].max())/63.4); ins.append(r[:,14].max()); uss.append(r[:,2].max()/100)
        r = out.to_numpy(np.uint32,(128,32))
        w = ws.to_numpy(np.uint8,(0x1000000,))
        KM = w[WS_KM:WS_KM+64*32*2048].view(np.uint16).reshape(64,32,4,4,8,8)
        km = np.zeros((64,32,8,128),np.float32)
        for E_ in range(4):
            for g_ in range(4):
                km[:,:,:,eidx[E_,g_]] = tof(KM[:,:,E_,g_])
        VM = tof(w[WS_VM:WS_VM+64*32*4096].view(np.uint16).reshape(64,32,4,2,2,16,2,4))
        vm = VM.sum(3).transpose(0,1,3,6,2,5,4).reshape(64,32,8,128)
        ek = np.abs(km-kms).max(axis=(1,2,3)); ev = np.abs(vm-vms).max(axis=(1,2,3))
        sk = np.abs(kms).max(axis=(1,2,3)); sv = np.abs(vms).max(axis=(1,2,3))
        print(cfg, 'init', int(np.mean(ins[1:])), 'per-step mean %d med %d min %d'%(np.mean(pss[1:]),np.median(pss[1:]),np.min(pss[1:])), 'OK' if r[:,1].min()==63 and r[:,19].max()==0 else 'FAIL', 'spin %.2f'%(r[3::4,15].mean()/63), 'late', np.round([r[w_::4,16].mean()/63 for w_ in range(4)],2), 'us %.2f'%np.mean(uss[1:]), 'retry1', np.round([r[0::4,17].mean()/63, r[1::4,17].mean()/63, r[2::4,17].mean()/63],2), 'sec1', np.round([r[0::4,12].mean()/63, r[2::4,12].mean()/63],2), 'sec', np.round([r[0::4,13].mean()/63, r[2::4,13].mean()/63, r[3::4,13].mean()/63],2), 'retry2', np.round([r[0::4,18].mean()/63, r[2::4,18].mean()/63, r[3::4,18].mean()/63],2))
        if max((ek/sk).max(),(ev/sv).max())>0.02 or cfg==cfgs[0]: print('  rel err k', np.round((ek/sk)[[0,1,2,3,10,30,63]],4), 'max', (ek/sk).max(), ' v', np.round((ev/sv)[[0,1,2,3,10,30,63]],4), 'max', (ev/sv).max())
        if (ek/sk).max()>0.03:
            bs=int(np.argmax(ek/sk)); e=np.abs(km-kms)[bs]; bad=np.argwhere(e>0.03*sk[bs]); print('  BAD step',bs,'n',len(bad),'heads',np.unique(bad[:,0]),'keys',np.unique(bad[:,1]),'e',np.unique(bad[:,2])[:40])
        trs=[x for x in cfg.get('X',()) if isinstance(x,tuple) and x[0]=='tr']
        if trs:
            base=r[:,8].reshape(32,4).max(1).astype(np.int64)
            for kk,x in enumerate(trs):
                for wv in range(4):
                    d=r[wv::4,8+kk].astype(np.int64)-base
                    if np.abs(d).max()<100000: print('  tr',x[1],'w',wv, ' '.join('%4d'%v for v in d), ' mean', int(d.mean()))
        if 'itrace' in cfg.get('X',()): rr=r[:,8:14].reshape(32,4,6); print('  itrace fast', rr[0::4].mean((0,1)).astype(int), 'slow', rr[1::4].mean((0,1)).astype(int), 'max', rr.max((0,1)))
        if 'hist' in cfg.get('X',()): print('  steps <4000,4100,4200,4300,4450,4700:', r[0::4,8:14].mean(0))
        st = cfg.get('stamps',())
        if st:
            print('  waves', [{st[k]: int(r[wv::4, 4+4+k].mean()/63) for k in range(1,len(st))} for wv in range(4)])
        k.unload()
```
